```python
import torch

def _softmax(x, axis=-1):
    return torch.softmax(x, dim=axis)
def _gelu(x):
    return torch.nn.functional.gelu(x, approximate="tanh")
def _silu(x):
    return torch.nn.functional.silu(x)
def _sigmoid(x):
    return torch.sigmoid(x)
def _layernorm(x, axis=-1, eps=1e-5):
    m = x.mean(dim=axis, keepdim=True)
    v = x.var(dim=axis, keepdim=True, unbiased=False)
    return (x - m) / torch.sqrt(v + eps)
def _scatter_add(tgt, idx, src, axis=0):
    return tgt.clone().index_add_(axis, idx, src)
def _segment_sum(src, seg, n):
    out = torch.zeros((n,) + src.shape[1:], dtype=src.dtype)
    return out.index_add_(0, seg, src)
def _pad(x, pw):
    flat = tuple(v for pair in reversed(pw) for v in pair)
    return torch.nn.functional.pad(x, flat)

kernel_name = 'sequential_preLN__sliding_block__glu_gated_glu__prompt'

def setup_inputs():

    _w = (lambda a: (lambda t: t.to(torch.bfloat16) if t.is_floating_point() else t)(torch.as_tensor(a)))
    def _A_setup():
        B, S, D = 1, 2048, 576
        return {
            "x": _w((lambda *s: torch.randn(*s, dtype=torch.bfloat16) * 0.05)(B, S, D)),
            "wqkv": _w((lambda *s: torch.randn(*s, dtype=torch.bfloat16) * 0.05)(D, 3 * D)),
            "wo": _w((lambda *s: torch.randn(*s, dtype=torch.bfloat16) * 0.05)(D, D)),
        }
    _A_in = _A_setup()

    def _B_setup():
        B, S, D, F = 1, 2048, 576, 4608
        return {
            "x": _w((lambda *s: torch.randn(*s, dtype=torch.bfloat16) * 0.05)(B, S, D)),
            "w_gate": _w((lambda *s: torch.randn(*s, dtype=torch.bfloat16) * 0.05)(D, F)),
            "w_up": _w((lambda *s: torch.randn(*s, dtype=torch.bfloat16) * 0.05)(D, F)),
            "w_down": _w((lambda *s: torch.randn(*s, dtype=torch.bfloat16) * 0.05)(F, D)),
        }
    _B_in = _B_setup()

    return {
        "A_x": _A_in["x"],
        "A_wqkv": _A_in["wqkv"],
        "A_wo": _A_in["wo"],
        "B_x": _B_in["x"],
        "B_w_gate": _B_in["w_gate"],
        "B_w_up": _B_in["w_up"],
        "B_w_down": _B_in["w_down"],
    }

def reference(A_x, A_wqkv, A_wo, B_x, B_w_gate, B_w_up, B_w_down):
    def _A_ref(x, wqkv, wo):
        B, S, D = x.shape
        H = 32; Dh = D // H; W = 256
        qkv = (lambda x, *d: x.permute(*d))((x @ wqkv).reshape(B, S, 3, H, Dh), 2, 0, 3, 1, 4)
        q, k, v = qkv[0], qkv[1], qkv[2]
        scores = torch.einsum("bhqd,bhkd->bhqk", q, k) * (Dh ** -0.5)
        idx = torch.arange(S)
        mask = (idx[:, None] - idx[None, :] >= 0) & (idx[:, None] - idx[None, :] < W)
        scores = torch.where(mask[None, None], scores, -1e9)
        p = _softmax(scores, axis=-1)
        o = torch.einsum("bhqk,bhkd->bhqd", p, v)
        return (lambda x, *d: x.permute(*d))(o, 0, 2, 1, 3).reshape(B, S, D) @ wo

    def _B_ref(x, w_gate, w_up, w_down):
        g = torch.einsum("bsd,df->bsf", x, w_gate)
        u = torch.einsum("bsd,df->bsf", x, w_up)
        h = _sigmoid(g) * u
        return torch.einsum("bsf,fd->bsd", h, w_down)

    x = A_x
    h = x + _A_ref(_layernorm(x, axis=-1), A_wqkv, A_wo)
    h2 = h + _B_ref(_layernorm(h, axis=-1), B_w_gate, B_w_up, B_w_down)
    return h2
```

```python
MB = 1 << 20
QP = 65536
KP = 3 * MB
VP = 6 * MB
OP = 9 * MB
HP = 12 * MB
ST2 = 15 * MB
CS = 15 * MB + 512 * 1024
WGU = 16 * MB
HH = 28 * MB
PART = 48 * MB
FLAGS = 47 * MB
QSCALE = (18 ** -0.5) * 1.4426950408889634
DBG = 200 * MB
WOP = 100 * MB
WDP = 102 * MB
```

```python
import sys, struct
sys.path.insert(0, "dev")
import layout as L

NAME = "sequential_preLN__sliding_block__glu_gated_glu__prompt"

def f32bits(x): return struct.unpack("<I", struct.pack("<f", x))[0]
def hx(x): return "0x%08x" % (x & 0xFFFFFFFF)

class Kern:
    def __init__(self, name, grid, block, lds, vgpr, agpr=0, sgpr=96):
        self.name, self.grid, self.block, self.lds = name, grid, block, lds
        self.vgpr, self.agpr, self.sgpr = vgpr, agpr, sgpr
        self.L = []
        self.nlab = 0
    def __call__(self, s): self.L.append("  " + s)
    def label(self, l): self.L.append(l + ":")
    def newlab(self, p="L"):
        self.nlab += 1
        return ".%s_%s_%d" % (p, self.name, self.nlab)
    def text(self):
        o = [".p2align 8", ".globl %s" % self.name, ".type %s,@function" % self.name, "%s:" % self.name]
        return "\n".join(o + self.L) + "\n"
    def desc(self):
        acc = (self.vgpr + 3) // 4 * 4
        nfv = acc + self.agpr if self.agpr else self.vgpr
        return (".p2align 6\n.amdhsa_kernel %s\n  .amdhsa_next_free_vgpr %d\n  .amdhsa_next_free_sgpr %d\n"
                "  .amdhsa_accum_offset %d\n  .amdhsa_group_segment_fixed_size 0\n  .amdhsa_kernarg_size 80\n"
                "  .amdhsa_user_sgpr_count 2\n  .amdhsa_user_sgpr_kernarg_segment_ptr 1\n"
                "  .amdhsa_system_sgpr_workgroup_id_x 1\n.end_amdhsa_kernel\n") % (self.name, nfv, self.sgpr, acc)

def vr(b, n=1): return "v%d" % b if n == 1 else "v[%d:%d]" % (b, b + n - 1)
def ar(b, n=1): return "a%d" % b if n == 1 else "a[%d:%d]" % (b, b + n - 1)
def sr(b, n=1): return "s%d" % b if n == 1 else "s[%d:%d]" % (b, b + n - 1)

def make_srd(k, d, base, nbytes):
    k("s_mov_b32 s%d, s%d" % (d, base))
    k("s_and_b32 s%d, s%d, 0xffff" % (d + 1, base + 1))
    k("s_mov_b32 s%d, %s" % (d + 2, hx(nbytes)))
    k("s_mov_b32 s%d, 0x00020000" % (d + 3))

STAMPS = False
def stamp(k, i):
    if STAMPS: k("%s s[%d:%d]" % ("s_memtime" if STAMPS == 2 else "s_memrealtime", 60 + 2 * i, 61 + 2 * i))
def stamp_out(k, n, sWS, sw, nwaves, kidx):
    if not STAMPS: return
    k("s_waitcnt lgkmcnt(0)")
    k("s_mul_i32 s58, s2, %d" % nwaves)
    k("s_add_u32 s58, s58, s%d" % sw)
    k("s_lshl_b32 s58, s58, 6")
    k("s_add_u32 s58, s58, %d" % (L.DBG + kidx * (1 << 20)))
    k("v_mov_b32 v1, 0")
    for i in range(n):
        k("v_mov_b32 v2, s%d" % (60 + 2 * i))
        k("buffer_store_dword v2, v1, s[%d:%d], s58 offen offset:%d" % (sWS, sWS + 3, 4 * i))

def rnd_bf16(k, d, s):
    k("v_cvt_pk_bf16_f32 v%d, v%d, v%d" % (d, s, s))
    k("v_lshlrev_b32 v%d, 16, v%d" % (d, d))

def ln_stats(k, vsum, vsq, vmean, vrstd, t0, scale=None, s_scale=None):
    k("v_mul_f32 v%d, %s, v%d" % (vmean, hx(f32bits(1.0 / 576)), vsum))
    k("v_mul_f32 v%d, %s, v%d" % (t0, hx(f32bits(1.0 / 576)), vsq))
    k("v_fma_f32 v%d, -v%d, v%d, v%d" % (t0, vmean, vmean, t0))
    k("v_max_f32 v%d, 0, v%d" % (t0, t0))
    rnd_bf16(k, vmean, vmean)
    rnd_bf16(k, t0, t0)
    k("v_add_f32 v%d, %s, v%d" % (t0, hx(f32bits(1e-5)), t0))
    rnd_bf16(k, t0, t0)
    k("v_sqrt_f32 v%d, v%d" % (t0, t0))
    k("s_nop 0")
    rnd_bf16(k, t0, t0)
    k("v_rcp_f32 v%d, v%d" % (vrstd, t0))
    k("s_nop 0")
    if s_scale is not None:
        k("v_mul_f32 v%d, s%d, v%d" % (vrstd, s_scale, vrstd))

def gen_k1():
    NWG = 192
    k = Kern("k1_qkv_kernel", NWG, 256, 147456, vgpr=248)
    SLOT = 36864; WOFF = 16384
    sX, sW, sWS = 4, 8, 12
    sw, smt, snt, sT0, sT1, sT2, sT3 = 22, 23, 24, 25, 26, 27, 28
    sM0x, sM0w = 29, 30
    vL = 0
    vXo = 2; vWo = 6
    vXa = 11
    vWa = 15
    vT = 17
    ONES = 24
    XF = 28
    WF = 44
    ACC = 116
    RS = 188; SQ = 196
    CSA = 204
    vE = 240
    k("s_cmp_ge_u32 s2, %d" % NWG)
    k("s_cbranch_scc1 .L_k1_end")
    stamp(k, 0)
    k("s_load_dwordx4 s[16:19], s[0:1], 0")
    k("s_load_dwordx2 s[20:21], s[0:1], 72")
    k("v_lshrrev_b32 v1, 6, v0")
    k("v_and_b32 v0, 63, v0")
    k("v_readfirstlane_b32 s%d, v1" % sw)
    k("s_and_b32 s%d, s2, 7" % sT0)
    k("s_lshr_b32 s%d, s2, 3" % sT1)
    k("s_and_b32 s%d, s%d, 3" % (smt, sT0))
    k("s_lshl_b32 s%d, s%d, 2" % (smt, smt))
    k("s_and_b32 s%d, s%d, 3" % (sT2, sT1))
    k("s_add_u32 s%d, s%d, s%d" % (smt, smt, sT2))
    k("s_lshr_b32 s%d, s%d, 2" % (snt, sT0))
    k("s_mul_i32 s%d, s%d, 6" % (snt, snt))
    k("s_lshr_b32 s%d, s%d, 2" % (sT2, sT1))
    k("s_add_u32 s%d, s%d, s%d" % (snt, snt, sT2))
    k("s_lshl_b32 s%d, s%d, 7" % (sT0, smt))
    k("s_lshl_b32 s%d, s%d, 5" % (sT1, sw))
    k("s_add_u32 s%d, s%d, s%d" % (sT0, sT0, sT1))
    k("v_lshrrev_b32 v%d, 3, v0" % vT)
    k("v_add_u32 v%d, s%d, v%d" % (vT, sT0, vT))
    k("v_mul_u32_u24 v%d, 1152, v%d" % (vT, vT))
    k("v_lshrrev_b32 v%d, 4, v0" % (vT + 1))
    k("v_and_b32 v%d, 7, v0" % (vT + 2))
    k("v_xor_b32 v%d, v%d, v%d" % (vT + 2, vT + 2, vT + 1))
    k("v_xor_b32 v%d, 4, v%d" % (vT + 3, vT + 2))
    k("v_lshlrev_b32 v%d, 4, v%d" % (vT + 2, vT + 2))
    k("v_lshlrev_b32 v%d, 4, v%d" % (vT + 3, vT + 3))
    for j in range(4):
        k("v_add_u32 v%d, v%d, v%d" % (vXo + j, vT, vT + 2 + (j & 1)))
        if j: k("v_add_u32 v%d, %d, v%d" % (vXo + j, j * 8 * 1152 - j * 1024, vXo + j))
    k("s_mul_i32 s%d, s%d, %d" % (sT0, sw, 16 * 3456))
    k("s_mul_i32 s%d, s%d, 288" % (sT1, snt))
    k("s_add_u32 s%d, s%d, s%d" % (sT0, sT0, sT1))
    for j in range(5):
        q, rho, t2, t3 = vT, vT + 1, vT + 2, vT + 3
        k("v_add_u32 v%d, %d, v0" % (q, 64 * j))
        k("v_mul_u32_u24 v%d, 3641, v%d" % (rho, q))
        k("v_lshrrev_b32 v%d, 16, v%d" % (rho, rho))
        k("v_mul_u32_u24 v%d, 18, v%d" % (t2, rho))
        k("v_sub_u32 v%d, v%d, v%d" % (q, q, t2))
        k("v_and_b32 v%d, 3, v%d" % (t2, rho))
        k("v_and_b32 v%d, 4, v%d" % (t3, rho))
        k("v_lshl_or_b32 v%d, v%d, 1, v%d" % (t2, t3, t2))
        k("v_and_b32 v%d, 8, v%d" % (t3, rho))
        k("v_lshrrev_b32 v%d, 1, v%d" % (t3, t3))
        k("v_or_b32 v%d, v%d, v%d" % (t2, t2, t3))
        k("v_mul_u32_u24 v%d, 3456, v%d" % (t2, t2))
        k("v_lshl_add_u32 v%d, v%d, 4, v%d" % (t2, q, t2))
        k("v_add_u32 v%d, s%d, v%d" % (vWo + j, sT0, t2))
        if 0 < j < 4: k("v_subrev_u32 v%d, %d, v%d" % (vWo + j, j * 1024, vWo + j))
        if j == 4:
            k("v_mov_b32 v%d, 0x7ff00000" % t3)
            k("v_cmp_gt_u32 vcc, 32, v0")
            k("s_nop 1")
            k("v_cndmask_b32 v%d, v%d, v%d, vcc" % (vWo + j, t3, vWo + j))
    k("s_waitcnt lgkmcnt(0)")
    make_srd(k, sX, 16, 2048 * 1152)
    make_srd(k, sW, 18, 576 * 3456)
    make_srd(k, sWS, 20, 1 << 28)
    k("s_lshl_b32 s%d, s%d, 12" % (sM0x, sw))
    k("s_mul_i32 s%d, s%d, 5120" % (sM0w, sw))
    k("s_add_u32 s%d, s%d, %d" % (sM0w, sM0w, WOFF))
    def dma(c):
        sl = (c % 4) * SLOT
        k("s_add_u32 m0, s%d, %d" % (sM0x, sl))
        k("s_mov_b32 s%d, %d" % (sT0, c * 128))
        for j in range(4):
            k("buffer_load_dwordx4 v%d, s[%d:%d], s%d offen offset:%d lds" % (vXo + j, sX, sX + 3, sT0, j * 1024))
        k("s_add_u32 m0, s%d, %d" % (sM0w, sl))
        k("s_mov_b32 s%d, %d" % (sT1, c * 64 * 3456))
        for j in range(4):
            k("buffer_load_dwordx4 v%d, s[%d:%d], s%d offen offset:%d lds" % (vWo + j, sW, sW + 3, sT1, j * 1024))
        k("s_add_u32 m0, s%d, %d" % (sM0w, sl + 4096))
        k("s_nop 0")
        k("buffer_load_dwordx4 v%d, s[%d:%d], s%d offen lds" % (vWo + 4, sW, sW + 3, sT1))
    stamp(k, 1)
    for c in range(4): dma(c)
    stamp(k, 2)
    k("v_and_b32 v%d, 15, v0" % vT)
    k("v_lshrrev_b32 v%d, 4, v0" % (vT + 1))
    k("v_lshrrev_b32 v%d, 1, v%d" % (vT + 2, vT))
    k("v_xor_b32 v%d, v%d, v%d" % (vT + 2, vT + 2, vT + 1))
    k("v_lshlrev_b32 v%d, 7, v%d" % (vT + 3, vT))
    k("v_add_u32 v%d, s%d, v%d" % (vT + 3, sM0x, vT + 3))
    k("v_lshl_add_u32 v%d, v%d, 4, v%d" % (vXa + 0, vT + 2, vT + 3))
    k("v_xor_b32 v%d, 4, v%d" % (vT + 2, vT + 2))
    k("v_lshl_add_u32 v%d, v%d, 4, v%d" % (vXa + 2, vT + 2, vT + 3))
    k("v_add_u32 v%d, %d, v%d" % (vXa + 1, 2 * SLOT, vXa + 0))
    k("v_add_u32 v%d, %d, v%d" % (vXa + 3, 2 * SLOT, vXa + 2))
    k("v_lshrrev_b32 v%d, 1, v%d" % (vT + 2, vT + 1))
    k("v_mul_u32_u24 v%d, 5120, v%d" % (vT + 2, vT + 2))
    k("v_and_b32 v%d, 1, v%d" % (vT + 3, vT + 1))
    k("v_lshlrev_b32 v%d, 2, v%d" % (vT + 3, vT + 3))
    k("v_lshrrev_b32 v%d, 2, v%d" % (vT + 4, vT))
    k("v_add_u32 v%d, v%d, v%d" % (vT + 3, vT + 3, vT + 4))
    k("v_mul_u32_u24 v%d, 288, v%d" % (vT + 3, vT + 3))
    k("v_and_b32 v%d, 3, v%d" % (vT + 4, vT))
    k("v_lshlrev_b32 v%d, 3, v%d" % (vT + 4, vT + 4))
    k("v_add3_u32 v%d, v%d, v%d, v%d" % (vWa, vT + 2, vT + 3, vT + 4))
    k("v_add_u32 v%d, %d, v%d" % (vWa, WOFF, vWa))
    k("v_add_u32 v%d, %d, v%d" % (vWa + 1, 2 * SLOT, vWa))
    for i in range(4): k("v_mov_b32 v%d, 0x3f803f80" % (ONES + i))
    for i in range(ACC, CSA + 36): k("v_mov_b32 v%d, 0" % i)

    def reads(s):
        c, ksl, buf = s // 2, s & 1, s & 1
        sl = c % 4; hi = sl >> 1; so = (sl & 1) * SLOT
        out = []
        for t in range(2):
            out.append("ds_read_b128 %s, v%d offset:%d" % (vr(XF + (buf * 2 + t) * 4, 4), vXa + ksl * 2 + hi, so + t * 2048))
        for u in range(9):
            for h in range(2):
                out.append("ds_read_b64_tr_b16 %s, v%d offset:%d" % (vr(WF + (buf * 9 + u) * 4 + 2 * h, 2), vWa + hi,
                           so + ksl * 10240 + h * 2304 + u * 32))
        return out

    k("s_cmp_ge_u32 s%d, 8" % snt)
    k("s_cbranch_scc1 .L_k1_v")
    for ori in ("qk", "v"):
        if ori == "v": k.label(".L_k1_v")
        k("s_waitcnt vmcnt(27)")
        k("s_barrier")
        stamp(k, 3)
        for r in reads(0): k(r)
        for s in range(18):
            buf = s & 1
            k("s_waitcnt lgkmcnt(0)")
            if s == 9: stamp(k, 4)
            rd = []
            if s + 1 < 18:
                if (s + 1) % 2 == 0:
                    c = (s + 1) // 2
                    n = {1: 18, 2: 18, 3: 18, 4: 18, 5: 18, 6: 18, 7: 9, 8: 0}[c]
                    k("s_waitcnt vmcnt(%d)" % n)
                    k("s_barrier")
                    if c + 3 <= 8: dma(c + 3)
                rd = reads(s + 1)
            mf = []
            for u in range(9):
                for t in range(2):
                    a, b = vr(WF + (buf * 9 + u) * 4, 4), vr(XF + (buf * 2 + t) * 4, 4)
                    if ori == "v": a, b = b, a
                    d = vr(ACC + (t * 9 + u) * 4, 4)
                    mf.append("v_mfma_f32_16x16x32_bf16 %s, %s, %s, %s" % (d, a, b, d))
            for t in range(2):
                x = vr(XF + (buf * 2 + t) * 4, 4); o = vr(ONES, 4)
                a, b = (o, x) if ori == "qk" else (x, o)
                mf.append("v_mfma_f32_16x16x32_bf16 %s, %s, %s, %s" % (vr(RS + 4 * t, 4), a, b, vr(RS + 4 * t, 4)))
                mf.append("v_mfma_f32_16x16x32_bf16 %s, %s, %s, %s" % (vr(SQ + 4 * t, 4), x, x, vr(SQ + 4 * t, 4)))
            for i, m in enumerate(mf):
                k(m)
                if i < len(rd): k(rd[i])
            lab = k.newlab()
            k("s_cmp_lg_u32 s%d, %d" % (sw, s & 3))
            k("s_cbranch_scc1 %s" % lab)
            for u in range(9):
                w = vr(WF + (buf * 9 + u) * 4, 4); o = vr(ONES, 4)
                a, b = (w, o) if ori == "qk" else (o, w)
                k("v_mfma_f32_16x16x32_bf16 %s, %s, %s, %s" % (vr(CSA + 4 * u, 4), a, b, vr(CSA + 4 * u, 4)))
            k.label(lab)
        stamp(k, 5)
        k("s_nop 15")
        k("s_barrier")
        k("s_mul_i32 s%d, s%d, 9216" % (sT0, sw))
        k("v_lshlrev_b32 v%d, 4, v0" % vT)
        k("v_add_u32 v%d, s%d, v%d" % (vT + 1, sT0, vT))
        for u in range(9): k("ds_write_b128 v%d, %s offset:%d" % (vT + 1, vr(CSA + 4 * u, 4), u * 1024))
        k("s_waitcnt lgkmcnt(0)")
        k("s_barrier")
        for half in range(2):
            for ww in range(2):
                for u in range(9):
                    k("ds_read_b128 %s, v%d offset:%d" % (vr(WF + (ww * 9 + u) * 4, 4), vT, (half * 2 + ww) * 9216 + u * 1024))
            k("s_waitcnt lgkmcnt(0)")
            for i in range(36):
                if half == 0: k("v_add_f32 v%d, v%d, v%d" % (CSA + i, WF + i, WF + 36 + i))
                else:
                    k("v_add_f32 v%d, v%d, v%d" % (WF + i, WF + i, WF + 36 + i))
                    k("v_add_f32 v%d, v%d, v%d" % (CSA + i, CSA + i, WF + i))
        stamp(k, 6)
        k("v_and_b32 v%d, 15, v0" % vT)
        k("v_lshrrev_b32 v%d, 4, v0" % (vT + 1))
        MEAN = XF; RSTD = XF + 8
        if ori == "qk":
            k("s_mov_b32 s%d, 1.0" % sT3)
            k("s_cmp_lt_u32 s%d, 4" % snt)
            k("s_cselect_b32 s%d, %s, s%d" % (sT3, hx(f32bits(L.QSCALE)), sT3))
            k("v_and_b32 v%d, 3, v%d" % (vT + 2, vT))
            k("v_lshrrev_b32 v%d, 2, v%d" % (vT + 3, vT))
            k("v_lshl_add_u32 v%d, v%d, 4, v%d" % (vT + 3, vT + 3, vT))
            k("v_lshlrev_b32 v%d, 2, v%d" % (vT + 3, vT + 3))
            for t in range(2):
                k("v_mov_b32 v%d, v%d" % (vE, SQ + 4 * t))
                for r in range(1, 4):
                    k("v_cmp_eq_u32 vcc, %d, v%d" % (r, vT + 2))
                    k("s_nop 1")
                    k("v_cndmask_b32 v%d, v%d, v%d, vcc" % (vE, vE, SQ + 4 * t + r))
                k("ds_bpermute_b32 v%d, v%d, v%d" % (vE + 1 + t, vT + 3, vE))
            k("s_waitcnt lgkmcnt(0)")
            for t in range(2):
                ln_stats(k, RS + 4 * t, vE + 1 + t, MEAN + t, RSTD + t, vE, s_scale=sT3)
            k("s_and_b32 s%d, s%d, 3" % (sT0, snt))
            k("s_mul_i32 s%d, s%d, 36" % (sT0, sT0))
            k("s_lshl_b32 s%d, s%d, 2" % (sT1, smt))
            k("s_add_u32 s%d, s%d, s%d" % (sT1, sT1, sw))
            k("s_mul_i32 s%d, s%d, 144" % (sT1, sT1))
            k("s_add_u32 s%d, s%d, s%d" % (sT0, sT0, sT1))
            k("s_lshl_b32 s%d, s%d, 8" % (sT0, sT0))
            k("s_mov_b32 s%d, %d" % (sT1, L.QP))
            k("s_cmp_lt_u32 s%d, 4" % snt)
            k("s_cselect_b32 s%d, s%d, %d" % (sT1, sT1, L.KP))
            k("s_add_u32 s%d, s%d, s%d" % (sT0, sT0, sT1))
            k("s_add_u32 s%d, s%d, 4096" % (sT1, sT0))
            k("s_add_u32 s%d, s%d, 8192" % (sT2, sT0))
            k("v_lshlrev_b32 v%d, 8, v%d" % (vT + 2, vT + 1))
            k("v_lshl_add_u32 v%d, v%d, 3, v%d" % (vT + 2, vT, vT + 2))
            n = 0
            for u in range(9):
                for t in range(2):
                    a = ACC + (t * 9 + u) * 4
                    for r in range(4):
                        k("v_fma_f32 v%d, -v%d, v%d, v%d" % (a + r, MEAN + t, CSA + 4 * u + r, a + r))
                    for r in range(4):
                        k("v_mul_f32 v%d, v%d, v%d" % (a + r, RSTD + t, a + r))
                    k("v_cvt_pk_bf16_f32 v%d, v%d, v%d" % (a, a, a + 1))
                    k("v_cvt_pk_bf16_f32 v%d, v%d, v%d" % (a + 1, a + 2, a + 3))
                    k("buffer_store_dwordx2 %s, v%d, s[%d:%d], s%d offen offset:%d" % (vr(a, 2), vT + 2, sWS, sWS + 3, [sT0, sT1, sT2][u >> 2], (u & 3) * 1024 + t * 128))
        else:
            k("v_mul_u32_u24 v%d, 80, v%d" % (vT + 2, vT + 1))
            for t in range(2):
                for r in range(4):
                    k("v_add_u32 v%d, %d, v%d" % (vT + 3, 4 * r, vT + 2))
                    k("ds_bpermute_b32 v%d, v%d, v%d" % (WF + 4 * t + r, vT + 3, SQ + 4 * t + r))
            k("s_waitcnt lgkmcnt(0)")
            for t in range(2):
                for r in range(4):
                    ln_stats(k, RS + 4 * t + r, WF + 4 * t + r, MEAN + 4 * t + r, RSTD + 4 * t + r, vE)
            k("s_and_b32 s%d, s%d, 3" % (sT0, snt))
            k("s_mul_i32 s%d, s%d, %d" % (sT0, sT0, 8 * 81920))
            k("s_mul_i32 s%d, s%d, %d" % (sT1, smt, 8 * 640))
            k("s_add_u32 s%d, s%d, s%d" % (sT0, sT0, sT1))
            k("s_add_u32 s%d, s%d, %d" % (sT0, sT0, L.VP))
            k("s_mul_i32 s%d, s%d, 1280" % (sT1, sw))
            k("s_add_u32 s%d, s%d, s%d" % (sT1, sT1, sT0))
            k("s_add_u32 s%d, s%d, 640" % (sT2, sT1))
            k("s_lshl_b32 s%d, s%d, 6" % (sT3, sw))
            k("v_add_u32 v%d, s%d, v0" % (vT + 2, sT3))
            k("v_lshrrev_b32 v%d, 3, v%d" % (vT + 3, vT + 2))
            k("v_mul_u32_u24 v%d, 160, v%d" % (vT + 3, vT + 3))
            k("v_and_b32 v%d, 7, v%d" % (vT + 2, vT + 2))
            k("v_mul_u32_u24 v%d, 81920, v%d" % (vT + 2, vT + 2))
            k("v_add_u32 v%d, v%d, v%d" % (vT + 2, vT + 2, vT + 3))
            k("buffer_store_dwordx2 %s, v%d, s[%d:%d], s%d offen offset:144" % (vr(ONES, 2), vT + 2, sWS, sWS + 3, sT0))
            k("buffer_store_dwordx2 %s, v%d, s[%d:%d], s%d offen offset:152" % (vr(ONES, 2), vT + 2, sWS, sWS + 3, sT0))
            k("v_mul_u32_u24 v%d, 160, v%d" % (vT + 4, vT + 1))
            for u in range(9):
                k("v_add_u32 v%d, %d, v%d" % (vT + 2, 16 * u, vT))
                k("v_mul_u32_u24 v%d, 3641, v%d" % (vT + 3, vT + 2))
                k("v_lshrrev_b32 v%d, 16, v%d" % (vT + 3, vT + 3))
                k("v_mul_u32_u24 v%d, %d, v%d" % (vT + 3, 81920 - 144, vT + 3))
                k("v_lshl_add_u32 v%d, v%d, 3, v%d" % (vT + 2, vT + 2, vT + 3))
                k("v_add_u32 v%d, v%d, v%d" % (vE + (u & 1), vT + 2, vT + 4))
                for t in range(2):
                    a = ACC + (t * 9 + u) * 4
                    for r in range(4):
                        k("v_fma_f32 v%d, -v%d, v%d, v%d" % (a + r, MEAN + 4 * t + r, CSA + 4 * u, a + r))
                    for r in range(4):
                        k("v_mul_f32 v%d, v%d, v%d" % (a + r, RSTD + 4 * t + r, a + r))
                    k("v_cvt_pk_bf16_f32 v%d, v%d, v%d" % (a, a, a + 1))
                    k("v_cvt_pk_bf16_f32 v%d, v%d, v%d" % (a + 1, a + 2, a + 3))
                    k("buffer_store_dwordx2 %s, v%d, s[%d:%d], s%d offen" % (vr(a, 2), vE + (u & 1), sWS, sWS + 3, [sT1, sT2][t]))
        stamp(k, 7)
        k("s_waitcnt vmcnt(0)")
        stamp(k, 8)
        stamp_out(k, 9, sWS, sw, 4, 0)
        k("s_endpgm")
    k.label(".L_k1_end")
    k("s_endpgm")
    return k

def gen_k2():
    NWG = 256
    KI, VI, QI = 0, 20480, 40960
    k = Kern("k2_attn_kernel", NWG, 512, 52224, vgpr=256)
    sWS = 4
    sw, shd, sqb, sT0, sT1, sT2, sT3, sqg = 10, 11, 12, 13, 14, 15, 16, 17
    sC = 40
    S = 16; KV = 160; O = 232; Q = 248
    vKa, vKh, vVa, vT, vM = 1, 2, 3, 6, 14
    NEG = hx(f32bits(-1e30))
    R = "s[%d:%d]" % (sWS, sWS + 3)
    k("s_cmp_ge_u32 s2, %d" % NWG)
    k("s_cbranch_scc1 .L_k2_end")
    stamp(k, 0)
    k("s_load_dwordx2 s[8:9], s[0:1], 72")
    k("v_lshrrev_b32 v1, 6, v0")
    k("v_and_b32 v0, 63, v0")
    k("v_readfirstlane_b32 s%d, v1" % sw)
    k("s_and_b32 s%d, s2, 31" % shd)
    k("s_lshr_b32 s%d, s2, 5" % sqg)
    k("s_lshl_b32 s%d, s%d, 3" % (sqb, sqg))
    k("s_add_u32 s%d, s%d, s%d" % (sqb, sqb, sw))
    k("s_mul_i32 s%d, s%d, 9" % (sT0, shd))
    k("s_lshr_b32 s%d, s%d, 1" % (sT0, sT0))
    k("s_lshl_b32 s%d, s%d, 8" % (sT0, sT0))
    k("s_mul_i32 s%d, s%d, %d" % (sT1, sqg, 8 * 36864))
    k("s_add_u32 s%d, s%d, s%d" % (sT0, sT0, sT1))
    k("s_add_u32 s%d, s%d, %d" % (sT1, sT0, L.QP))
    k("s_add_u32 s%d, s%d, %d" % (sT0, sT0, L.KP - 8 * 36864))
    k("s_mul_i32 s%d, s%d, 81920" % (sT2, shd))
    k("s_mul_i32 s%d, s%d, %d" % (sT3, sqg, 16 * 640))
    k("s_add_u32 s%d, s%d, s%d" % (sT2, sT2, sT3))
    k("s_add_u32 s%d, s%d, %d" % (sT2, sT2, L.VP - 16 * 640))
    k("s_lshl_b32 s%d, s%d, 6" % (sT3, sw))
    k("v_add_u32 v%d, s%d, v0" % (vT, sT3))
    OFF = KV
    k("v_mov_b32 v%d, 0x7ff00000" % (vT + 4))
    k("s_cmp_eq_u32 s%d, 0" % sqg)
    k("s_cselect_b32 s%d, 640, 0" % sT3)
    for i in range(3):
        k("v_add_u32 v%d, %d, v%d" % (vT + 1, 512 * i, vT))
        k("v_mul_u32_u24 v%d, 52429, v%d" % (vT + 2, vT + 1))
        k("v_lshrrev_b32 v%d, 22, v%d" % (vT + 2, vT + 2))
        k("v_mul_u32_u24 v%d, %d, v%d" % (vT + 3, 36864 - 1280, vT + 2))
        k("v_lshl_add_u32 v%d, v%d, 4, v%d" % (OFF + 6 + i, vT + 1, vT + 3))
        k("v_lshlrev_b32 v%d, 4, v%d" % (OFF + 3 + i, vT + 1))
        k("v_cmp_gt_u32 vcc, s%d, v%d" % (sT3, vT + 1))
        k("s_nop 1")
        k("v_cndmask_b32 v%d, v%d, v%d, vcc" % (OFF + i, OFF + 6 + i, vT + 4))
        k("v_cndmask_b32 v%d, v%d, v%d, vcc" % (OFF + 3 + i, OFF + 3 + i, vT + 4))
    k("s_lshl_b32 s%d, s%d, 10" % (sT3, sw))
    k("s_waitcnt lgkmcnt(0)")
    make_srd(k, sWS, 8, 1 << 28)
    def dma(img, i, voff, soff, wlim):
        lab = None
        if wlim < 8:
            lab = k.newlab()
            k("s_cmp_ge_u32 s%d, %d" % (sw, wlim))
            k("s_cbranch_scc1 %s" % lab)
        k("s_add_u32 m0, s%d, %d" % (sT3, img + i * 8192))
        k("s_nop 0")
        k("buffer_load_dwordx4 v%d, %s, s%d offen lds" % (voff, R, soff))
        if lab: k.label(lab)
    dma(QI, 0, OFF + 6, sT1, 8); dma(QI, 1, OFF + 7, sT1, 2)
    for i in range(3): dma(KI, i, OFF + i, sT0, 8 if i < 2 else 4)
    for i in range(3): dma(VI, i, OFF + 3 + i, sT2, 8 if i < 2 else 4)
    stamp(k, 1)
    k("v_and_b32 v%d, 31, v0" % vT)
    k("v_lshrrev_b32 v%d, 5, v0" % (vT + 1))
    k("v_lshlrev_b32 v%d, 3, v%d" % (vT + 2, vT))
    k("s_and_b32 s%d, s%d, 1" % (sT0, shd))
    k("s_mul_i32 s%d, s%d, 1280" % (sT1, sw))
    k("s_lshl_b32 s%d, s%d, 8" % (sT2, sT0))
    k("s_add_u32 s%d, s%d, s%d" % (sT2, sT2, sT1))
    k("s_cmp_eq_u32 s%d, 0" % sT0)
    k("s_cselect_b32 s%d, 1024, 4" % sT0)
    k("s_add_u32 s%d, s%d, s%d" % (sT0, sT0, sT1))
    k("v_lshl_add_u32 v%d, v%d, 9, v%d" % (vKa, vT + 1, vT + 2))
    k("v_add_u32 v%d, s%d, v%d" % (vKa, sT2, vKa))
    k("v_add_u32 v%d, s%d, v%d" % (vKh, sT0, vT + 2))
    k("v_mul_u32_u24 v%d, 160, v%d" % (vVa, vT + 1))
    k("v_add3_u32 v%d, v%d, v%d, s%d" % (vVa, vVa, vT + 2, sT1))
    k("v_lshlrev_b32 v%d, 2, v%d" % (vT + 2, vT + 1))
    k("v_sub_u32 v%d, v%d, v%d" % (vT + 2, vT, vT + 2))
    k("v_mov_b32 v%d, %s" % (vT + 3, NEG))
    for half in range(2):
        for r8 in range(8):
            r = half * 8 + r8
            k("v_cmp_le_i32 s[%d:%d], %d, v%d" % (sC + 2 * r8, sC + 2 * r8 + 1, 8 * (r >> 2) + (r & 3), vT + 2))
        for r8 in range(8):
            r = half * 8 + r8
            k("v_cndmask_b32 v%d, v%d, 0, s[%d:%d]" % (S + 128 + r, vT + 3, sC + 2 * r8, sC + 2 * r8 + 1))
            k("v_cndmask_b32 v%d, 0, v%d, s[%d:%d]" % (S + r, vT + 3, sC + 2 * r8, sC + 2 * r8 + 1))
    for i in range(5, 8): k("v_mov_b32 v%d, 0" % (Q + i))
    for i in range(16): k("v_mov_b32 v%d, 0" % (O + i))
    for j in range(9): k("v_mov_b32 v%d, 0" % (KV + 6 * j + 5))
    k("v_mov_b32 v%d, 0" % (KV + 54))
    k("v_mov_b32 v%d, 0" % (KV + 55))
    k("v_cmp_gt_u32 vcc, 32, v0")
    k("s_waitcnt vmcnt(0)")
    k("s_barrier")
    stamp(k, 2)
    order = [8, 7, 6, 5, 4, 3, 2, 1, 0]
    k("ds_read_b64 %s, v%d offset:%d" % (vr(Q, 2), vKa, QI))
    k("ds_read_b64 %s, v%d offset:%d" % (vr(Q + 2, 2), vKa, QI + 256))
    k("ds_read_b32 v%d, v%d offset:%d" % (Q + 4, vKh, QI))
    def kread(j):
        b = KV + 6 * j
        k("ds_read_b64 %s, v%d offset:%d" % (vr(b, 2), vKa, KI + j * 1280))
        k("ds_read_b64 %s, v%d offset:%d" % (vr(b + 2, 2), vKa, KI + j * 1280 + 256))
        k("ds_read_b32 v%d, v%d offset:%d" % (b + 4, vKh, KI + j * 1280))
    for j in order[:4]: kread(j)
    k("s_waitcnt lgkmcnt(12)")
    k("v_cndmask_b32 v%d, 0, v%d, vcc" % (Q + 4, Q + 4))
    for n, j in enumerate(order):
        b = KV + 6 * j; sj = vr(S + 16 * j, 16)
        lab_inv = k.newlab(); lab_done = k.newlab()
        if n + 4 < 9:
            kread(order[n + 4]); k("s_waitcnt lgkmcnt(12)")
        else:
            k("s_waitcnt lgkmcnt(%d)" % (3 * (8 - n)))
        if j < 8:
            k("s_cmp_lt_u32 s%d, %d" % (sqb, 8 - j))
            k("s_cbranch_scc1 %s" % lab_inv)
        else: k("s_nop 1")
        c = sj if j in (0, 8) else "0"
        k("v_mfma_f32_32x32x16_bf16 %s, %s, %s, %s" % (sj, vr(b, 4), vr(Q, 4), c))
        k("v_mfma_f32_32x32x16_bf16 %s, %s, %s, %s" % (sj, vr(b + 4, 4), vr(Q + 4, 4), sj))
        if j < 8:
            k("s_branch %s" % lab_done)
            k.label(lab_inv)
            for r in range(16): k("v_mov_b32 v%d, v%d" % (S + 16 * j + r, vT + 3))
            k.label(lab_done)
    stamp(k, 3)
    k("s_nop 7")
    for j in order:
        for ks in range(2):
            for eh in range(2):
                k("ds_read_b64 %s, v%d offset:%d" % (vr(KV + 8 * j + 4 * ks + 2 * eh, 2), vVa, VI + j * 1280 + ks * 640 + eh * 320))
    regs = [S + 16 * j + r for j in order for r in range(16)]
    ch = [vT + 4, vT + 5, vM, vM + 1]
    per = [regs[i::4] for i in range(4)]
    for c in range(4): k("v_max_f32 v%d, v%d, v%d" % (ch[c], per[c][0], per[c][1]))
    for i in range(2, 36, 2):
        for c in range(4): k("v_max3_f32 v%d, v%d, v%d, v%d" % (ch[c], ch[c], per[c][i], per[c][i + 1]))
    k("v_max3_f32 v%d, v%d, v%d, v%d" % (vM, vM, ch[0], ch[1]))
    k("v_max_f32 v%d, v%d, v%d" % (vM, vM, vM + 1))
    k("v_mov_b32 v%d, v%d" % (vM + 1, vM))
    k("s_nop 1")
    k("v_permlane32_swap_b32 v%d, v%d" % (vM, vM + 1))
    k("s_nop 1")
    k("v_max_f32 v%d, v%d, v%d" % (vM, vM, vM + 1))
    k("s_waitcnt lgkmcnt(0)")
    stamp(k, 4)
    for n, j in enumerate(order):
        b = S + 16 * j
        for r in range(16): k("v_sub_f32 v%d, v%d, v%d" % (b + r, b + r, vM))
        for r in range(16): k("v_exp_f32 v%d, v%d" % (b + r, b + r))
        for i in range(8): k("v_cvt_pk_bf16_f32 v%d, v%d, v%d" % (b + i, b + 2 * i, b + 2 * i + 1))
        k("s_nop 1")
        k("v_mfma_f32_32x32x16_bf16 %s, %s, %s, %s" % (vr(O, 16), vr(KV + 8 * j, 4), vr(b, 4), vr(O, 16)))
        k("v_mfma_f32_32x32x16_bf16 %s, %s, %s, %s" % (vr(O, 16), vr(KV + 8 * j + 4, 4), vr(b + 4, 4), vr(O, 16)))
    stamp(k, 5)
    k("v_lshrrev_b32 v%d, 4, v%d" % (vT + 2, vT))
    k("v_mul_u32_u24 v%d, 18432, v%d" % (vT + 2, vT + 2))
    k("v_and_b32 v%d, 15, v%d" % (vT + 3, vT))
    k("v_lshl_add_u32 v%d, v%d, 4, v%d" % (vT + 2, vT + 3, vT + 2))
    k("v_lshl_add_u32 v%d, v%d, 8, v%d" % (vT + 3, vT + 1, vT + 2))
    k("s_mul_i32 s%d, s%d, 36864" % (sT0, sqb))
    k("s_add_u32 s%d, s%d, %d" % (sT0, sT0, L.OP))
    k("s_lshr_b32 s%d, s%d, 1" % (sT1, shd))
    k("s_lshl_b32 s%d, s%d, 10" % (sT1, sT1))
    k("s_and_b32 s%d, s%d, 1" % (sT2, shd))
    k("s_lshl_b32 s%d, s%d, 9" % (sT2, sT2))
    k("s_add_u32 s%d, s%d, s%d" % (sT1, sT1, sT2))
    k("s_add_u32 s%d, s%d, s%d" % (sT1, sT1, sT0))
    k("s_lshr_b32 s%d, s%d, 4" % (sT2, shd))
    k("s_add_u32 s%d, s%d, 16" % (sT2, sT2))
    k("s_lshl_b32 s%d, s%d, 10" % (sT2, sT2))
    k("s_add_u32 s%d, s%d, s%d" % (sT2, sT2, sT0))
    k("s_bfe_u32 s%d, s%d, 0x10003" % (sT3, shd))
    k("s_lshl_b32 s%d, s%d, 9" % (sT3, sT3))
    k("s_add_u32 s%d, s%d, s%d" % (sT2, sT2, sT3))
    k("s_bfe_u32 s%d, s%d, 0x10001" % (sT3, shd))
    k("s_lshl_b32 s%d, s%d, 8" % (sT3, sT3))
    k("s_add_u32 s%d, s%d, s%d" % (sT2, sT2, sT3))
    k("s_bfe_u32 s%d, s%d, 0x10002" % (sT3, shd))
    k("s_lshl_b32 s%d, s%d, 3" % (sT3, sT3))
    k("s_add_u32 s%d, s%d, s%d" % (sT2, sT2, sT3))
    k("s_and_b32 s%d, s%d, 1" % (sT3, shd))
    k("s_lshl_b32 s%d, s%d, 2" % (sT3, sT3))
    k("s_add_u32 s%d, s%d, s%d" % (sT2, sT2, sT3))
    k("s_nop 7")
    k("v_mov_b32 v%d, v%d" % (vM, O + 10))
    k("v_mov_b32 v%d, v%d" % (vM + 1, O + 10))
    k("s_nop 1")
    k("v_permlane32_swap_b32 v%d, v%d" % (vM, vM + 1))
    k("s_nop 1")
    k("v_rcp_f32 v%d, v%d" % (vM, vM))
    k("s_nop 0")
    for r in range(10): k("v_mul_f32 v%d, v%d, v%d" % (O + r, O + r, vM))
    for i in range(5): k("v_cvt_pk_bf16_f32 v%d, v%d, v%d" % (O + i, O + 2 * i, O + 2 * i + 1))
    k("buffer_store_dwordx4 %s, v%d, %s, s%d offen" % (vr(O, 4), vT + 3, R, sT1))
    k("s_mov_b32 exec_hi, 0")
    k("buffer_store_dword v%d, v%d, %s, s%d offen" % (O + 4, vT + 2, R, sT2))
    k("s_mov_b64 exec, -1")
    stamp(k, 6)
    if STAMPS: k("s_waitcnt vmcnt(0)")
    stamp(k, 7)
    stamp_out(k, 8, sWS, sw, 8, 1)
    k.label(".L_k2_end")
    k("s_endpgm")
    return k

PP_SLOT = 10496; PP_HALF = 5248
def pp_lane_offsets(k, vdst, vT, pitch, leftover=False):
    for j in range(5):
        q, rho, t2 = vT, vT + 1, vT + 2
        k("v_add_u32 v%d, %d, v0" % (q, 64 * j))
        k("v_mul_u32_u24 v%d, 3641, v%d" % (rho, q))
        k("v_lshrrev_b32 v%d, 16, v%d" % (rho, rho))
        k("v_mul_u32_u24 v%d, 18, v%d" % (t2, rho))
        k("v_sub_u32 v%d, v%d, v%d" % (q, q, t2))
        if leftover:
            k("v_lshrrev_b32 v%d, 1, v%d" % (t2, rho))
            k("v_mul_u32_u24 v%d, 18, v%d" % (t2, t2))
            k("v_and_b32 v%d, 1, v%d" % (rho, rho))
            k("v_add3_u32 v%d, v%d, v%d, 16" % (rho, rho, t2))
        k("v_mul_u32_u24 v%d, %d, v%d" % (t2, pitch, rho))
        k("v_lshl_add_u32 v%d, v%d, 4, v%d" % (vdst + j, q, t2))
        if 0 < j < 4: k("v_subrev_u32 v%d, %d, v%d" % (vdst + j, j * 1024, vdst + j))
        if j == 4:
            k("v_mov_b32 v%d, 0x7ff00000" % t2)
            k("v_cmp_gt_u32 vcc, 32, v0")
            k("s_nop 1")
            k("v_cndmask_b32 v%d, v%d, v%d, vcc" % (vdst + j, t2, vdst + j))
def pp_dma_half(k, voff, srd, ssoff, sm0base, ldsoff):
    k("s_add_u32 m0, s%d, %d" % (sm0base, ldsoff))
    k("s_nop 0")
    for j in range(4):
        k("buffer_load_dwordx4 v%d, s[%d:%d], s%d offen offset:%d lds" % (voff + j, srd, srd + 3, ssoff, j * 1024))
    k("s_add_u32 m0, s%d, %d" % (sm0base, ldsoff + 4096))
    k("s_nop 0")
    k("buffer_load_dwordx4 v%d, s[%d:%d], s%d offen lds" % (voff + 4, srd, srd + 3, ssoff))
def pp_tr_addr(k, vdst, vT, sbase, kind):
    k("v_and_b32 v%d, 15, v0" % vT)
    k("v_lshrrev_b32 v%d, 4, v0" % (vT + 1))
    k("v_lshrrev_b32 v%d, 1, v%d" % (vT + 2, vT + 1))
    k("v_and_b32 v%d, 1, v%d" % (vT + 3, vT + 1))
    a, b = (vT + 3, vT + 2) if kind == 32 else (vT + 2, vT + 3)
    k("v_mul_u32_u24 v%d, %d, v%d" % (a, PP_HALF, a))
    k("v_lshlrev_b32 v%d, 2, v%d" % (b, b))
    k("v_lshrrev_b32 v%d, 2, v%d" % (vT + 1, vT))
    k("v_add_u32 v%d, v%d, v%d" % (b, b, vT + 1))
    k("v_mul_u32_u24 v%d, 288, v%d" % (b, b))
    k("v_and_b32 v%d, 3, v%d" % (vT, vT))
    k("v_lshlrev_b32 v%d, 3, v%d" % (vT, vT))
    k("v_add3_u32 v%d, v%d, v%d, v%d" % (vdst, a, b, vT))
    k("v_add_u32 v%d, s%d, v%d" % (vdst, sbase, vdst))
def pp_tr_reads(k, F, vaddr, ldsoff):
    for u in range(9):
        for h in range(2):
            k("ds_read_b64_tr_b16 %s, v%d offset:%d" % (vr(F + 4 * u + 2 * h, 2), vaddr, ldsoff + h * 2304 + u * 32))

def gen_k0():
    NWG = 64 + 144 + 18
    k = Kern("k0_prepack_kernel", NWG, 256, 4 * 3 * PP_SLOT, vgpr=248)
    sG, sU, sWS = 4, 8, 12
    sw, sT0, sT1, sT2, sT3, sM0, sp = 24, 25, 26, 27, 28, 29, 30
    vO, vA, vT, vS = 2, 7, 8, 13
    ONES = 16; F = 20; CSA = 96
    k("s_cmp_ge_u32 s2, %d" % NWG)
    k("s_cbranch_scc1 .L_k0_end")
    k("s_load_dwordx4 s[16:19], s[0:1], 32")
    k("s_load_dwordx2 s[20:21], s[0:1], 72")
    k("s_load_dwordx2 s[22:23], s[0:1], 48")
    k("s_load_dwordx2 s[32:33], s[0:1], 16")
    k("v_lshrrev_b32 v1, 6, v0")
    k("v_and_b32 v0, 63, v0")
    k("v_readfirstlane_b32 s%d, v1" % sw)
    k("v_lshlrev_b32 v%d, 4, v0" % vS)
    k("s_nop 2")
    k("s_mul_i32 s%d, s%d, %d" % (sM0, sw, 3 * PP_SLOT))
    k("s_waitcnt lgkmcnt(0)")
    make_srd(k, sWS, 20, 1 << 28)
    R = "s[%d:%d]" % (sWS, sWS + 3)
    k("s_cmp_ge_u32 s2, 64")
    k("s_cbranch_scc1 .L_k0_wd")
    make_srd(k, sG, 16, 576 * 9216)
    make_srd(k, sU, 18, 576 * 9216)
    pp_lane_offsets(k, vO, vT, 9216)
    pp_tr_addr(k, vA, vT, sM0, 32)
    for i in range(4): k("v_mov_b32 v%d, 0x3f803f80" % (ONES + i))
    for i in range(144): k("v_mov_b32 v%d, 0" % (CSA + i))
    k("s_lshr_b32 s%d, s2, 1" % sT0)
    k("s_and_b32 s%d, s2, 1" % sT1)
    k("s_mul_i32 s%d, s%d, 18" % (sT2, sT1))
    k("s_add_u32 s%d, s%d, s%d" % (sT2, sT2, sw))
    k("s_mul_i32 s%d, s%d, %d" % (sT3, sT2, 16 * 9216))
    k("s_mul_i32 s%d, s%d, 288" % (sp, sT0))
    k("s_add_u32 s34, s%d, s%d" % (sT3, sp))
    k("s_mul_i32 s%d, s%d, %d" % (sp, sT0, 9 * 36))
    k("s_add_u32 s%d, s%d, s%d" % (sp, sp, sT2))
    k("s_lshl_b32 s%d, s%d, 10" % (sp, sp))
    k("s_add_u32 s40, s%d, %d" % (sp, L.WGU))
    for i in range(1, 5):
        k("s_add_u32 s%d, s34, %d" % (34 + i, i * 4 * 16 * 9216))
        k("s_add_u32 s%d, s40, %d" % (40 + i, i * 4096))
    k("s_cmp_ge_u32 s%d, 2" % sw)
    k("s_cselect_b32 s38, 0x7f000000, s38")
    k("s_cselect_b32 s44, 0x7f000000, s44")
    def gu_dma(i):
        pp_dma_half(k, vO, sG, 34 + i, sM0, (i % 3) * PP_SLOT)
        pp_dma_half(k, vO, sU, 34 + i, sM0, (i % 3) * PP_SLOT + PP_HALF)
    for i in range(3): gu_dma(i)
    waits = [20, 10 + 9 + 10 - 10 + 10, 0, 0, 0]
    seq = ["D0", "D1", "D2"]
    for i in range(5):
        idx = seq.index("D%d" % i)
        n = sum(10 if x[0] == "D" else 9 for x in seq[idx + 1:])
        k("s_waitcnt vmcnt(%d)" % n)
        Fb = F + 36 * (i & 1)
        pp_tr_reads(k, Fb, vA, (i % 3) * PP_SLOT)
        k("s_waitcnt lgkmcnt(0)")
        for u in range(9):
            k("s_add_u32 s%d, s%d, %d" % (sT0, 40 + i, u * 36 * 1024))
            k("buffer_store_dwordx4 %s, v%d, %s, s%d offen" % (vr(Fb + 4 * u, 4), vS, R, sT0))
            k("v_mfma_f32_32x32x16_bf16 %s, %s, %s, %s" % (vr(CSA + 16 * u, 16), vr(Fb + 4 * u, 4), vr(ONES, 4), vr(CSA + 16 * u, 16)))
        seq.append("S%d" % i)
        if i + 3 < 5:
            gu_dma(i + 3); seq.append("D%d" % (i + 3))
        if i >= 1:
            pass
    k("s_nop 15")
    k("s_waitcnt vmcnt(0)")
    k("s_barrier")
    k("v_lshrrev_b32 v%d, 5, v0" % vT)
    k("v_lshlrev_b32 v%d, 6, v%d" % (vT, vT))
    k("s_mul_i32 s%d, s%d, 1152" % (sT0, sw))
    k("v_add_u32 v%d, s%d, v%d" % (vT, sT0, vT))
    k("s_mov_b32 exec_lo, 1")
    k("s_mov_b32 exec_hi, 1")
    for u in range(9):
        for q in range(4):
            k("ds_write_b128 v%d, %s offset:%d" % (vT, vr(CSA + 16 * u + 4 * q, 4), u * 128 + q * 16))
    k("s_mov_b64 exec, -1")
    k("s_waitcnt lgkmcnt(0)")
    k("s_barrier")
    k("s_lshl_b32 s%d, s%d, 6" % (sT0, sw))
    k("v_add_u32 v%d, s%d, v0" % (vT, sT0))
    k("v_cmp_gt_u32 vcc, 72, v%d" % vT)
    k("v_lshlrev_b32 v%d, 4, v%d" % (vT, vT))
    k("s_and_saveexec_b64 s[46:47], vcc")
    k("s_cbranch_execz .L_k0_end")
    for ww in range(4): k("ds_read_b128 %s, v%d offset:%d" % (vr(F + 4 * ww, 4), vT, ww * 1152))
    k("s_waitcnt lgkmcnt(0)")
    for i in range(4):
        k("v_add_f32 v%d, v%d, v%d" % (F + i, F + i, F + 4 + i))
        k("v_add_f32 v%d, v%d, v%d" % (F + 8 + i, F + 8 + i, F + 12 + i))
        k("v_add_f32 v%d, v%d, v%d" % (F + i, F + i, F + 8 + i))
    k("s_lshr_b32 s%d, s2, 1" % sT0)
    k("s_mul_i32 s%d, s%d, 1152" % (sT0, sT0))
    k("s_and_b32 s%d, s2, 1" % sT1)
    k("s_mul_i32 s%d, s%d, 36864" % (sT1, sT1))
    k("s_add_u32 s%d, s%d, s%d" % (sT0, sT0, sT1))
    k("s_add_u32 s%d, s%d, %d" % (sT0, sT0, L.CS))
    k("buffer_store_dwordx4 %s, v%d, %s, s%d offen" % (vr(F, 4), vT, R, sT0))
    k("s_endpgm")
    k.label(".L_k0_wd")
    k("s_cmp_ge_u32 s2, 208")
    k("s_cbranch_scc1 .L_k0_wo")
    make_srd(k, sG, 22, 4608 * 1152)
    pp_lane_offsets(k, vO, vT, 1152)
    pp_tr_addr(k, vA, vT, sM0, 16)
    k("s_sub_u32 s%d, s2, 64" % sT0)
    k("s_lshl_b32 s%d, s%d, 2" % (sT0, sT0))
    k("s_add_u32 s%d, s%d, s%d" % (sT0, sT0, sw))
    k("s_and_b32 s%d, s%d, 3" % (sT1, sT0))
    k("s_lshr_b32 s%d, s%d, 2" % (sT2, sT0))
    k("s_mul_i32 s34, s%d, %d" % (sT2, 32 * 1152))
    k("s_mul_i32 s%d, s%d, 288" % (sT3, sT1))
    k("s_add_u32 s34, s34, s%d" % sT3)
    k("s_add_u32 s35, s34, %d" % (16 * 1152))
    k("s_mul_i32 s%d, s%d, 144" % (sT1, sT1))
    k("s_add_u32 s%d, s%d, s%d" % (sT1, sT1, sT2))
    k("s_mul_i32 s40, s%d, 9216" % sT1)
    k("s_add_u32 s40, s40, %d" % L.WDP)
    pp_dma_half(k, vO, sG, 34, sM0, 0)
    pp_dma_half(k, vO, sG, 35, sM0, PP_HALF)
    k("s_waitcnt vmcnt(0)")
    pp_tr_reads(k, F, vA, 0)
    k("s_waitcnt lgkmcnt(0)")
    for u in range(9):
        k("s_add_u32 s%d, s40, %d" % (sT0, u * 1024))
        k("buffer_store_dwordx4 %s, v%d, %s, s%d offen" % (vr(F + 4 * u, 4), vS, R, sT0))
    k("s_endpgm")
    k.label(".L_k0_wo")
    make_srd(k, sG, 32, 576 * 1152)
    k("s_sub_u32 s%d, s2, 208" % sT2)
    k("s_cmp_ge_u32 s%d, 16" % sT2)
    k("s_cbranch_scc1 .L_k0_wol")
    pp_lane_offsets(k, vO, vT, 1152)
    k("s_mul_i32 s34, s%d, %d" % (sT2, 36 * 1152))
    k("s_add_u32 s35, s34, %d" % (18 * 1152))
    k("s_branch .L_k0_wo2")
    k.label(".L_k0_wol")
    pp_lane_offsets(k, vO, vT, 1152, leftover=True)
    k("s_sub_u32 s34, s%d, 16" % sT2)
    k("s_mul_i32 s34, s34, %d" % (16 * 18 * 1152))
    k("s_add_u32 s35, s34, %d" % (8 * 18 * 1152))
    k.label(".L_k0_wo2")
    pp_tr_addr(k, vA, vT, sM0, 16)
    k("s_mul_i32 s%d, s%d, 288" % (sT3, sw))
    k("s_add_u32 s34, s34, s%d" % sT3)
    k("s_add_u32 s35, s35, s%d" % sT3)
    k("s_mul_i32 s40, s%d, %d" % (sw, 9 * 18))
    k("s_add_u32 s40, s40, s%d" % sT2)
    k("s_lshl_b32 s40, s40, 10")
    k("s_add_u32 s40, s40, %d" % L.WOP)
    pp_dma_half(k, vO, sG, 34, sM0, 0)
    pp_dma_half(k, vO, sG, 35, sM0, PP_HALF)
    k("s_waitcnt vmcnt(0)")
    pp_tr_reads(k, F, vA, 0)
    k("s_waitcnt lgkmcnt(0)")
    for u in range(9):
        k("s_add_u32 s%d, s40, %d" % (sT0, u * 18 * 1024))
        k("buffer_store_dwordx4 %s, v%d, %s, s%d offen" % (vr(F + 4 * u, 4), vS, R, sT0))
    k.label(".L_k0_end")
    k("s_endpgm")
    return k

def gen_k3():
    NWG = 256
    OI, XI, SI = 0, 36864, 36864 + 9216
    k = Kern("k3_wo_kernel", NWG, 576, SI + 9 * 256, vgpr=128)
    sWS, sX = 4, 8
    sw, stt, sng, sT0, sT1, sT2 = 16, 17, 18, 19, 20, 21
    vS, vT = 1, 2
    WF = 12; OF = 84; ACC = 100; vE = 108
    R = "s[%d:%d]" % (sWS, sWS + 3)
    k("s_cmp_ge_u32 s2, %d" % NWG)
    k("s_cbranch_scc1 .L_k3_end")
    stamp(k, 0)
    k("s_load_dwordx2 s[12:13], s[0:1], 72")
    k("s_load_dwordx2 s[14:15], s[0:1], 0")
    k("v_lshrrev_b32 v1, 6, v0")
    k("v_and_b32 v0, 63, v0")
    k("v_readfirstlane_b32 s%d, v1" % sw)
    k("v_lshlrev_b32 v%d, 4, v0" % vS)
    k("s_and_b32 s%d, s2, 3" % sng)
    k("s_lshr_b32 s%d, s2, 2" % stt)
    k("s_lshl_b32 s%d, s%d, 6" % (sT0, sw))
    k("v_add_u32 v%d, s%d, v0" % (vT, sT0))
    k("v_mul_u32_u24 v%d, 3641, v%d" % (vT + 1, vT))
    k("v_lshrrev_b32 v%d, 16, v%d" % (vT + 1, vT + 1))
    k("v_mul_u32_u24 v%d, %d, v%d" % (vT + 1, 1152 - 288, vT + 1))
    k("v_lshl_add_u32 v%d, v%d, 4, v%d" % (vT + 1, vT, vT + 1))
    k("s_waitcnt lgkmcnt(0)")
    make_srd(k, sWS, 12, 1 << 28)
    make_srd(k, sX, 14, 2048 * 1152)
    k("s_lshl_b32 s%d, s%d, 12" % (sT0, sw))
    k("s_mul_i32 s%d, s%d, 36864" % (sT1, stt))
    k("s_add_u32 s%d, s%d, s%d" % (sT1, sT1, sT0))
    k("s_add_u32 s%d, s%d, %d" % (sT1, sT1, L.OP))
    k("s_add_u32 m0, s%d, %d" % (sT0, OI))
    k("s_nop 0")
    for j in range(4): k("buffer_load_dwordx4 v%d, %s, s%d offen offset:%d lds" % (vS, R, sT1, j * 1024))
    k("s_lshl_b32 s%d, s%d, 10" % (sT0, sw))
    k("s_add_u32 m0, s%d, %d" % (sT0, XI))
    k("s_mul_i32 s%d, s%d, 36864" % (sT1, stt))
    k("s_mul_i32 s%d, s%d, 288" % (sT2, sng))
    k("s_add_u32 s%d, s%d, s%d" % (sT1, sT1, sT2))
    k("buffer_load_dwordx4 v%d, s[%d:%d], s%d offen lds" % (vT + 1, sX, sX + 3, sT1))
    k("s_mul_i32 s%d, s%d, 9" % (sT0, sng))
    k("s_add_u32 s%d, s%d, s%d" % (sT0, sT0, sw))
    k("s_mul_i32 s%d, s%d, 18432" % (sT0, sT0))
    k("s_add_u32 s%d, s%d, %d" % (sT0, sT0, L.WOP))
    for ks in range(18):
        if ks and ks % 4 == 0: k("s_add_u32 s%d, s%d, 4096" % (sT0, sT0))
        k("buffer_load_dwordx4 %s, v%d, %s, s%d offen offset:%d" % (vr(WF + 4 * ks, 4), vS, R, sT0, (ks % 4) * 1024))
    stamp(k, 1)
    for i in range(8): k("v_mov_b32 v%d, 0" % (ACC + i))
    k("s_waitcnt vmcnt(18)")
    k("s_barrier")
    stamp(k, 2)
    def oread(ks):
        for t in range(2):
            k("ds_read_b128 %s, v%d offset:%d" % (vr(OF + ((ks & 1) * 2 + t) * 4, 4), vS, OI + (t * 18 + ks) * 1024))
    oread(0)
    for ks in range(18):
        if ks + 1 < 18:
            oread(ks + 1); k("s_waitcnt vmcnt(%d) lgkmcnt(2)" % (17 - ks))
        else: k("s_waitcnt vmcnt(0) lgkmcnt(0)")
        for t in range(2):
            k("v_mfma_f32_16x16x32_bf16 %s, %s, %s, %s" % (vr(ACC + 4 * t, 4), vr(WF + 4 * ks, 4), vr(OF + ((ks & 1) * 2 + t) * 4, 4), vr(ACC + 4 * t, 4)))
    stamp(k, 3)
    k("v_and_b32 v%d, 15, v0" % vT)
    k("v_lshrrev_b32 v%d, 4, v0" % (vT + 1))
    k("v_mul_u32_u24 v%d, 288, v%d" % (vT + 2, vT))
    k("v_lshl_add_u32 v%d, v%d, 3, v%d" % (vT + 2, vT + 1, vT + 2))
    k("s_lshl_b32 s%d, s%d, 5" % (sT0, sw))
    k("v_add_u32 v%d, s%d, v%d" % (vT + 2, sT0, vT + 2))
    for t in range(2): k("ds_read_b64 %s, v%d offset:%d" % (vr(OF + 2 * t, 2), vT + 2, XI + t * 4608))
    k("v_and_b32 v%d, 1, v%d" % (vT + 3, vT + 1))
    k("v_lshlrev_b32 v%d, 9, v%d" % (vT + 3, vT + 3))
    k("v_lshl_add_u32 v%d, v%d, 4, v%d" % (vT + 3, vT, vT + 3))
    k("v_lshrrev_b32 v%d, 1, v%d" % (vT + 4, vT + 1))
    k("v_lshl_add_u32 v%d, v%d, 3, v%d" % (vT + 3, vT + 4, vT + 3))
    k("s_mul_i32 s%d, s%d, 36" % (sT0, stt))
    k("s_mul_i32 s%d, s%d, 9" % (sT1, sng))
    k("s_add_u32 s%d, s%d, s%d" % (sT0, sT0, sT1))
    k("s_add_u32 s%d, s%d, s%d" % (sT0, sT0, sw))
    k("s_lshl_b32 s%d, s%d, 10" % (sT0, sT0))
    k("s_add_u32 s%d, s%d, %d" % (sT0, sT0, L.HP))
    k("s_waitcnt lgkmcnt(0)")
    for t in range(2):
        a = ACC + 4 * t; x = OF + 2 * t; e = vE + 8 * t
        k("v_cvt_pk_bf16_f32 v%d, v%d, v%d" % (e, a, a + 1))
        k("v_cvt_pk_bf16_f32 v%d, v%d, v%d" % (e + 1, a + 2, a + 3))
        for i in range(2):
            k("v_lshlrev_b32 v%d, 16, v%d" % (a + 2 * i, e + i))
            k("v_and_b32 v%d, 0xffff0000, v%d" % (a + 2 * i + 1, e + i))
            k("v_lshlrev_b32 v%d, 16, v%d" % (e + 2, x + i))
            k("v_and_b32 v%d, 0xffff0000, v%d" % (e + 3, x + i))
            k("v_add_f32 v%d, v%d, v%d" % (a + 2 * i, a + 2 * i, e + 2))
            k("v_add_f32 v%d, v%d, v%d" % (a + 2 * i + 1, a + 2 * i + 1, e + 3))
        k("v_cvt_pk_bf16_f32 v%d, v%d, v%d" % (e, a, a + 1))
        k("v_cvt_pk_bf16_f32 v%d, v%d, v%d" % (e + 1, a + 2, a + 3))
        k("buffer_store_dwordx2 %s, v%d, %s, s%d offen offset:%d" % (vr(e, 2), vT + 3, R, sT0, t * 256))
        for i in range(2):
            k("v_lshlrev_b32 v%d, 16, v%d" % (a + 2 * i, e + i))
            k("v_and_b32 v%d, 0xffff0000, v%d" % (a + 2 * i + 1, e + i))
        k("v_add_f32 v%d, v%d, v%d" % (e + 2, a, a + 1))
        k("v_add_f32 v%d, v%d, v%d" % (e + 3, a + 2, a + 3))
        k("v_add_f32 v%d, v%d, v%d" % (e + 2, e + 2, e + 3))
        k("v_mul_f32 v%d, v%d, v%d" % (e + 3, a, a))
        for i in range(1, 4): k("v_fmac_f32 v%d, v%d, v%d" % (e + 3, a + i, a + i))
        for q in (2, 3):
            k("v_mov_b32 v%d, v%d" % (e + 4, e + q))
            k("s_nop 1")
            k("v_permlane32_swap_b32 v%d, v%d" % (e + q, e + 4))
            k("s_nop 1")
            k("v_add_f32 v%d, v%d, v%d" % (e + q, e + q, e + 4))
            k("v_mov_b32 v%d, v%d" % (e + 4, e + q))
            k("s_nop 1")
            k("v_permlane16_swap_b32 v%d, v%d" % (e + q, e + 4))
            k("s_nop 1")
            k("v_add_f32 v%d, v%d, v%d" % (e + q, e + q, e + 4))
    k("s_lshl_b32 s%d, s%d, 8" % (sT0, sw))
    k("v_lshlrev_b32 v%d, 3, v%d" % (vT + 2, vT))
    k("v_add_u32 v%d, s%d, v%d" % (vT + 2, sT0, vT + 2))
    k("s_mov_b64 exec, 0xffff")
    for t in range(2): k("ds_write_b64 v%d, %s offset:%d" % (vT + 2, vr(vE + 8 * t + 2, 2), SI + t * 128))
    k("s_mov_b64 exec, -1")
    k("s_waitcnt lgkmcnt(0)")
    k("s_barrier")
    k("s_cmp_lg_u32 s%d, 0" % sw)
    k("s_cbranch_scc1 .L_k3_fin")
    k("v_lshlrev_b32 v%d, 2, v0" % (vT + 2))
    for ww in range(9): k("ds_read_b32 v%d, v%d offset:%d" % (WF + ww, vT + 2, SI + ww * 256))
    k("s_waitcnt lgkmcnt(0)")
    for ww in range(1, 9): k("v_add_f32 v%d, v%d, v%d" % (WF, WF, WF + ww))
    k("s_lshl_b32 s%d, s%d, 14" % (sT0, sng))
    k("s_lshl_b32 s%d, s%d, 8" % (sT1, stt))
    k("s_add_u32 s%d, s%d, s%d" % (sT0, sT0, sT1))
    k("s_add_u32 s%d, s%d, %d" % (sT0, sT0, L.ST2))
    k("buffer_store_dword v%d, v%d, %s, s%d offen" % (WF, vT + 2, R, sT0))
    k.label(".L_k3_fin")
    stamp(k, 4)
    if STAMPS: k("s_waitcnt vmcnt(0)")
    stamp(k, 5)
    stamp_out(k, 6, sWS, sw, 9, 2)
    k.label(".L_k3_end")
    k("s_endpgm")
    return k

class VMQ:
    def __init__(self, k): self.k, self.q = k, []
    def op(self, tag, text): self.k(text); self.q.append(tag)
    def n_after(self, tag):
        idx = max(i for i, t in enumerate(self.q) if t == tag)
        return len(self.q) - 1 - idx
    def wait(self, tag): self.k("s_waitcnt vmcnt(%d)" % min(63, self.n_after(tag)))

def interleave(k, main, fill, start=0, per=None):
    n = len(main) - start
    fi = 0
    for i, m in enumerate(main):
        (m() if callable(m) else k(m))
        if i >= start and fill:
            want = ((i - start + 1) * len(fill) + n - 1) // n if per is None else min(len(fill), (i - start + 1) * per)
            while fi < want:
                f = fill[fi]; (f() if callable(f) else k(f)); fi += 1
    while fi < len(fill):
        f = fill[fi]; (f() if callable(f) else k(f)); fi += 1

def gen_k4():
    NWG = 256
    BLK = 36864; CSI = 4 * BLK
    k = Kern("k4_ffn1_kernel", NWG, 256, CSI + 9 * 128, vgpr=256, agpr=256)
    sWS = 4
    sw, smb, scg, sT0, sT1, sT2, sWsrc, sM0, sHH = 10, 11, 12, 13, 14, 15, 16, 17, 18
    vS, vA, vSt, vCs, vT = 1, 2, 6, 7, 8
    MEAN, RSTD, C1 = 16, 18, 20
    HV = 24
    ACC = 56
    WF = 120
    CS = 144
    E = 160
    NWF = 6
    R = "s[%d:%d]" % (sWS, sWS + 3)
    vm = VMQ(k)
    def hreg(t, ks):
        i = ks * 2 + t
        return ar(4 * i, 4) if i < 64 else vr(HV + 4 * (i - 64), 4)
    k("s_cmp_ge_u32 s2, %d" % NWG)
    k("s_cbranch_scc1 .L_k4_end")
    stamp(k, 0)
    k("s_load_dwordx2 s[8:9], s[0:1], 72")
    k("v_lshrrev_b32 v1, 6, v0")
    k("v_and_b32 v0, 63, v0")
    k("v_readfirstlane_b32 s%d, v1" % sw)
    k("v_lshlrev_b32 v%d, 4, v0" % vS)
    k("s_and_b32 s%d, s2, 7" % sT0)
    k("s_lshr_b32 s%d, s2, 3" % sT1)
    k("s_and_b32 s%d, s%d, 1" % (smb, sT0))
    k("s_lshl_b32 s%d, s%d, 2" % (smb, smb))
    k("s_and_b32 s%d, s%d, 3" % (sT2, sT1))
    k("s_add_u32 s%d, s%d, s%d" % (smb, smb, sT2))
    k("s_lshr_b32 s%d, s%d, 1" % (scg, sT0))
    k("s_lshl_b32 s%d, s%d, 3" % (scg, scg))
    k("s_lshr_b32 s%d, s%d, 2" % (sT2, sT1))
    k("s_add_u32 s%d, s%d, s%d" % (scg, scg, sT2))
    k("s_mul_i32 s%d, s%d, 9216" % (sM0, sw))
    k("s_mul_i32 s%d, s%d, %d" % (sWsrc, scg, 9 * BLK))
    k("s_add_u32 s%d, s%d, s%d" % (sWsrc, sWsrc, sM0))
    k("s_add_u32 s%d, s%d, %d" % (sWsrc, sWsrc, L.WGU))
    for i in range(4): k("v_add_u32 v%d, %d, v%d" % (vA + i, i * BLK, vS))
    k("s_waitcnt lgkmcnt(0)")
    make_srd(k, sWS, 8, 1 << 28)
    def wdma(b, j):
        def f():
            g = j // 4
            k("s_add_u32 m0, s%d, %d" % (sM0, (b % 4) * BLK + g * 4096))
            k("s_add_u32 s%d, s%d, %d" % (sT0, sWsrc, b * BLK + g * 4096))
            vm.op("W%d" % b, "buffer_load_dwordx4 v%d, %s, s%d offen offset:%d lds" % (vS, R, sT0, (j % 4) * 1024))
        return f
    for j in range(9): wdma(0, j)()
    k("s_lshl_b32 s%d, s%d, 3" % (sT1, smb))
    k("s_lshl_b32 s%d, s%d, 1" % (sT2, sw))
    k("s_add_u32 s%d, s%d, s%d" % (sT1, sT1, sT2))
    k("s_mul_i32 s%d, s%d, 294912" % (sHH, sT1))
    k("s_mul_i32 s%d, s%d, 9" % (sT2, scg))
    k("s_lshl_b32 s%d, s%d, 9" % (sT2, sT2))
    k("s_add_u32 s%d, s%d, s%d" % (sHH, sHH, sT2))
    k("s_add_u32 s%d, s%d, %d" % (sHH, sHH, L.HH))
    k("v_and_b32 v%d, 31, v0" % vT)
    k("v_lshlrev_b32 v%d, 3, v%d" % (vT + 1, vT))
    k("s_lshl_b32 s%d, s%d, 8" % (sT2, sT1))
    k("s_add_u32 s%d, s%d, %d" % (sT2, sT2, L.ST2))
    for ng in range(4):
        for t in range(2):
            vm.op("ST", "buffer_load_dwordx2 %s, v%d, %s, s%d offen offset:%d" % (vr(E + (ng * 2 + t) * 2, 2), vT + 1, R, sT2, t * 256))
        if ng < 3: k("s_add_u32 s%d, s%d, 16384" % (sT2, sT2))
    k("s_mul_i32 s%d, s%d, 1152" % (sT2, scg))
    k("s_add_u32 s%d, s%d, %d" % (sT2, sT2, L.CS))
    k("s_lshl_b32 s%d, s%d, 10" % (sT0, sw))
    k("v_add_u32 v%d, s%d, v%d" % (vT + 2, sT0, vS))
    vm.op("CS", "buffer_load_dwordx4 %s, v%d, %s, s%d offen" % (vr(E + 16, 4), vT + 2, R, sT2))
    k("s_add_u32 s%d, s%d, 36864" % (sT2, sT2))
    vm.op("CS", "buffer_load_dwordx4 %s, v%d, %s, s%d offen" % (vr(E + 20, 4), vT + 2, R, sT2))
    k("s_mul_i32 s%d, s%d, 36864" % (sT1, sT1))
    k("s_add_u32 s%d, s%d, %d" % (sT1, sT1, L.HP))
    k("s_add_u32 s%d, s%d, 36864" % (sT2, sT1))
    sH0, sH1 = 22, 23
    k("s_mov_b32 s%d, s%d" % (sH0, sT1))
    k("s_mov_b32 s%d, s%d" % (sH1, sT2))
    def hload(ks):
        if ks and ks % 4 == 0:
            k("s_add_u32 s%d, s%d, 4096" % (sH0, sH0))
            k("s_add_u32 s%d, s%d, 4096" % (sH1, sH1))
        for t in range(2):
            vm.op("H%d" % ks, "buffer_load_dwordx4 %s, v%d, %s, s%d offen offset:%d" % (hreg(t, ks), vS, R, [sH0, sH1][t], (ks % 4) * 1024))
    HPF = 10
    for ks in range(HPF): hload(ks)
    vm.wait("CS")
    for t in range(2):
        for c in range(2):
            k("v_add_f32 v%d, v%d, v%d" % (E + 2 * t + c, E + 2 * t + c, E + 4 + 2 * t + c))
            k("v_add_f32 v%d, v%d, v%d" % (E + 8 + 2 * t + c, E + 8 + 2 * t + c, E + 12 + 2 * t + c))
            k("v_add_f32 v%d, v%d, v%d" % (E + 2 * t + c, E + 2 * t + c, E + 8 + 2 * t + c))
        ln_stats(k, E + 2 * t, E + 2 * t + 1, MEAN + t, RSTD + t, vT + 3)
        k("v_mul_f32 v%d, %s, v%d" % (C1 + t, hx(f32bits(-1.4426950408889634)), RSTD + t))
    for i in range(4): k("v_add_f32 v%d, v%d, v%d" % (E + 16 + i, E + 16 + i, E + 20 + i))
    k("v_cmp_gt_u32 vcc, 1152, v%d" % (vT + 2))
    k("s_and_saveexec_b64 s[20:21], vcc")
    k("v_add_u32 v%d, %d, v%d" % (vT + 2, CSI, vT + 2))
    k("ds_write_b128 v%d, %s" % (vT + 2, vr(E + 16, 4)))
    k("s_mov_b64 exec, s[20:21]")
    stamp(k, 1)
    k("v_lshrrev_b32 v%d, 4, v%d" % (vT + 1, vT))
    k("v_mul_u32_u24 v%d, 147456, v%d" % (vT + 1, vT + 1))
    k("v_and_b32 v%d, 15, v%d" % (vT + 2, vT))
    k("v_lshl_add_u32 v%d, v%d, 4, v%d" % (vT + 1, vT + 2, vT + 1))
    k("v_lshrrev_b32 v%d, 5, v0" % (vT + 2))
    k("v_lshl_add_u32 v%d, v%d, 8, v%d" % (vSt, vT + 2, vT + 1))
    k("v_lshlrev_b32 v%d, 6, v%d" % (vCs, vT + 2))
    k("v_add_u32 v%d, %d, v%d" % (vCs, CSI, vCs))

    def wread(g):
        b, ks = divmod(g, 36)
        return "ds_read_b128 %s, v%d offset:%d" % (vr(WF + 4 * (g % NWF), 4), vA + (b % 4), ks * 1024)
    def epilogue(b):
        o = []
        for t in range(2):
            a = ACC + ((b & 1) * 2 + t) * 16; e = E + 24 * t
            for r in range(8): o.append("v_fma_f32 v%d, -v%d, v%d, v%d" % (e + r, MEAN + t, CS + r, a + r))
            for r in range(8): o.append("v_mul_f32 v%d, v%d, v%d" % (e + r, C1 + t, e + r))
            for r in range(8): o.append("v_exp_f32 v%d, v%d" % (e + r, e + r))
            for r in range(8): o.append("v_fma_f32 v%d, -v%d, v%d, v%d" % (e + 8 + r, MEAN + t, CS + 8 + r, a + 8 + r))
            for r in range(8): o.append("v_add_f32 v%d, 1.0, v%d" % (e + r, e + r))
            for r in range(8): o.append("v_rcp_f32 v%d, v%d" % (e + r, e + r))
            for r in range(8): o.append("v_mul_f32 v%d, v%d, v%d" % (e + 8 + r, RSTD + t, e + 8 + r))
            for r in range(8): o.append("v_mul_f32 v%d, v%d, v%d" % (e + r, e + r, e + 8 + r))
            for i in range(4): o.append("v_cvt_pk_bf16_f32 v%d, v%d, v%d" % (e + 16 + i, e + 2 * i, e + 2 * i + 1))
            def st(t=t, e=e):
                k("s_add_u32 s%d, s%d, %d" % (sT1, sHH, b * 512 + t * 294912))
                vm.op("S", "buffer_store_dwordx4 %s, v%d, %s, s%d offen" % (vr(e + 16, 4), vSt, R, sT1))
            o.append(st)
        return o
    PF = 4
    vm.wait("W0")
    k("s_waitcnt lgkmcnt(0)")
    k("s_barrier")
    stamp(k, 2)
    for g in range(PF): k(wread(g))
    for b in range(9):
        fill = []
        if b >= 1:
            fill += epilogue(b - 1)
        if b == 0: dm = [wdma(1, j) for j in range(9)]
        elif b == 1: dm = [wdma(bb, j) for bb in (2, 3) for j in range(9)]
        elif b + 2 <= 8: dm = [wdma(b + 2, j) for j in range(9)]
        else: dm = []
        nfill = len(fill)
        fi = 0; di = 0
        for ks in range(36):
            g = b * 36 + ks
            gn = g + PF
            if gn < 324:
                if gn % 36 == 0:
                    vm.wait("W%d" % (gn // 36))
                    k("s_barrier")
                k(wread(gn))
                nout = PF
            else:
                nout = 323 - g
            extra = 4 if (b >= 1 and ks == 0) else 0
            if b >= 1 and ks == 0:
                for q in range(4): k("ds_read_b128 %s, v%d offset:%d" % (vr(CS + 4 * q, 4), vCs, (b - 1) * 128 + q * 16))
            if b == 0:
                if ks + HPF < 36: hload(ks + HPF)
                vm.wait("H%d" % ks)
            k("s_waitcnt lgkmcnt(%d)" % (nout + extra))
            for t in range(2):
                d = vr(ACC + ((b & 1) * 2 + t) * 16, 16)
                c = "0" if ks == 0 else d
                k("v_mfma_f32_32x32x16_bf16 %s, %s, %s, %s" % (d, vr(WF + 4 * (g % NWF), 4), hreg(t, ks), c))
                if ks >= 2 and fill:
                    want = min(nfill, ((ks - 2) * 2 + t + 1) * nfill // 60 + 1)
                    while fi < want:
                        f = fill[fi]; (f() if callable(f) else k(f)); fi += 1
            while dm and di < len(dm) and di < (ks + 1) * len(dm) // 28:
                dm[di](); di += 1
        assert fi == nfill and di == len(dm), (fi, nfill, di)
        if b == 0: stamp(k, 3)
        if b == 4: stamp(k, 4)
    stamp(k, 5)
    for q in range(4): k("ds_read_b128 %s, v%d offset:%d" % (vr(CS + 4 * q, 4), vCs, 8 * 128 + q * 16))
    k("s_nop 15")
    k("s_waitcnt lgkmcnt(0)")
    for f in epilogue(8): (f() if callable(f) else k(f))
    stamp(k, 6)
    if STAMPS: k("s_waitcnt vmcnt(0)")
    stamp(k, 7)
    stamp_out(k, 8, sWS, sw, 4, 3)
    k.label(".L_k4_end")
    k("s_endpgm")
    return k

def gen_k5():
    NWG = 256
    STG = 34816; NS = 4; HOFF = 0; WOFF = 16384
    k = Kern("k5_ffn2_kernel", NWG, 512, NS * STG, vgpr=256)
    sWS = 4
    sw, smt, sng, skq, sT0, sT1, sT2, sSrc, sM0 = 10, 11, 12, 13, 14, 15, 16, 17, 18
    vS, vA, vT = 1, 2, 8
    ACC = 16
    HF = 160
    WF = 192
    NWF = 15
    R = "s[%d:%d]" % (sWS, sWS + 3)
    k("s_cmp_ge_u32 s2, %d" % NWG)
    k("s_cbranch_scc1 .L_k5_end")
    stamp(k, 0)
    k("s_load_dwordx2 s[8:9], s[0:1], 72")
    k("v_lshrrev_b32 v1, 6, v0")
    k("v_and_b32 v0, 63, v0")
    k("v_readfirstlane_b32 s%d, v1" % sw)
    k("v_lshlrev_b32 v%d, 4, v0" % vS)
    k("s_and_b32 s%d, s2, 7" % sT0)
    k("s_lshr_b32 s%d, s2, 3" % sT1)
    k("s_and_b32 s%d, s%d, 1" % (smt, sT0))
    k("s_lshl_b32 s%d, s%d, 3" % (smt, smt))
    k("s_and_b32 s%d, s%d, 7" % (sT2, sT1))
    k("s_add_u32 s%d, s%d, s%d" % (smt, smt, sT2))
    k("s_lshr_b32 s%d, s%d, 1" % (skq, sT0))
    k("s_lshr_b32 s%d, s%d, 3" % (sng, sT1))
    k("s_waitcnt lgkmcnt(0)")
    make_srd(k, sWS, 8, 1 << 28)
    k("s_cmp_ge_u32 s%d, 4" % sw)
    k("s_cbranch_scc1 .L_k5_loader")
    k("s_and_b32 s%d, s%d, 1" % (sT0, sw))
    k("s_lshr_b32 s%d, s%d, 1" % (sT1, sw))
    k("s_lshl_b32 s%d, s%d, 12" % (sT0, sT0))
    k("s_lshl_b32 s%d, s%d, 13" % (sT2, sT1))
    k("s_add_u32 s%d, s%d, s%d" % (sT0, sT0, sT2))
    k("v_add_u32 v%d, s%d, v%d" % (vA, sT0, vS))
    k("v_add_u32 v%d, %d, v%d" % (vA + 1, 2 * STG, vA))
    k("s_mul_i32 s%d, s%d, 9216" % (sT1, sT1))
    k("s_add_u32 s%d, s%d, %d" % (sT1, sT1, WOFF))
    k("v_add_u32 v%d, s%d, v%d" % (vA + 2, sT1, vS))
    k("v_add_u32 v%d, %d, v%d" % (vA + 3, 2 * STG, vA + 2))
    for i in range(144): k("v_mov_b32 v%d, 0" % (ACC + i))
    def hread(st, t):
        sl = st % NS
        return "ds_read_b128 %s, v%d offset:%d" % (vr(HF + ((st & 1) * 4 + t) * 4, 4), vA + (sl >> 1), (sl & 1) * STG + t * 1024)
    def wread(st, u):
        sl = st % NS
        return "ds_read_b128 %s, v%d offset:%d" % (vr(WF + 4 * ((st * 9 + u) % NWF), 4), vA + 2 + (sl >> 1), (sl & 1) * STG + u * 1024)
    NST = 18
    k("s_barrier")
    stamp(k, 1)
    for t in range(4): k(hread(0, t))
    for u in range(6): k(wread(0, u))
    for st in range(NST):
        for u in range(9):
            nxt = []
            un = u + 6
            if un < 9: nxt.append(wread(st, un))
            elif st + 1 < NST:
                if un == 9:
                    nxt.append("BAR")
                    nxt += [hread(st + 1, t) for t in range(4)]
                nxt.append(wread(st + 1, un - 9))
            if st + 1 < NST: young = 5 + (4 if u >= 4 else 0)
            else: young = min(5, 8 - u)
            k("s_waitcnt lgkmcnt(%d)" % young)
            for t in range(4):
                d = vr(ACC + (t * 9 + u) * 4, 4)
                k("v_mfma_f32_16x16x32_bf16 %s, %s, %s, %s" % (d, vr(WF + 4 * ((st * 9 + u) % NWF), 4), vr(HF + ((st & 1) * 4 + t) * 4, 4), d))
                if t == 0:
                    for x in nxt:
                        if x == "BAR": k("s_barrier")
                        else: k(x)
        if st == 8: stamp(k, 2)
    stamp(k, 3)
    k("s_nop 15")
    k("s_barrier")
    k("s_and_b32 s%d, s%d, 1" % (sT0, sw))
    k("s_mul_i32 s%d, s%d, 36864" % (sT0, sT0))
    k("v_add_u32 v%d, s%d, v%d" % (vA, sT0, vS))
    k("s_cmp_lt_u32 s%d, 2" % sw)
    k("s_cbranch_scc1 .L_k5_red")
    for i in range(36): k("ds_write_b128 v%d, %s offset:%d" % (vA, vr(ACC + 4 * i, 4), i * 1024))
    k("s_waitcnt lgkmcnt(0)")
    k("s_barrier")
    k("s_branch .L_k5_fin")
    k.label(".L_k5_red")
    k("s_barrier")
    k("s_lshl_b32 s%d, s%d, 4" % (sT0, skq))
    k("s_add_u32 s%d, s%d, s%d" % (sT0, sT0, smt))
    k("s_lshl_b32 s%d, s%d, 2" % (sT0, sT0))
    k("s_add_u32 s%d, s%d, s%d" % (sT0, sT0, sng))
    k("s_lshl_b32 s%d, s%d, 1" % (sT0, sT0))
    k("s_add_u32 s%d, s%d, s%d" % (sT0, sT0, sw))
    k("s_mul_i32 s%d, s%d, 36864" % (sT0, sT0))
    k("s_add_u32 s%d, s%d, %d" % (sT0, sT0, L.PART))
    for c in range(3):
        for i in range(12): k("ds_read_b128 %s, v%d offset:%d" % (vr(HF + 4 * i, 4), vA, (c * 12 + i) * 1024))
        for i in range(12):
            k("s_waitcnt lgkmcnt(%d)" % (11 - i))
            a = ACC + 4 * (c * 12 + i)
            for r in range(4): k("v_add_f32 v%d, v%d, v%d" % (a + r, a + r, HF + 4 * i + r))
            if i % 4 == 0 and (c or i): k("s_add_u32 s%d, s%d, 4096" % (sT0, sT0))
            k("buffer_store_dwordx4 %s, v%d, %s, s%d offen offset:%d" % (vr(a, 4), vS, R, sT0, (i % 4) * 1024))
    k.label(".L_k5_fin")
    stamp(k, 4)
    if STAMPS: k("s_waitcnt vmcnt(0)")
    stamp(k, 5)
    stamp_out(k, 6, sWS, sw, 8, 4)
    k("s_endpgm")
    k.label(".L_k5_loader")
    k("s_and_b32 s%d, s%d, 1" % (sT0, sw))
    k("s_cmp_ge_u32 s%d, 6" % sw)
    k("s_cbranch_scc1 .L_k5_ldw")
    for which in ("h", "w"):
        if which == "w": k.label(".L_k5_ldw")
        n = 8 if which == "h" else 9
        if which == "h":
            k("s_mul_i32 s%d, s%d, %d" % (sSrc, smt, 8 * 144))
            k("s_mul_i32 s%d, s%d, 36" % (sT1, skq))
            k("s_add_u32 s%d, s%d, s%d" % (sSrc, sSrc, sT1))
            k("s_add_u32 s%d, s%d, s%d" % (sSrc, sSrc, sT0))
            k("s_lshl_b32 s%d, s%d, 10" % (sSrc, sSrc))
            k("s_add_u32 s%d, s%d, %d" % (sSrc, sSrc, L.HH))
            k("s_lshl_b32 s%d, s%d, 13" % (sM0, sT0))
            for t in range(8): k("v_add_u32 v%d, %d, v%d" % (vT + t, t * 147456 - (t % 4) * 1024, vS))
        else:
            k("s_mul_i32 s%d, s%d, 144" % (sSrc, sng))
            k("s_mul_i32 s%d, s%d, 36" % (sT1, skq))
            k("s_add_u32 s%d, s%d, s%d" % (sSrc, sSrc, sT1))
            k("s_add_u32 s%d, s%d, s%d" % (sSrc, sSrc, sT0))
            k("s_mul_i32 s%d, s%d, 9216" % (sSrc, sSrc))
            k("s_add_u32 s%d, s%d, %d" % (sSrc, sSrc, L.WDP))
            k("s_mul_i32 s%d, s%d, 9216" % (sM0, sT0))
            k("s_add_u32 s%d, s%d, %d" % (sM0, sM0, WOFF))
        def issue(st):
            for j in range(n):
                if j % 4 == 0:
                    k("s_add_u32 m0, s%d, %d" % (sM0, (st % NS) * STG + j * 1024))
                    if which == "h": k("s_add_u32 s%d, s%d, %d" % (sT1, sSrc, st * 2048))
                    else: k("s_add_u32 s%d, s%d, %d" % (sT1, sSrc, st * 18432 + j * 1024))
                va = vT + j if which == "h" else vS
                k("buffer_load_dwordx4 v%d, %s, s%d offen offset:%d lds" % (va, R, sT1, (j % 4) * 1024))
        for st in range(3): issue(st)
        issued = 3
        for st in range(NST):
            k("s_waitcnt vmcnt(%d)" % (n * (issued - 1 - st)))
            k("s_barrier")
            nx = st + 2 if st >= 2 else (3 if st == 0 else None)
            if nx is not None and nx < NST and nx >= issued:
                issue(nx); issued += 1
        k("s_barrier")
        k("s_barrier")
        k("s_endpgm")
    k.label(".L_k5_end")
    k("s_endpgm")
    return k

def gen_k6():
    NWG = 128
    k = Kern("k6_reduce_kernel", NWG, 256, 0, vgpr=200)
    sWS, sO = 4, 8
    sw, sT0, sT1, sT2 = 16, 17, 18, 19
    vS, vT = 1, 2
    P = 12; HB = 160
    R = "s[%d:%d]" % (sWS, sWS + 3)
    k("s_cmp_ge_u32 s2, %d" % NWG)
    k("s_cbranch_scc1 .L_k6_end")
    stamp(k, 0)
    k("s_load_dwordx2 s[12:13], s[0:1], 72")
    k("s_load_dwordx2 s[14:15], s[0:1], 56")
    k("v_lshrrev_b32 v1, 6, v0")
    k("v_and_b32 v0, 63, v0")
    k("v_readfirstlane_b32 s%d, v1" % sw)
    k("v_lshlrev_b32 v%d, 4, v0" % vS)
    k("s_lshr_b32 s%d, s2, 3" % sT0)
    k("s_lshl_b32 s%d, s%d, 2" % (sT0, sT0))
    k("s_add_u32 s%d, s%d, s%d" % (sT0, sT0, sw))
    k("s_lshl_b32 s%d, s%d, 3" % (sT0, sT0))
    k("s_and_b32 s%d, s2, 7" % sT1)
    k("s_add_u32 s%d, s%d, s%d" % (sT0, sT0, sT1))
    k("s_mul_i32 s%d, s%d, 9216" % (sT0, sT0))
    k("s_add_u32 s%d, s%d, %d" % (sT0, sT0, L.PART))
    k("v_and_b32 v%d, 15, v0" % vT)
    k("v_lshrrev_b32 v%d, 4, v0" % (vT + 1))
    k("v_and_b32 v%d, 1, v%d" % (vT + 2, vT + 1))
    k("v_lshlrev_b32 v%d, 9, v%d" % (vT + 2, vT + 2))
    k("v_lshl_add_u32 v%d, v%d, 4, v%d" % (vT + 2, vT, vT + 2))
    k("v_lshrrev_b32 v%d, 1, v%d" % (vT + 3, vT + 1))
    k("v_lshl_add_u32 v%d, v%d, 3, v%d" % (vT + 2, vT + 3, vT + 2))
    k("s_lshr_b32 s%d, s2, 1" % sT1)
    k("s_mul_i32 s%d, s%d, 36" % (sT1, sT1))
    k("s_mul_i32 s%d, s%d, 9" % (sT2, sw))
    k("s_add_u32 s%d, s%d, s%d" % (sT1, sT1, sT2))
    k("s_lshl_b32 s%d, s%d, 10" % (sT1, sT1))
    k("s_and_b32 s%d, s2, 1" % sT2)
    k("s_lshl_b32 s%d, s%d, 8" % (sT2, sT2))
    k("s_add_u32 s%d, s%d, s%d" % (sT1, sT1, sT2))
    k("s_add_u32 s%d, s%d, %d" % (sT1, sT1, L.HP))
    k("v_mul_u32_u24 v%d, 1152, v%d" % (vT + 3, vT))
    k("v_lshl_add_u32 v%d, v%d, 3, v%d" % (vT + 3, vT + 1, vT + 3))
    k("s_waitcnt lgkmcnt(0)")
    make_srd(k, sWS, 12, 1 << 28)
    make_srd(k, sO, 14, 2048 * 1152)
    for u in range(9):
        for q in range(4):
            k("s_add_u32 s%d, s%d, %d" % (sT2, sT0, q * 4718592 + u * 1024))
            k("buffer_load_dwordx4 %s, v%d, %s, s%d offen" % (vr(P + (u * 4 + q) * 4, 4), vS, R, sT2))
        k("s_add_u32 s%d, s%d, %d" % (sT2, sT1, u * 1024))
        k("buffer_load_dwordx2 %s, v%d, %s, s%d offen" % (vr(HB + 2 * u, 2), vT + 2, R, sT2))
    k("s_mul_i32 s%d, s2, 18432" % sT0)
    k("s_mul_i32 s%d, s%d, 288" % (sT1, sw))
    k("s_add_u32 s%d, s%d, s%d" % (sT0, sT0, sT1))
    for u in range(9):
        k("s_waitcnt vmcnt(%d)" % (5 * (8 - u) + u))
        a = P + u * 16
        for r in range(4):
            k("v_add_f32 v%d, v%d, v%d" % (a + r, a + r, a + 4 + r))
            k("v_add_f32 v%d, v%d, v%d" % (a + 8 + r, a + 8 + r, a + 12 + r))
            k("v_add_f32 v%d, v%d, v%d" % (a + r, a + r, a + 8 + r))
        k("v_cvt_pk_bf16_f32 v%d, v%d, v%d" % (a + 4, a, a + 1))
        k("v_cvt_pk_bf16_f32 v%d, v%d, v%d" % (a + 5, a + 2, a + 3))
        for i in range(2):
            k("v_lshlrev_b32 v%d, 16, v%d" % (a + 2 * i, a + 4 + i))
            k("v_and_b32 v%d, 0xffff0000, v%d" % (a + 2 * i + 1, a + 4 + i))
            k("v_lshlrev_b32 v%d, 16, v%d" % (a + 8, HB + 2 * u + i))
            k("v_and_b32 v%d, 0xffff0000, v%d" % (a + 9, HB + 2 * u + i))
            k("v_add_f32 v%d, v%d, v%d" % (a + 2 * i, a + 2 * i, a + 8))
            k("v_add_f32 v%d, v%d, v%d" % (a + 2 * i + 1, a + 2 * i + 1, a + 9))
        k("v_cvt_pk_bf16_f32 v%d, v%d, v%d" % (a + 4, a, a + 1))
        k("v_cvt_pk_bf16_f32 v%d, v%d, v%d" % (a + 5, a + 2, a + 3))
        k("buffer_store_dwordx2 %s, v%d, s[%d:%d], s%d offen offset:%d" % (vr(a + 4, 2), vT + 3, sO, sO + 3, sT0, u * 32))
    stamp(k, 1)
    if STAMPS: k("s_waitcnt vmcnt(0)")
    stamp(k, 2)
    stamp_out(k, 3, sWS, sw, 4, 5)
    k.label(".L_k6_end")
    k("s_endpgm")
    return k

def build(kernels):
    hdr = open("cdna_kernels/%s.s.ref" % NAME).read().split("; Override launch")[0]
    o = hdr
    for k in kernels:
        o += "; @launch kernel=%s grid=(%d,1,1) block=(%d,1,1) lds=%d\n" % (k.name, k.grid, k.block, k.lds)
    o += '.amdgcn_target "amdgcn-amd-amdhsa--gfx950"\n.text\n'
    seen = set()
    for k in kernels:
        if k.name in seen: continue
        seen.add(k.name); o += k.text()
    o += '.section .rodata,"a"\n'
    seen = set()
    for k in kernels:
        if k.name in seen: continue
        seen.add(k.name); o += k.desc()
    return o

if __name__ == "__main__":
    import os
    STAMPS = int(os.environ.get("STAMPS", "0"))
    ks = [gen_k0(), gen_k1(), gen_k2(), gen_k3(), gen_k4(), gen_k5(), gen_k6()]
    out = sys.argv[1] if len(sys.argv) > 1 else "out.s"
    open(out, "w").write(build(ks))
    print("wrote", out)
```

```python
MB = 1 << 20
QP = 65536
KP = 3 * MB
VP = 6 * MB
OP = 9 * MB
HP = 12 * MB
ST2 = 15 * MB
CS = 110 * MB
WGU = 16 * MB
HH = 28 * MB
PART = 48 * MB
FLAGS = 47 * MB
QSCALE = (18 ** -0.5) * 1.4426950408889634
DBG = 200 * MB
WOP = 100 * MB
WDP = 102 * MB
ST1 = 15 * MB + 262144
CS1 = 15 * MB + 327680
VPL = 9344
FPITCH = 4352
FLG = 118 * MB
FSP = 121 * MB
EPOCH = 122 * MB
```

```python
import layout as L

def emit_all(k, M):
    g = globals()
    for n in dir(M):
        if not n.startswith("__"): g[n] = getattr(M, n)
    s1(k)
    if STOP <= 1: return
    s2(k)
    if STOP <= 2: return
    s3(k)
    if STOP <= 3: return
    s4(k)
    if STOP <= 4: return
    s5(k)

def fin_epoch(k):
    k("s_waitcnt lgkmcnt(0)")
    k("s_add_u32 s%d, s%d, 16" % (sT, sT))
    k("s_and_b32 s%d, s%d, 0xfffffff0" % (sT, sT))

def s1(k):
    SLOT = 36864; WOFF = 16384; STA = 4 * SLOT; STB = STA + 512; CSL = STA + 1024
    smt, snt, sM0x, sM0w, sh = T[8], T[9], T[10], T[11], T[12]
    k("s_cmp_ge_u32 s%d, 6" % ssub)
    k("s_cbranch_scc1 .L_s1_pp")
    k("s_mul_i32 s%d, s%d, 3" % (snt, sq))
    k("s_lshr_b32 s%d, s%d, 1" % (T[0], ssub))
    k("s_add_u32 s%d, s%d, s%d" % (snt, snt, T[0]))
    k("s_lshl_b32 s%d, s%d, 1" % (smt, sg))
    k("s_and_b32 s%d, s%d, 1" % (T[0], ssub))
    k("s_add_u32 s%d, s%d, s%d" % (smt, smt, T[0]))
    k("s_and_b32 s%d, s%d, 3" % (sh, sw))
    k("s_lshl_b32 s%d, s%d, 12" % (sM0x, sh))
    def xaddr(vXa, vT):
        k("v_and_b32 v%d, 15, v0" % vT)
        k("v_lshrrev_b32 v%d, 4, v0" % (vT + 1))
        k("v_lshrrev_b32 v%d, 1, v%d" % (vT + 2, vT))
        k("v_xor_b32 v%d, v%d, v%d" % (vT + 2, vT + 2, vT + 1))
        k("v_lshlrev_b32 v%d, 7, v%d" % (vT + 3, vT))
        k("v_add_u32 v%d, s%d, v%d" % (vT + 3, sM0x, vT + 3))
        k("v_lshl_add_u32 v%d, v%d, 4, v%d" % (vXa + 0, vT + 2, vT + 3))
        k("v_xor_b32 v%d, 4, v%d" % (vT + 2, vT + 2))
        k("v_lshl_add_u32 v%d, v%d, 4, v%d" % (vXa + 2, vT + 2, vT + 3))
        k("v_add_u32 v%d, %d, v%d" % (vXa + 1, 2 * SLOT, vXa + 0))
        k("v_add_u32 v%d, %d, v%d" % (vXa + 3, 2 * SLOT, vXa + 2))
    k("s_cmp_lt_u32 s%d, 4" % sw)
    k("s_cbranch_scc1 .L_s1_comp")
    vXo, vWo, vT = 2, 6, 19
    make_srd(k, sA, P_X, 2048 * 1152)
    make_srd(k, sB, P_WQKV, 576 * 3456)
    k("s_lshl_b32 s%d, s%d, 7" % (T[0], smt))
    k("s_lshl_b32 s%d, s%d, 5" % (T[1], sh))
    k("s_add_u32 s%d, s%d, s%d" % (T[0], T[0], T[1]))
    k("v_lshrrev_b32 v%d, 3, v0" % vT)
    k("v_add_u32 v%d, s%d, v%d" % (vT, T[0], vT))
    k("v_mul_u32_u24 v%d, 1152, v%d" % (vT, vT))
    k("v_lshrrev_b32 v%d, 4, v0" % (vT + 1))
    k("v_and_b32 v%d, 7, v0" % (vT + 2))
    k("v_xor_b32 v%d, v%d, v%d" % (vT + 2, vT + 2, vT + 1))
    k("v_xor_b32 v%d, 4, v%d" % (vT + 3, vT + 2))
    for j in range(4):
        k("v_lshl_add_u32 v%d, v%d, 4, v%d" % (vXo + j, vT + 2 + (j & 1), vT))
        if j: k("v_add_u32 v%d, %d, v%d" % (vXo + j, j * 8 * 1152 - j * 1024, vXo + j))
    def dma_x(c):
        k("s_add_u32 m0, s%d, %d" % (sM0x, (c % 4) * SLOT))
        k("s_mov_b32 s%d, %d" % (T[0], c * 128))
        for j in range(4):
            k("buffer_load_dwordx4 v%d, %s, s%d offen offset:%d lds" % (vXo + j, RA, T[0], j * 1024))
    def dma_w(c):
        k("s_add_u32 m0, s%d, %d" % (sM0w, (c % 4) * SLOT))
        k("s_mov_b32 s%d, %d" % (T[1], c * 64 * 3456))
        for j in range(4):
            k("buffer_load_dwordx4 v%d, %s, s%d offen offset:%d lds" % (vWo + j, RB, T[1], j * 1024))
        k("s_add_u32 m0, s%d, %d" % (sM0w, (c % 4) * SLOT + 4096))
        k("s_nop 0")
        k("buffer_load_dwordx4 v%d, %s, s%d offen lds" % (vWo + 4, RB, T[1]))
    dma_x(0)
    k("s_mul_i32 s%d, s%d, %d" % (T[2], sh, 16 * 3456))
    k("s_mul_i32 s%d, s%d, 288" % (T[3], snt))
    k("s_add_u32 s%d, s%d, s%d" % (T[2], T[2], T[3]))
    k("s_mul_i32 s%d, s%d, 5120" % (sM0w, sh))
    k("s_add_u32 s%d, s%d, %d" % (sM0w, sM0w, WOFF))
    half_offsets(k, vWo, vT, 3456, "swap23", sbase=T[2])
    dma_w(0)
    dma_x(1); dma_w(1)
    stamp(k, 1)
    issued = 2
    for c in range(9):
        k("s_waitcnt vmcnt(%d)" % (9 * (issued - 1 - c)))
        k("s_barrier")
        while issued < 9 and issued <= c + 3:
            dma_x(issued); dma_w(issued); issued += 1
        if c == 6:
            lab = k.newlab()
            k("s_cmp_lg_u32 s%d, 4" % sw)
            k("s_cbranch_scc1 %s" % lab)
            fin_epoch(k)
            poll(k, req_spare, vt=30)
            k("v_lshlrev_b32 v%d, 3, v0" % vT)
            k("s_lshl_b32 s%d, s%d, 9" % (T[0], smt))
            k("s_add_u32 s%d, s%d, %d" % (T[0], T[0], L.ST1))
            k("buffer_load_dwordx2 v[40:41], v%d, %s, s%d offen%s" % (vT, R, T[0], SC))
            k("s_add_u32 s%d, s%d, 8192" % (T[0], T[0]))
            k("buffer_load_dwordx2 v[42:43], v%d, %s, s%d offen%s" % (vT, R, T[0], SC))
            k("s_mul_i32 s%d, s%d, 576" % (T[0], snt))
            k("s_add_u32 s%d, s%d, %d" % (T[0], T[0], L.CS1))
            k("v_min_u32 v%d, 560, v%d" % (vT + 1, vS))
            k("buffer_load_dwordx4 v[44:47], v%d, %s, s%d offen%s" % (vT + 1, R, T[0], SC))
            k("s_add_u32 s%d, s%d, 6912" % (T[0], T[0]))
            k("buffer_load_dwordx4 v[48:51], v%d, %s, s%d offen%s" % (vT + 1, R, T[0], SC))
            k("s_mov_b32 s%d, 1.0" % T[2])
            k("s_cmp_lt_u32 s%d, 4" % snt)
            k("s_cselect_b32 s%d, %s, s%d" % (T[2], hx(f32bits(L.QSCALE)), T[2]))
            k("v_add_u32 v%d, %d, v%d" % (vT, STA, vT))
            k("v_add_u32 v%d, %d, v%d" % (vT + 1, CSL, vT + 1))
            k("s_waitcnt vmcnt(0)")
            for i in range(4): k("v_mul_f32 v%d, s%d, v%d" % (40 + i, T[2], 40 + i))
            for i in range(4): k("v_add_f32 v%d, v%d, v%d" % (44 + i, 44 + i, 48 + i))
            k("ds_write_b64 v%d, v[40:41]" % vT)
            k("ds_write_b64 v%d, v[42:43] offset:512" % vT)
            k("ds_write_b128 v%d, v[44:47]" % (vT + 1))
            k("s_waitcnt lgkmcnt(0)")
            k.label(lab)
    k("s_barrier")
    k("s_cmp_lg_u32 s%d, 11" % snt)
    k("s_cbranch_scc1 .L_s1_done")
    k("s_cmp_lg_u32 s%d, 1" % sh)
    k("s_cbranch_scc1 .L_s1_done")
    for i in range(4): k("v_mov_b32 v%d, 0x3f803f80" % (40 + i))
    k("v_lshrrev_b32 v%d, 2, v0" % vT)
    k("v_mul_u32_u24 v%d, %d, v%d" % (vT, L.VPL, vT))
    k("v_and_b32 v%d, 3, v0" % (vT + 1))
    k("v_lshl_add_u32 v%d, v%d, 4, v%d" % (vT, vT + 1, vT))
    k("s_mul_i32 s%d, s%d, %d" % (T[0], smt, 16 * L.VPL))
    k("s_add_u32 s%d, s%d, %d" % (T[0], T[0], L.VP + 9216))
    k("buffer_store_dwordx4 v[40:43], v%d, %s, s%d offen%s" % (vT, R, T[0], SC))
    k("s_branch .L_s1_done")
    k.label(".L_s1_comp")
    vXa, vWa, vT = 2, 6, 8
    XF, WF, ACC, CSV, ST = 16, 32, 104, 176, 212
    if PF1:
        make_srd(k, sA, P_X, 2048 * 1152)
        make_srd(k, sB, P_WQKV, 576 * 3456)
        k("s_and_b32 s%d, s%d, 3" % (T[0], sg))
        k("s_mul_i32 s%d, s%d, 6" % (T[0], T[0]))
        k("s_add_u32 s%d, s%d, s%d" % (T[0], T[0], ssub))
        k("s_lshl_b32 s%d, s%d, 2" % (T[0], T[0]))
        k("s_add_u32 s%d, s%d, s%d" % (T[0], T[0], sw))
        k("s_mul_i32 s%d, s%d, %d" % (T[3], T[0], 6 * 3456))
        k("s_mul_i32 s%d, s%d, 864" % (T[2], sq))
        k("s_add_u32 s%d, s%d, s%d" % (T[3], T[3], T[2]))
        k("v_lshrrev_b32 v%d, 3, v0" % vT)
        k("v_min_u32 v%d, 5, v%d" % (vT, vT))
        k("v_mul_u32_u24 v%d, 3456, v%d" % (vT, vT))
        k("v_and_b32 v%d, 7, v0" % (vT + 1))
        k("v_lshlrev_b32 v%d, 7, v%d" % (vT + 1, vT + 1))
        k("v_min_u32 v%d, 860, v%d" % (vT + 1, vT + 1))
        k("v_add_u32 v%d, v%d, v%d" % (vT, vT, vT + 1))
        k("buffer_load_dword v%d, v%d, %s, s%d offen" % (CSV, vT, RB, T[3]))
        k("s_mul_i32 s%d, s%d, %d" % (T[1], T[0], 96 * 128))
        k("s_lshr_b32 s%d, s%d, 2" % (T[2], sg))
        k("s_mul_i32 s%d, s%d, %d" % (T[2], T[2], 1024 * 1152))
        k("s_add_u32 s%d, s%d, s%d" % (T[1], T[1], T[2]))
        k("v_lshlrev_b32 v%d, 7, v0" % (vT + 2))
        k("buffer_load_dword v%d, v%d, %s, s%d offen" % (CSV + 1, vT + 2, RA, T[1]))
        k("v_and_b32 v%d, 31, v0" % (vT + 3))
        k("v_lshlrev_b32 v%d, 7, v%d" % (vT + 3, vT + 3))
        k("s_add_u32 s%d, s%d, 8192" % (T[1], T[1]))
        k("buffer_load_dword v%d, v%d, %s, s%d offen" % (CSV + 2, vT + 3, RA, T[1]))
    xaddr(vXa, vT)
    tr_addr(k, vWa, vT, 5120)
    k("v_add_u32 v%d, %d, v%d" % (vWa, WOFF, vWa))
    k("v_add_u32 v%d, %d, v%d" % (vWa + 1, 2 * SLOT, vWa))
    def reads(s):
        c, ksl, buf = s // 2, s & 1, s & 1
        sl = c % 4; hi = sl >> 1; so = (sl & 1) * SLOT
        out = []
        for t in range(2):
            out.append("ds_read_b128 %s, v%d offset:%d" % (vr(XF + (buf * 2 + t) * 4, 4), vXa + ksl * 2 + hi, so + t * 2048))
        for u in range(9):
            for h in range(2):
                out.append("ds_read_b64_tr_b16 %s, v%d offset:%d" % (vr(WF + (buf * 9 + u) * 4 + 2 * h, 2), vWa + hi,
                           so + ksl * 10240 + h * 2304 + u * 32))
        return out
    k("s_cmp_ge_u32 s%d, 8" % snt)
    k("s_cbranch_scc1 .L_s1_v")
    for ori in ("qk", "v"):
        if ori == "v": k.label(".L_s1_v")
        k("s_barrier")
        stamp(k, 1)
        for r in reads(0): k(r)
        for s in range(18):
            buf = s & 1
            k("s_waitcnt lgkmcnt(0)")
            rd = []
            if s + 1 < 18:
                if (s + 1) % 2 == 0: k("s_barrier")
                rd = reads(s + 1)
            i = 0
            for u in range(9):
                for t in range(2):
                    a, b = vr(WF + (buf * 9 + u) * 4, 4), vr(XF + (buf * 2 + t) * 4, 4)
                    if ori == "v": a, b = b, a
                    d = vr(ACC + (t * 9 + u) * 4, 4)
                    k("v_mfma_f32_16x16x32_bf16 %s, %s, %s, %s" % (d, a, b, "0" if s == 0 else d))
                    for _ in range(2 if i < 2 else 1):
                        if rd: k(rd.pop(0))
                    i += 1
        stamp(k, 2)
        k("s_waitcnt vmcnt(0)")
        k("v_and_b32 v%d, 15, v0" % vT)
        k("v_lshrrev_b32 v%d, 4, v0" % (vT + 1))
        k("s_lshl_b32 s%d, s%d, 7" % (T[0], sw))
        k("s_add_u32 s%d, s%d, %d" % (T[0], T[0], STA))
        if ori == "qk":
            k("v_lshlrev_b32 v%d, 2, v%d" % (vT + 2, vT))
            k("v_add_u32 v%d, s%d, v%d" % (vT + 2, T[0], vT + 2))
            k("v_lshlrev_b32 v%d, 4, v%d" % (vT + 3, vT + 1))
            k("v_add_u32 v%d, %d, v%d" % (vT + 3, CSL, vT + 3))
            k("s_and_b32 s%d, s%d, 3" % (T[0], snt))
            k("s_mul_i32 s%d, s%d, 18" % (T[0], T[0]))
            k("s_lshl_b32 s%d, s%d, 2" % (T[1], smt))
            k("s_add_u32 s%d, s%d, s%d" % (T[1], T[1], sw))
            k("s_mul_i32 s%d, s%d, 72" % (T[1], T[1]))
            k("s_add_u32 s%d, s%d, s%d" % (T[0], T[0], T[1]))
            k("s_lshl_b32 s%d, s%d, 9" % (T[0], T[0]))
            k("s_mov_b32 s%d, %d" % (T[1], L.QP))
            k("s_cmp_lt_u32 s%d, 4" % snt)
            k("s_cselect_b32 s%d, s%d, %d" % (T[1], T[1], L.KP))
            k("s_add_u32 s%d, s%d, s%d" % (T[0], T[0], T[1]))
            k("s_barrier")
            for t in range(2):
                k("ds_read_b32 v%d, v%d offset:%d" % (ST + 2 * t, vT + 2, t * 64))
                k("ds_read_b32 v%d, v%d offset:%d" % (ST + 2 * t + 1, vT + 2, 512 + t * 64))
            for u in range(9): k("ds_read_b128 %s, v%d offset:%d" % (vr(CSV + 4 * u, 4), vT + 3, u * 64))
            for u in range(9):
                k("s_waitcnt lgkmcnt(%d)" % (8 - u))
                e = WF + 4 * u
                for t in range(2):
                    a = ACC + (t * 9 + u) * 4; ab = vr(ST + 2 * t, 2)
                    for p in range(2):
                        k("v_pk_mul_f32 %s, %s, %s op_sel_hi:[1,0]" % (vr(a + 2 * p, 2), vr(a + 2 * p, 2), ab))
                    for p in range(2):
                        k("v_pk_fma_f32 %s, %s, %s, %s op_sel:[0,1,0]" % (vr(a + 2 * p, 2), vr(CSV + 4 * u + 2 * p, 2), ab, vr(a + 2 * p, 2)))
                for t in range(2):
                    a = ACC + (t * 9 + u) * 4
                    for p in range(2): k("v_cvt_pk_bf16_f32 v%d, v%d, v%d" % (e + 2 * t + p, a + 2 * p, a + 2 * p + 1))
                k("s_nop 1")
                k("v_permlane16_swap_b32 v%d, v%d" % (e, e + 2))
                k("v_permlane16_swap_b32 v%d, v%d" % (e + 1, e + 3))
                if u and u % 4 == 0: k("s_add_u32 s%d, s%d, 4096" % (T[0], T[0]))
                k("s_nop 0")
                k("buffer_store_dwordx4 %s, v%d, %s, s%d offen offset:%d%s" % (vr(e, 4), vS, R, T[0], (u % 4) * 1024, SC))
            k("s_branch .L_s1_done")
        else:
            k("v_lshlrev_b32 v%d, 4, v%d" % (vT + 2, vT + 1))
            k("v_add_u32 v%d, s%d, v%d" % (vT + 2, T[0], vT + 2))
            k("v_lshlrev_b32 v%d, 2, v%d" % (vT + 3, vT))
            k("v_add_u32 v%d, %d, v%d" % (vT + 3, CSL, vT + 3))
            k("s_and_b32 s%d, s%d, 3" % (T[0], snt))
            k("s_mul_i32 s%d, s%d, 2304" % (T[0], T[0]))
            k("s_lshl_b32 s%d, s%d, 2" % (T[1], smt))
            k("s_add_u32 s%d, s%d, s%d" % (T[1], T[1], sw))
            k("s_mul_i32 s%d, s%d, %d" % (T[1], T[1], 4 * L.VPL))
            k("s_add_u32 s%d, s%d, s%d" % (T[0], T[0], T[1]))
            k("s_add_u32 s%d, s%d, %d" % (T[0], T[0], L.VP))
            k("v_mul_u32_u24 v%d, %d, v%d" % (vT + 4, L.VPL, vT + 1))
            k("v_lshl_add_u32 v%d, v%d, 4, v%d" % (vT + 4, vT, vT + 4))
            k("s_barrier")
            for t in range(2):
                k("ds_read_b128 %s, v%d offset:%d" % (vr(ST + 8 * t, 4), vT + 2, t * 64))
                k("ds_read_b128 %s, v%d offset:%d" % (vr(ST + 8 * t + 4, 4), vT + 2, 512 + t * 64))
            for u in range(9): k("ds_read_b32 v%d, v%d offset:%d" % (CSV + 2 * u, vT + 3, u * 64))
            for u in range(9):
                k("s_waitcnt lgkmcnt(%d)" % (8 - u))
                e = WF + 4 * u
                for t in range(2):
                    a = ACC + (t * 9 + u) * 4
                    for p in range(2):
                        k("v_pk_mul_f32 %s, %s, %s" % (vr(a + 2 * p, 2), vr(a + 2 * p, 2), vr(ST + 8 * t + 2 * p, 2)))
                    for p in range(2):
                        k("v_pk_fma_f32 %s, %s, %s, %s op_sel_hi:[0,1,1]" % (vr(a + 2 * p, 2), vr(CSV + 2 * u, 2), vr(ST + 8 * t + 4 + 2 * p, 2), vr(a + 2 * p, 2)))
                for t in range(2):
                    a = ACC + (t * 9 + u) * 4
                    for p in range(2): k("v_cvt_pk_bf16_f32 v%d, v%d, v%d" % (e + 2 * t + p, a + 2 * p, a + 2 * p + 1))
                k("s_nop 1")
                k("v_permlane32_swap_b32 v%d, v%d" % (e, e + 2))
                k("v_permlane32_swap_b32 v%d, v%d" % (e + 1, e + 3))
                k("s_nop 1")
                k("buffer_store_dwordx4 %s, v%d, %s, s%d offen offset:%d%s" % (vr(e, 4), vT + 4, R, T[0], u * 256, SC))
            k("s_branch .L_s1_done")
    k.label(".L_s1_pp")
    s1_prepack(k)
    k.label(".L_s1_done")
    lab = k.newlab()
    k("s_cmp_eq_u32 s%d, 4" % sw)
    k("s_cbranch_scc1 %s" % lab)
    fin_epoch(k)
    k.label(lab)
    stamp(k, 3)
    signal(k, 1, spare=True)
    stamp(k, 4)
    lab = k.newlab()
    k("s_cmp_lt_u32 s%d, 6" % ssub)
    k("s_cbranch_scc1 %s" % lab)
    k("s_cmp_lg_u32 s%d, 0" % sw)
    k("s_cbranch_scc1 %s" % lab)
    poll(k, req_spare, vt=30)
    k.label(lab)
    if WARM: warm(k)

def l2_prefetch(k, srd, soff, nlines_total, part, nparts_log2, pitch_expr, vT, vdst):
    pass

def s1_prepack(k):
    SL = 10240; HF_ = 5120; RED = 2 * SL
    sp, sM0, sS1, sD, sid = T[8], T[9], T[11], T[12], T[13]
    vO2, vA, vT = 7, 12, 16
    F = 28; X = 64; AC = 100
    k("s_lshl_b32 s%d, s%d, 2" % (sp, sg))
    k("s_add_u32 s%d, s%d, s%d" % (sp, sp, sq))
    k("s_lshl_b32 s%d, s%d, 1" % (sp, sp))
    k("s_and_b32 s%d, s%d, 1" % (T[0], ssub))
    k("s_add_u32 s%d, s%d, s%d" % (sp, sp, T[0]))
    k("v_lshrrev_b32 v%d, 3, v0" % vT)
    k("v_and_b32 v%d, 7, v0" % (vT + 1))
    k("v_lshlrev_b32 v%d, 4, v%d" % (vT + 1, vT + 1))
    k("s_cmp_ge_u32 s%d, 4" % sw)
    k("s_cbranch_scc1 .L_pp_cs")
    make_srd(k, sA, P_X, 2048 * 1152)
    k("v_mul_u32_u24 v%d, 1152, v%d" % (vT + 2, vT))
    k("v_add_u32 v%d, v%d, v%d" % (vT + 2, vT + 2, vT + 1))
    k("s_lshl_b32 s%d, s%d, 2" % (T[1], sp))
    k("s_add_u32 s%d, s%d, s%d" % (T[1], T[1], sw))
    k("s_mul_i32 s%d, s%d, %d" % (T[2], T[1], 8 * 1152))
    for j in range(9): k("buffer_load_dwordx4 %s, v%d, %s, s%d offen offset:%d" % (vr(X + 4 * j, 4), vT + 2, RA, T[2], j * 128))
    k("s_lshl_b32 s%d, s%d, 6" % (sid, sw))
    k("s_add_u32 s%d, s%d, s%d" % (sid, sid, sp))
    k("s_cmp_ge_u32 s%d, 72" % sid)
    k("s_cbranch_scc1 .L_pp_st")
    k("s_mul_i32 s%d, s%d, %d" % (sM0, sw, SL))
    make_srd(k, sB, P_WO, 576 * 1152)
    k("s_and_b32 s%d, s%d, 3" % (T[4], sid))
    k("s_lshr_b32 s%d, s%d, 2" % (T[5], sid))
    k("s_cmp_ge_u32 s%d, 16" % T[5])
    k("s_cbranch_scc1 .L_pp_wol")
    half_offsets(k, vO2, vT + 4, 1152, "nat")
    k("s_mul_i32 s%d, s%d, %d" % (sS1, T[5], 36 * 1152))
    k("s_mov_b32 s%d, %d" % (T[6], 18 * 1152))
    k("s_branch .L_pp_wo2")
    k.label(".L_pp_wol")
    half_offsets(k, vO2, vT + 4, 1152, "leftover")
    k("s_sub_u32 s%d, s%d, 16" % (sS1, T[5]))
    k("s_mul_i32 s%d, s%d, %d" % (sS1, sS1, 16 * 18 * 1152))
    k("s_mov_b32 s%d, %d" % (T[6], 8 * 18 * 1152))
    k.label(".L_pp_wo2")
    k("s_mul_i32 s%d, s%d, 288" % (T[3], T[4]))
    k("s_add_u32 s%d, s%d, s%d" % (sS1, sS1, T[3]))
    for hlf in range(2):
        if hlf: k("s_add_u32 s%d, s%d, s%d" % (sS1, sS1, T[6]))
        k("s_add_u32 m0, s%d, %d" % (sM0, hlf * HF_))
        k("s_nop 0")
        for j in range(4):
            k("buffer_load_dwordx4 v%d, %s, s%d offen offset:%d lds" % (vO2 + j, RB, sS1, j * 1024))
        k("s_add_u32 m0, s%d, %d" % (sM0, hlf * HF_ + 4096))
        k("s_nop 0")
        k("buffer_load_dwordx4 v%d, %s, s%d offen lds" % (vO2 + 4, RB, sS1))
    k.label(".L_pp_st")
    stamp(k, 1)
    for i in range(4): k("v_mov_b32 v%d, 0" % (AC + i))
    k("s_waitcnt vmcnt(0)")
    for i in range(36):
        a0, a1 = AC + 4 + 2 * (i & 1), AC + 5 + 2 * (i & 1)
        k("v_lshlrev_b32 v%d, 16, v%d" % (a0, X + i))
        k("v_and_b32 v%d, 0xffff0000, v%d" % (a1, X + i))
        k("v_add_f32 v%d, v%d, v%d" % (AC, AC, a0))
        k("v_add_f32 v%d, v%d, v%d" % (AC + 1, AC + 1, a1))
        k("v_fmac_f32 v%d, v%d, v%d" % (AC + 2, a0, a0))
        k("v_fmac_f32 v%d, v%d, v%d" % (AC + 3, a1, a1))
    k("v_add_f32 v%d, v%d, v%d" % (AC, AC, AC + 1))
    k("v_add_f32 v%d, v%d, v%d" % (AC + 2, AC + 2, AC + 3))
    for dpp in ("quad_perm:[1,0,3,2]", "quad_perm:[2,3,0,1]", "row_half_mirror"):
        k("s_nop 1")
        k("v_add_f32_dpp v%d, v%d, v%d %s row_mask:0xf bank_mask:0xf" % (AC + 1, AC, AC, dpp))
        k("v_add_f32_dpp v%d, v%d, v%d %s row_mask:0xf bank_mask:0xf" % (AC + 3, AC + 2, AC + 2, dpp))
        k("v_mov_b32 v%d, v%d" % (AC, AC + 1))
        k("v_mov_b32 v%d, v%d" % (AC + 2, AC + 3))
    ln_stats(k, AC, AC + 2, AC + 4, AC + 5, AC + 6)
    k("v_mul_f32 v%d, -v%d, v%d" % (AC + 4, AC + 4, AC + 5))
    k("v_lshlrev_b32 v%d, 2, v%d" % (vT + 2, vT))
    k("s_lshl_b32 s%d, s%d, 5" % (T[2], T[1]))
    k("s_add_u32 s%d, s%d, %d" % (T[2], T[2], L.ST1))
    k("s_mov_b32 exec_lo, 0x01010101")
    k("s_mov_b32 exec_hi, 0x01010101")
    k("buffer_store_dword v%d, v%d, %s, s%d offen%s" % (AC + 5, vT + 2, R, T[2], SC))
    k("s_add_u32 s%d, s%d, 8192" % (T[2], T[2]))
    k("buffer_store_dword v%d, v%d, %s, s%d offen%s" % (AC + 4, vT + 2, R, T[2], SC))
    k("s_mov_b64 exec, -1")
    k("s_cmp_ge_u32 s%d, 72" % sid)
    k("s_cbranch_scc1 .L_pp_bar")
    tr_addr(k, vA, vT + 4, HF_)
    k("v_add_u32 v%d, s%d, v%d" % (vA, sM0, vA))
    k("s_mul_i32 s%d, s%d, %d" % (sD, T[4], 9 * 18))
    k("s_add_u32 s%d, s%d, s%d" % (sD, sD, T[5]))
    k("s_lshl_b32 s%d, s%d, 10" % (sD, sD))
    k("s_add_u32 s%d, s%d, %d" % (sD, sD, L.WOP))
    for u in range(9):
        for h in range(2):
            k("ds_read_b64_tr_b16 %s, v%d offset:%d" % (vr(F + 4 * u + 2 * h, 2), vA, h * 2304 + u * 32))
    k("s_waitcnt lgkmcnt(0)")
    for u in range(9):
        k("buffer_store_dwordx4 %s, v%d, %s, s%d offen%s" % (vr(F + 4 * u, 4), vS, R, sD, SC))
        k("s_add_u32 s%d, s%d, 18432" % (sD, sD))
    k("s_branch .L_pp_bar")
    k.label(".L_pp_cs")
    make_srd(k, sB, P_WQKV, 576 * 3456)
    k("v_mul_u32_u24 v%d, 3456, v%d" % (vT + 2, vT))
    k("v_add_u32 v%d, v%d, v%d" % (vT + 2, vT + 2, vT + 1))
    k("s_lshl_b32 s%d, s%d, 2" % (T[1], T[0]))
    k("s_add_u32 s%d, s%d, s%d" % (T[1], T[1], sw))
    k("s_sub_u32 s%d, s%d, 4" % (T[1], T[1]))
    k("s_mul_i32 s%d, s%d, %d" % (T[2], T[1], 72 * 3456))
    k("s_lshr_b32 s%d, s%d, 1" % (T[3], sp))
    k("s_lshl_b32 s%d, s%d, 7" % (T[4], T[3]))
    k("s_add_u32 s%d, s%d, s%d" % (T[2], T[2], T[4]))
    k("s_cmp_ge_u32 s%d, 54" % sp)
    k("s_cselect_b32 s%d, 0x7f000000, s%d" % (T[2], T[2]))
    for j in range(9):
        k("buffer_load_dwordx4 %s, v%d, %s, s%d offen" % (vr(X + 4 * j, 4), vT + 2, RB, T[2]))
        k("s_add_u32 s%d, s%d, %d" % (T[2], T[2], 8 * 3456))
    stamp(k, 1)
    for i in range(8): k("v_mov_b32 v%d, 0" % (AC + i))
    for j in range(9):
        k("s_waitcnt vmcnt(%d)" % (8 - j))
        for i in range(4):
            k("v_lshlrev_b32 v%d, 16, v%d" % (AC + 8 + 2 * i, X + 4 * j + i))
            k("v_and_b32 v%d, 0xffff0000, v%d" % (AC + 9 + 2 * i, X + 4 * j + i))
        for i in range(8): k("v_add_f32 v%d, v%d, v%d" % (AC + i, AC + i, AC + 8 + i))
    k("s_lshl_b32 s%d, s%d, 11" % (T[4], sw))
    k("s_add_u32 s%d, s%d, %d" % (T[4], T[4], RED - 4 * 2048))
    k("v_lshlrev_b32 v%d, 5, v0" % (vT + 2))
    k("v_add_u32 v%d, s%d, v%d" % (vT + 2, T[4], vT + 2))
    k("ds_write_b128 v%d, %s" % (vT + 2, vr(AC, 4)))
    k("ds_write_b128 v%d, %s offset:16" % (vT + 2, vr(AC + 4, 4)))
    k("s_waitcnt lgkmcnt(0)")
    k.label(".L_pp_bar")
    k("s_barrier")
    k("s_cmp_lg_u32 s%d, 4" % sw)
    k("s_cbranch_scc1 .L_pp_warm")
    k("v_lshlrev_b32 v%d, 2, v0" % (vT + 2))
    k("v_add_u32 v%d, %d, v%d" % (vT + 3, RED, vT + 2))
    for i in range(32): k("ds_read_b32 v%d, v%d offset:%d" % (X + i, vT + 3, i * 256))
    k("s_waitcnt lgkmcnt(0)")
    for st in (16, 8, 4, 2, 1):
        for i in range(st): k("v_add_f32 v%d, v%d, v%d" % (X + i, X + i, X + i + st))
    k("s_mul_i32 s%d, s%d, 6912" % (T[2], T[0]))
    k("s_lshl_b32 s%d, s%d, 8" % (T[4], T[3]))
    k("s_add_u32 s%d, s%d, s%d" % (T[2], T[2], T[4]))
    k("s_add_u32 s%d, s%d, %d" % (T[2], T[2], L.CS1))
    k("s_cmp_ge_u32 s%d, 54" % sp)
    k("s_cselect_b32 s%d, 0x7f000000, s%d" % (T[2], T[2]))
    k("buffer_store_dword v%d, v%d, %s, s%d offen%s" % (X, vT + 2, R, T[2], SC))
    k.label(".L_pp_warm")

def warm(k):
    vT, F = 16, 200
    lab = k.newlab()
    k("s_cmp_lt_u32 s%d, 6" % ssub)
    k("s_cbranch_scc1 %s" % lab)
    make_srd(k, sA, P_G, 576 * 9216)
    make_srd(k, sB, P_U, 576 * 9216)
    k("s_lshl_b32 s%d, s%d, 1" % (T[1], sg))
    k("s_and_b32 s%d, s%d, 1" % (T[0], ssub))
    k("s_add_u32 s%d, s%d, s%d" % (T[1], T[1], T[0]))
    k("s_lshl_b32 s%d, s%d, 3" % (T[1], T[1]))
    k("s_add_u32 s%d, s%d, s%d" % (T[1], T[1], sw))
    k("s_mul_i32 s%d, s%d, 81" % (T[4], T[1]))
    k("s_mul_i32 s%d, s%d, 2304" % (T[2], sq))
    for j in range(2):
        k("v_add_u32 v%d, %d, v0" % (vT, 64 * j))
        k("v_min_u32 v%d, 80, v%d" % (vT, vT))
        k("v_add_u32 v%d, s%d, v%d" % (vT, T[4], vT))
        k("v_lshlrev_b32 v%d, 7, v%d" % (vT + 8 + j, vT))
        k("v_mul_u32_u24 v%d, 58255, v%d" % (vT + 1, vT))
        k("v_lshrrev_b32 v%d, 20, v%d" % (vT + 1, vT + 1))
        k("v_mul_u32_u24 v%d, %d, v%d" % (vT + 1, 9216 - 2304, vT + 1))
        k("v_add_u32 v%d, v%d, v%d" % (vT + 4 + j, vT + 8 + j, vT + 1))
        if j == 1: k("s_mov_b64 exec, 0x1ffff")
        k("buffer_load_dword v%d, v%d, %s, s%d offen" % (F + 2 * j, vT + 4 + j, RA, T[2]))
        k("buffer_load_dword v%d, v%d, %s, s%d offen" % (F + 2 * j + 1, vT + 4 + j, RB, T[2]))
    k("s_mov_b64 exec, -1")
    make_srd(k, sA, P_D, 4608 * 1152)
    k("s_mul_i32 s%d, s%d, %d" % (T[3], sq, 1152 * 1152))
    k("buffer_load_dword v%d, v%d, %s, s%d offen" % (F + 8, vT + 8, RA, T[3]))
    k("s_mov_b64 exec, 0x1ffff")
    k("buffer_load_dword v%d, v%d, %s, s%d offen" % (F + 9, vT + 9, RA, T[3]))
    k("s_mov_b64 exec, -1")
    k.label(lab)

def s2(k):
    KI, VI, QI = 0, 24576, 45056
    shd, sqb, sgp = si, T[8], T[9]
    sC = 80
    S = 16; KV = 160; O = 232; Q_ = 248
    vKa, vKb, vVa, vT, vM = 2, 3, 4, 6, 14
    NEG = hx(f32bits(-1e30))
    k("s_lshl_b32 s%d, s%d, 3" % (sqb, sg))
    k("s_add_u32 s%d, s%d, s%d" % (sqb, sqb, sw))
    k("s_mul_i32 s%d, s%d, 9" % (T[4], shd))
    k("s_lshr_b32 s%d, s%d, 2" % (T[4], T[4]))
    k("s_lshl_b32 s%d, s%d, 9" % (T[4], T[4]))
    k("s_mul_i32 s%d, s%d, %d" % (T[5], sg, 8 * 36864))
    k("s_add_u32 s%d, s%d, s%d" % (T[4], T[4], T[5]))
    k("s_add_u32 s%d, s%d, %d" % (T[5], T[4], L.QP))
    k("s_add_u32 s%d, s%d, %d" % (T[4], T[4], L.KP - 8 * 36864))
    k("s_mul_i32 s%d, s%d, %d" % (T[6], sg, 32 * L.VPL))
    k("s_add_u32 s%d, s%d, %d" % (T[6], T[6], L.VP - 32 * L.VPL))
    k("s_mul_i32 s%d, s%d, 288" % (T[12], shd))
    k("s_lshl_b32 s%d, s%d, 6" % (T[7], sw))
    k("v_add_u32 v%d, s%d, v0" % (vT, T[7]))
    OFF = KV
    k("v_mov_b32 v%d, 0x7ff00000" % (vT + 4))
    k("s_cmp_eq_u32 s%d, 0" % sg)
    k("s_cselect_b32 s%d, 768, 0" % T[10])
    k("s_cselect_b32 s%d, 640, 0" % T[11])
    for i in range(3):
        k("v_add_u32 v%d, %d, v%d" % (vT + 1, 512 * i, vT))
        k("v_mul_u32_u24 v%d, 43691, v%d" % (vT + 2, vT + 1))
        k("v_lshrrev_b32 v%d, 22, v%d" % (vT + 2, vT + 2))
        k("v_mul_u32_u24 v%d, %d, v%d" % (vT + 3, 36864 - 1536, vT + 2))
        k("v_lshl_add_u32 v%d, v%d, 4, v%d" % (OFF + 6 + i, vT + 1, vT + 3))
        k("v_mul_u32_u24 v%d, 3277, v%d" % (vT + 2, vT + 1))
        k("v_lshrrev_b32 v%d, 16, v%d" % (vT + 2, vT + 2))
        k("v_mul_u32_u24 v%d, 20, v%d" % (vT + 3, vT + 2))
        k("v_sub_u32 v%d, v%d, v%d" % (vT + 3, vT + 1, vT + 3))
        k("v_cmp_gt_u32 vcc, 18, v%d" % (vT + 3))
        k("v_lshlrev_b32 v%d, 4, v%d" % (vT + 3, vT + 3))
        k("v_add_u32 v%d, s%d, v%d" % (vT + 3, T[12], vT + 3))
        k("v_mov_b32 v%d, 9216" % (vT + 5))
        k("v_cndmask_b32 v%d, v%d, v%d, vcc" % (vT + 3, vT + 5, vT + 3))
        k("v_mul_u32_u24 v%d, %d, v%d" % (vT + 2, L.VPL, vT + 2))
        k("v_add_u32 v%d, v%d, v%d" % (OFF + 3 + i, vT + 2, vT + 3))
        k("v_cmp_gt_u32 vcc, s%d, v%d" % (T[10], vT + 1))
        k("v_cmp_gt_u32 s[%d:%d], s%d, v%d" % (sC, sC + 1, T[11], vT + 1))
        k("s_nop 1")
        k("v_cndmask_b32 v%d, v%d, v%d, vcc" % (OFF + i, OFF + 6 + i, vT + 4))
        k("v_cndmask_b32 v%d, v%d, v%d, s[%d:%d]" % (OFF + 3 + i, OFF + 3 + i, vT + 4, sC, sC + 1))
    k("v_and_b32 v%d, 31, v0" % vT)
    k("v_lshrrev_b32 v%d, 5, v0" % (vT + 1))
    k("s_mul_i32 s%d, s%d, 1536" % (T[0], sw))
    k("v_add_u32 v%d, s%d, v%d" % (vKa + 16, T[0], vS))
    k("v_lshlrev_b32 v%d, 4, v%d" % (vT + 2, vT))
    k("v_add_u32 v%d, s%d, v%d" % (vKb + 16, T[0], vT + 2))
    k("v_add_u32 v%d, 1024, v%d" % (vKb + 16, vKb + 16))
    k("s_mul_i32 s%d, s%d, 1280" % (T[0], sw))
    k("v_mul_u32_u24 v%d, 320, v%d" % (vVa + 16, vT + 1))
    k("v_add3_u32 v%d, v%d, v%d, s%d" % (vVa + 16, vVa + 16, vT + 2, T[0]))
    k("s_sub_u32 s%d, s%d, 1" % (sgp, sg))
    k("s_max_i32 s%d, s%d, 0" % (sgp, sgp))
    k("s_lshl_b32 s%d, s%d, 10" % (T[7], sw))
    wait_flags(k, req_group(1, sgp, mask_qkv), vt=240)
    stamp(k, 5)
    def dma(img, i, voff, soff, wlim):
        lab = None
        if wlim < 8:
            lab = k.newlab()
            k("s_cmp_ge_u32 s%d, %d" % (sw, wlim))
            k("s_cbranch_scc1 %s" % lab)
        k("s_add_u32 m0, s%d, %d" % (T[7], img + i * 8192))
        k("s_nop 0")
        k("buffer_load_dwordx4 v%d, %s, s%d offen%s lds" % (voff, R, soff, SC))
        if lab: k.label(lab)
    dma(QI, 0, OFF + 6, T[5], 8); dma(QI, 1, OFF + 7, T[5], 4)
    for i in range(3): dma(KI, i, OFF + i, T[4], 8)
    for i in range(3): dma(VI, i, OFF + 3 + i, T[6], 8 if i < 2 else 4)
    for r in (vKa, vKb, vVa): k("v_mov_b32 v%d, v%d" % (r, r + 16))
    k("v_lshlrev_b32 v%d, 2, v%d" % (vT + 2, vT + 1))
    k("v_sub_u32 v%d, v%d, v%d" % (vT + 2, vT, vT + 2))
    k("v_mov_b32 v%d, %s" % (vT + 3, NEG))
    for half in range(2):
        for r8 in range(8):
            r = half * 8 + r8
            k("v_cmp_le_i32 s[%d:%d], %d, v%d" % (sC + 2 * r8, sC + 2 * r8 + 1, 8 * (r >> 2) + (r & 3), vT + 2))
        for r8 in range(8):
            r = half * 8 + r8
            k("v_cndmask_b32 v%d, v%d, 0, s[%d:%d]" % (S + 128 + r, vT + 3, sC + 2 * r8, sC + 2 * r8 + 1))
            k("v_cndmask_b32 v%d, 0, v%d, s[%d:%d]" % (S + r, vT + 3, sC + 2 * r8, sC + 2 * r8 + 1))
    for i in range(16): k("v_mov_b32 v%d, 0" % (O + i))
    k("s_lshl_b32 s%d, s%d, 1" % (T[0], shd))
    k("s_and_b32 s%d, s%d, 7" % (T[0], T[0]))
    k("v_lshlrev_b32 v%d, 3, v%d" % (vT + 4, vT + 1))
    k("v_subrev_u32 v%d, s%d, v%d" % (vT + 4, T[0], vT + 4))
    for p in range(8):
        k("v_add_u32 v%d, %d, v%d" % (vT + 5, (p >> 2) * 16 + (p & 3) * 2, vT + 4))
        k("v_cmp_gt_u32 s[%d:%d], 18, v%d" % (sC + 2 * p, sC + 2 * p + 1, vT + 5))
    k("s_waitcnt vmcnt(0)")
    k("s_barrier")
    stamp(k, 6)
    order = [8, 7, 6, 5, 4, 3, 2, 1, 0]
    k("ds_read_b128 %s, v%d offset:%d" % (vr(Q_, 4), vKa, QI))
    k("ds_read_b128 %s, v%d offset:%d" % (vr(Q_ + 4, 4), vKb, QI))
    def kread(j):
        k("ds_read_b128 %s, v%d offset:%d" % (vr(KV + 8 * j, 4), vKa, KI + j * 1536))
        k("ds_read_b128 %s, v%d offset:%d" % (vr(KV + 8 * j + 4, 4), vKb, KI + j * 1536))
    for j in order[:6]: kread(j)
    k("s_waitcnt lgkmcnt(12)")
    for p in range(8): k("v_cndmask_b32 v%d, 0, v%d, s[%d:%d]" % (Q_ + p, Q_ + p, sC + 2 * p, sC + 2 * p + 1))
    for n, j in enumerate(order):
        b = KV + 8 * j; sj = vr(S + 16 * j, 16)
        lab_inv = k.newlab(); lab_done = k.newlab()
        if n + 6 < 9:
            kread(order[n + 6]); k("s_waitcnt lgkmcnt(12)")
        else:
            k("s_waitcnt lgkmcnt(%d)" % (2 * (8 - n)))
        if j < 8:
            k("s_cmp_lt_u32 s%d, %d" % (sqb, 8 - j))
            k("s_cbranch_scc1 %s" % lab_inv)
        c = sj if j in (0, 8) else "0"
        k("v_mfma_f32_32x32x16_bf16 %s, %s, %s, %s" % (sj, vr(b, 4), vr(Q_, 4), c))
        k("v_mfma_f32_32x32x16_bf16 %s, %s, %s, %s" % (sj, vr(b + 4, 4), vr(Q_ + 4, 4), sj))
        if j < 8:
            k("s_branch %s" % lab_done)
            k.label(lab_inv)
            for r in range(16): k("v_mov_b32 v%d, v%d" % (S + 16 * j + r, vT + 3))
            k.label(lab_done)
    k("s_nop 7")
    for j in order:
        for ks in range(2):
            k("ds_read_b128 %s, v%d offset:%d" % (vr(KV + 8 * j + 4 * ks, 4), vVa, VI + j * 1280 + ks * 640))
    regs = [S + 16 * j + r for j in order for r in range(16)]
    ch = [vT + 4, vT + 5, vM, vM + 1]
    per = [regs[i::4] for i in range(4)]
    for c in range(4): k("v_max_f32 v%d, v%d, v%d" % (ch[c], per[c][0], per[c][1]))
    for i in range(2, 36, 2):
        for c in range(4): k("v_max3_f32 v%d, v%d, v%d, v%d" % (ch[c], ch[c], per[c][i], per[c][i + 1]))
    k("v_max3_f32 v%d, v%d, v%d, v%d" % (vM, vM, ch[0], ch[1]))
    k("v_max_f32 v%d, v%d, v%d" % (vM, vM, vM + 1))
    k("v_mov_b32 v%d, v%d" % (vM + 1, vM))
    k("s_nop 1")
    k("v_permlane32_swap_b32 v%d, v%d" % (vM, vM + 1))
    k("s_nop 1")
    k("v_max_f32 v%d, v%d, v%d" % (vM, vM, vM + 1))
    k("s_waitcnt lgkmcnt(0)")
    stamp(k, 7)
    for n, j in enumerate(order):
        b = S + 16 * j
        for r in range(16): k("v_sub_f32 v%d, v%d, v%d" % (b + r, b + r, vM))
        for r in range(16): k("v_exp_f32 v%d, v%d" % (b + r, b + r))
        for i in range(8): k("v_cvt_pk_bf16_f32 v%d, v%d, v%d" % (b + i, b + 2 * i, b + 2 * i + 1))
        k("s_nop 1")
        k("v_mfma_f32_32x32x16_bf16 %s, %s, %s, %s" % (vr(O, 16), vr(KV + 8 * j, 4), vr(b, 4), vr(O, 16)))
        k("v_mfma_f32_32x32x16_bf16 %s, %s, %s, %s" % (vr(O, 16), vr(KV + 8 * j + 4, 4), vr(b + 4, 4), vr(O, 16)))
    k("v_lshrrev_b32 v%d, 4, v%d" % (vT + 2, vT))
    k("v_mul_u32_u24 v%d, 18432, v%d" % (vT + 2, vT + 2))
    k("v_and_b32 v%d, 15, v%d" % (vT + 3, vT))
    k("v_lshl_add_u32 v%d, v%d, 4, v%d" % (vT + 2, vT + 3, vT + 2))
    k("v_lshl_add_u32 v%d, v%d, 8, v%d" % (vT + 3, vT + 1, vT + 2))
    k("s_mul_i32 s%d, s%d, 36864" % (T[0], sqb))
    k("s_add_u32 s%d, s%d, %d" % (T[0], T[0], L.OP))
    k("s_lshl_b32 s%d, s%d, 9" % (T[1], shd))
    k("s_add_u32 s%d, s%d, s%d" % (T[1], T[1], T[0]))
    k("s_lshr_b32 s%d, s%d, 4" % (T[2], shd))
    k("s_add_u32 s%d, s%d, 16" % (T[2], T[2]))
    k("s_lshl_b32 s%d, s%d, 10" % (T[2], T[2]))
    k("s_add_u32 s%d, s%d, s%d" % (T[2], T[2], T[0]))
    for bit, sh in ((3, 9), (1, 8), (2, 3), (0, 2)):
        k("s_bfe_u32 s%d, s%d, 0x1000%d" % (T[3], shd, bit))
        k("s_lshl_b32 s%d, s%d, %d" % (T[3], T[3], sh))
        k("s_add_u32 s%d, s%d, s%d" % (T[2], T[2], T[3]))
    k("s_nop 3")
    k("v_mov_b32 v%d, v%d" % (vM, O + 10))
    k("v_mov_b32 v%d, v%d" % (vM + 1, O + 10))
    k("s_nop 1")
    k("v_permlane32_swap_b32 v%d, v%d" % (vM, vM + 1))
    k("s_nop 1")
    k("v_rcp_f32 v%d, v%d" % (vM, vM))
    k("s_nop 0")
    for r in range(10): k("v_mul_f32 v%d, v%d, v%d" % (O + r, O + r, vM))
    for i in range(5): k("v_cvt_pk_bf16_f32 v%d, v%d, v%d" % (O + i, O + 2 * i, O + 2 * i + 1))
    k("buffer_store_dwordx4 %s, v%d, %s, s%d offen%s" % (vr(O, 4), vT + 3, R, T[1], SC))
    k("s_mov_b32 exec_hi, 0")
    k("buffer_store_dword v%d, v%d, %s, s%d offen%s" % (O + 4, vT + 2, R, T[2], SC))
    k("s_mov_b32 exec_hi, -1")
    stamp(k, 8)
    if STOP <= 2:
        signal(k, 2)
        stamp(k, 9)


def s3(k):
    OI, XI, SI = 65536, 65536 + 36864, 65536 + 36864 + 9216
    stt = T[8]
    vT = 2
    OF = 12
    WF = 28
    WX = 100
    ACC = 172
    E = 184
    vm = Q(k, "vmcnt", 63)
    vm.q += ["S2st", "S2st"]
    k("s_lshl_b32 s%d, s%d, 3" % (stt, sg))
    k("s_add_u32 s%d, s%d, s%d" % (stt, stt, ssub))
    make_srd(k, sA, P_X, 2048 * 1152)
    k("s_mul_i32 s%d, s%d, 9" % (T[4], sq))
    k("s_mul_i32 s%d, s%d, 36864" % (T[6], stt))
    k("s_mul_i32 s%d, s%d, 288" % (T[7], sq))
    k("s_add_u32 s%d, s%d, s%d" % (T[6], T[6], T[7]))
    def wloads(dst, sidx):
        k("s_add_u32 s%d, s%d, %s" % (T[5], T[4], sidx))
        k("s_mul_i32 s%d, s%d, 18432" % (T[5], T[5]))
        k("s_add_u32 s%d, s%d, %d" % (T[5], T[5], L.WOP))
        for ks in range(18):
            if ks and ks % 4 == 0: k("s_add_u32 s%d, s%d, 4096" % (T[5], T[5]))
            k("buffer_load_dwordx4 %s, v%d, %s, s%d offen offset:%d%s" % (vr(dst + 4 * ks, 4), vS, R, T[5], (ks % 4) * 1024, SC))
    def xdma(sidx):
        k("s_lshl_b32 s%d, s%d, 6" % (T[7], sidx))
        k("v_add_u32 v%d, s%d, v0" % (vT, T[7]))
        k("v_mul_u32_u24 v%d, 3641, v%d" % (vT + 1, vT))
        k("v_lshrrev_b32 v%d, 16, v%d" % (vT + 1, vT + 1))
        k("v_mul_u32_u24 v%d, %d, v%d" % (vT + 1, 1152 - 288, vT + 1))
        k("v_lshl_add_u32 v%d, v%d, 4, v%d" % (vT + 1, vT, vT + 1))
        k("s_lshl_b32 s%d, s%d, 10" % (T[7], sidx))
        k("s_add_u32 m0, s%d, %d" % (T[7], XI))
        k("s_nop 0")
        k("buffer_load_dwordx4 v%d, %s, s%d offen lds" % (vT + 1, RA, T[6]))
    lab = k.newlab(); lab2 = k.newlab(); lab3 = k.newlab(); lab4 = k.newlab()
    k("s_cmp_ge_u32 s%d, 4" % sw)
    k("s_cbranch_scc1 %s" % lab)
    wloads(WF, "s%d" % sw)
    xdma(sw)
    k("s_waitcnt vmcnt(19)")
    k("s_cmp_ge_u32 s%d, 2" % sw)
    k("s_cbranch_scc1 %s" % lab2)
    wloads(WX, "8")
    k("s_branch %s" % lab3)
    k.label(lab2)
    k("s_add_u32 s%d, s%d, 6" % (T[9], sw))
    k("s_cmp_eq_u32 s%d, 9" % T[9])
    k("s_cbranch_scc1 %s" % lab3)
    xdma(T[9])
    k("s_branch %s" % lab3)
    k.label(lab)
    k("s_waitcnt vmcnt(0)")
    k.label(lab3)
    signal(k, 2, drain=False, vt=E, wave=7)
    k("s_cmp_lt_u32 s%d, 4" % sw)
    k("s_cbranch_scc1 %s" % lab4)
    wloads(WF, "s%d" % sw)
    xdma(sw)
    k.label(lab4)
    stamp(k, 9)
    k("v_and_b32 v%d, 15, v0" % vT)
    k("v_lshrrev_b32 v%d, 4, v0" % (vT + 1))
    k("v_mul_u32_u24 v%d, 288, v%d" % (vT + 2, vT))
    k("v_lshl_add_u32 v%d, v%d, 3, v%d" % (vT + 2, vT + 1, vT + 2))
    k("v_add_u32 v%d, %d, v%d" % (vT + 2, XI, vT + 2))
    k("s_lshl_b32 s%d, s%d, 5" % (T[4], sw))
    k("v_add_u32 v%d, s%d, v%d" % (vT + 4, T[4], vT + 2))
    k("s_mul_i32 s%d, s%d, 4608" % (T[4], sw))
    k("v_add_u32 v%d, s%d, v%d" % (vT + 5, T[4], vT + 2))
    k("v_lshrrev_b32 v%d, 5, v0" % (vT + 3))
    k("v_mul_u32_u24 v%d, %d, v%d" % (vT + 3, 18432 - 512, vT + 3))
    k("v_add_u32 v%d, v%d, v%d" % (vT + 3, vT + 3, vS))
    k("v_add_u32 v%d, %d, v%d" % (vT + 6, OI, vS))
    k("s_mul_i32 s%d, s%d, 36864" % (T[10], stt))
    k("s_mul_i32 s%d, s%d, 9" % (T[4], sq))
    k("s_add_u32 s%d, s%d, s%d" % (T[5], T[4], sw))
    k("s_lshl_b32 s%d, s%d, 9" % (T[5], T[5]))
    k("s_add_u32 s%d, s%d, s%d" % (T[11], T[10], T[5]))
    k("s_add_u32 s%d, s%d, %d" % (T[11], T[11], L.HP))
    k("s_add_u32 s%d, s%d, 8" % (T[5], T[4]))
    k("s_lshl_b32 s%d, s%d, 9" % (T[5], T[5]))
    k("s_add_u32 s%d, s%d, s%d" % (T[12], T[10], T[5]))
    k("s_mul_i32 s%d, s%d, 18432" % (T[5], sw))
    k("s_add_u32 s%d, s%d, s%d" % (T[12], T[12], T[5]))
    k("s_add_u32 s%d, s%d, %d" % (T[12], T[12], L.HP))
    k("s_mul_i32 s%d, s%d, 4608" % (T[13], sw))
    k("s_add_u32 s%d, s%d, s%d" % (T[10], T[10], T[13]))
    k("s_add_u32 s%d, s%d, %d" % (T[10], T[10], L.OP))
    wait_flags(k, req_group(2), vt=E, wave=3)
    stamp(k, 10)
    k("s_add_u32 m0, s%d, %d" % (T[13], OI))
    k("s_nop 0")
    for j in range(4): k("buffer_load_dwordx4 v%d, %s, s%d offen offset:%d%s lds" % (vS, R, T[10], j * 1024, SC))
    k("s_add_u32 m0, s%d, %d" % (T[13], OI + 4096))
    k("s_add_u32 s%d, s%d, 4096" % (T[10], T[10]))
    k("s_mov_b32 exec_hi, 0")
    k("buffer_load_dwordx4 v%d, %s, s%d offen%s lds" % (vS, R, T[10], SC))
    k("s_mov_b32 exec_hi, -1")
    k("s_waitcnt vmcnt(0)")
    k("s_barrier")
    stamp(k, 11)
    def oread(ks):
        for t in range(2):
            k("ds_read_b128 %s, v%d offset:%d" % (vr(OF + ((ks & 1) * 2 + t) * 4, 4), vT + 6, (t * 18 + ks) * 1024))
    def resid(a, x, e):
        k("v_cvt_pk_bf16_f32 v%d, v%d, v%d" % (e, a, a + 1))
        k("v_cvt_pk_bf16_f32 v%d, v%d, v%d" % (e + 1, a + 2, a + 3))
        for i in range(2):
            k("v_lshlrev_b32 v%d, 16, v%d" % (a + 2 * i, e + i))
            k("v_and_b32 v%d, 0xffff0000, v%d" % (a + 2 * i + 1, e + i))
            k("v_lshlrev_b32 v%d, 16, v%d" % (E + 20, x + i))
            k("v_and_b32 v%d, 0xffff0000, v%d" % (E + 21, x + i))
            k("v_pk_add_f32 %s, %s, %s" % (vr(a + 2 * i, 2), vr(a + 2 * i, 2), vr(E + 20, 2)))
        k("v_cvt_pk_bf16_f32 v%d, v%d, v%d" % (e, a, a + 1))
        k("v_cvt_pk_bf16_f32 v%d, v%d, v%d" % (e + 1, a + 2, a + 3))
        for i in range(2):
            k("v_lshlrev_b32 v%d, 16, v%d" % (a + 2 * i, e + i))
            k("v_and_b32 v%d, 0xffff0000, v%d" % (a + 2 * i + 1, e + i))
    def stats(a, sm, first):
        if first:
            k("v_add_f32 v%d, v%d, v%d" % (sm, a, a + 1))
            k("v_mul_f32 v%d, v%d, v%d" % (sm + 1, a, a))
        else:
            k("v_add_f32 v%d, v%d, v%d" % (sm, sm, a))
            k("v_fmac_f32 v%d, v%d, v%d" % (sm + 1, a, a))
            k("v_add_f32 v%d, v%d, v%d" % (sm, sm, a + 1))
        k("v_fmac_f32 v%d, v%d, v%d" % (sm + 1, a + 1, a + 1))
        for i in (2, 3):
            k("v_add_f32 v%d, v%d, v%d" % (sm, sm, a + i))
            k("v_fmac_f32 v%d, v%d, v%d" % (sm + 1, a + i, a + i))
    k("s_cmp_lt_u32 s%d, 2" % sw)
    k("s_cbranch_scc1 .L_s3_x")
    for var in ("main", 0, 1):
        if var == 0:
            k.label(".L_s3_x")
            k("s_cmp_eq_u32 s%d, 1" % sw)
            k("s_cbranch_scc1 .L_s3_x1")
        if var == 1: k.label(".L_s3_x1")
        oread(0)
        for ks in range(18):
            if ks + 1 < 18:
                oread(ks + 1); k("s_waitcnt lgkmcnt(2)")
            else:
                for t in range(2): k("ds_read_b64 %s, v%d offset:%d" % (vr(E + 8 + 2 * t, 2), vT + 4, t * 4608))
                if var != "main": k("ds_read_b64 %s, v%d offset:256" % (vr(E + 12, 2), vT + 5))
                k("s_waitcnt lgkmcnt(%d)" % (2 if var == "main" else 3))
            for t in range(2):
                d = vr(ACC + 4 * t, 4)
                k("v_mfma_f32_16x16x32_bf16 %s, %s, %s, %s" % (d, vr(WF + 4 * ks, 4), vr(OF + ((ks & 1) * 2 + t) * 4, 4), "0" if ks == 0 else d))
            if var != "main":
                d = vr(ACC + 8, 4)
                k("v_mfma_f32_16x16x32_bf16 %s, %s, %s, %s" % (d, vr(WX + 4 * ks, 4), vr(OF + ((ks & 1) * 2 + var) * 4, 4), "0" if ks == 0 else d))
        k("s_nop 6")
        k("s_waitcnt lgkmcnt(0)")
        SM = E + 16
        for t in range(2):
            resid(ACC + 4 * t, E + 8 + 2 * t, E + 2 * t)
            stats(ACC + 4 * t, SM + 2 * t, True)
        k("v_permlane32_swap_b32 v%d, v%d" % (E, E + 2))
        k("v_permlane32_swap_b32 v%d, v%d" % (E + 1, E + 3))
        k("s_nop 1")
        k("buffer_store_dwordx4 %s, v%d, %s, s%d offen%s" % (vr(E, 4), vT + 3, R, T[11], SC))
        if var != "main":
            resid(ACC + 8, E + 12, E + 4)
            k("v_mov_b32 v%d, v%d" % (E + 6, E + 4))
            k("v_mov_b32 v%d, v%d" % (E + 7, E + 5))
            stats(ACC + 8, SM + 2 * var, False)
            k("v_permlane32_swap_b32 v%d, v%d" % (E + 4, E + 6))
            k("v_permlane32_swap_b32 v%d, v%d" % (E + 5, E + 7))
            k("s_mov_b32 exec_hi, 0")
            k("s_nop 0")
            k("buffer_store_dwordx4 %s, v%d, %s, s%d offen%s" % (vr(E + 4, 4), vS, R, T[12], SC))
            k("s_mov_b32 exec_hi, -1")
        if var != 1: k("s_branch .L_s3_j")
    k.label(".L_s3_j")
    SM = E + 16
    sum_rows(k, [SM, SM + 1, SM + 2, SM + 3], [E + 8, E + 9, E + 10, E + 11])
    k("s_lshl_b32 s%d, s%d, 8" % (T[4], sw))
    k("s_add_u32 s%d, s%d, %d" % (T[4], T[4], SI))
    k("v_lshlrev_b32 v%d, 3, v%d" % (vT + 2, vT))
    k("v_add_u32 v%d, s%d, v%d" % (vT + 2, T[4], vT + 2))
    k("s_mov_b64 exec, 0xffff")
    for t in range(2): k("ds_write_b64 v%d, %s offset:%d" % (vT + 2, vr(SM + 2 * t, 2), t * 128))
    k("s_mov_b64 exec, -1")
    k("s_waitcnt lgkmcnt(0)")
    k("s_barrier")
    lab = k.newlab()
    k("s_cmp_lg_u32 s%d, 7" % sw)
    k("s_cbranch_scc1 %s" % lab)
    k("v_lshlrev_b32 v%d, 2, v0" % (vT + 2))
    k("v_add_u32 v%d, %d, v%d" % (vT + 4, SI, vT + 2))
    for ww in range(8): k("ds_read_b32 v%d, v%d offset:%d" % (WF + ww, vT + 4, ww * 256))
    k("s_lshl_b32 s%d, s%d, 14" % (T[4], sq))
    k("s_lshl_b32 s%d, s%d, 8" % (T[5], stt))
    k("s_add_u32 s%d, s%d, s%d" % (T[4], T[4], T[5]))
    k("s_add_u32 s%d, s%d, %d" % (T[4], T[4], L.ST2))
    k("s_waitcnt lgkmcnt(0)")
    for st in (4, 2, 1):
        for i in range(st): k("v_add_f32 v%d, v%d, v%d" % (WF + i, WF + i, WF + i + st))
    k("buffer_store_dword v%d, v%d, %s, s%d offen%s" % (WF, vT + 2, R, T[4], SC))
    k.label(lab)
    stamp(k, 12)
    signal(k, 3, wave=7)
    stamp(k, 13)

def s4(k):
    SLOT = 36864
    sWsrc, sM0, sHH, sH = T[8], T[9], T[10], T[11]
    vO, vA, vSt, vT = 2, 7, 11, 12
    AB = 16
    U = 20
    H = 24
    ACC = 168
    WF = 216; NWF = 8
    E = 248
    vm = Q(k, "vmcnt", 63); lq = Q(k, "lgkmcnt", 15)
    k("s_cmp_lt_u32 s%d, 4" % sw)
    k("s_cselect_b32 s%d, s%d, s%d" % (T[2], P_G, P_U))
    k("s_cselect_b32 s%d, s%d, s%d" % (T[3], P_G + 1, P_U + 1))
    make_srd(k, sA, T[2], 576 * 9216)
    k("s_and_b32 s%d, s%d, 3" % (T[0], sw))
    k("s_mul_i32 s%d, s%d, %d" % (sWsrc, T[0], 48 * 9216))
    k("s_mul_i32 s%d, s%d, 288" % (T[1], si))
    k("s_add_u32 s%d, s%d, s%d" % (sWsrc, sWsrc, T[1]))
    k("s_mul_i32 s%d, s%d, 4608" % (sM0, sw))
    for j in range(5):
        k("v_add_u32 v%d, %d, v0" % (vT, 64 * j))
        k("v_mul_u32_u24 v%d, 10923, v%d" % (vT + 1, vT))
        k("v_lshrrev_b32 v%d, 16, v%d" % (vT + 1, vT + 1))
        k("v_mul_u32_u24 v%d, %d, v%d" % (vT + 1, 9216 - 96, vT + 1))
        k("v_lshl_add_u32 v%d, v%d, 4, v%d" % (vO + j, vT, vT + 1))
        if 0 < j < 4: k("v_subrev_u32 v%d, %d, v%d" % (vO + j, j * 1024, vO + j))
    def wdma(s, j):
        def f():
            ps, st = divmod(s, 3)
            if j == 0 or j == 4: k("s_add_u32 m0, s%d, %d" % (sM0, (s % 4) * SLOT + j * 1024))
            k("s_add_u32 s%d, s%d, %d" % (T[0], sWsrc, st * 192 * 9216 + ps * 96))
            if j == 4: k("s_mov_b32 exec_hi, 0")
            vm.op("W%d" % s, "buffer_load_dwordx4 v%d, %s, s%d offen offset:%d lds" % (vO + j, RA, T[0], (j % 4) * 1024))
            if j == 4: k("s_mov_b32 exec_hi, -1")
        return f
    for s in range(4):
        for j in range(5): wdma(s, j)()
    k("v_bfe_u32 v%d, v0, 5, 1" % vT)
    k("v_lshlrev_b32 v%d, 4, v%d" % (vT, vT))
    k("v_bfe_u32 v%d, v0, 2, 3" % (vT + 1))
    k("v_add_u32 v%d, v%d, v%d" % (vT, vT, vT + 1))
    k("v_mul_u32_u24 v%d, 96, v%d" % (vT, vT))
    k("v_and_b32 v%d, 3, v0" % (vT + 1))
    k("v_lshl_add_u32 v%d, v%d, 3, v%d" % (vA, vT + 1, vT))
    for i in range(1, 4): k("v_add_u32 v%d, %d, v%d" % (vA + i, i * SLOT, vA))
    k("s_lshl_b32 s%d, s%d, 4" % (T[1], sg))
    k("s_lshl_b32 s%d, s%d, 1" % (T[2], sw))
    k("s_add_u32 s%d, s%d, s%d" % (T[1], T[1], T[2]))
    k("s_mul_i32 s%d, s%d, 147456" % (sHH, T[1]))
    k("s_mul_i32 s%d, s%d, %d" % (T[2], si, 9 * 512))
    k("s_add_u32 s%d, s%d, s%d" % (sHH, sHH, T[2]))
    k("s_add_u32 s%d, s%d, %d" % (sHH, sHH, L.HH))
    k("s_mul_i32 s%d, s%d, 18432" % (sH, T[1]))
    k("s_add_u32 s%d, s%d, %d" % (sH, sH, L.HP))
    k("s_lshl_b32 s%d, s%d, 7" % (T[12], T[1]))
    k("s_add_u32 s%d, s%d, %d" % (T[12], T[12], L.ST2))
    k("v_and_b32 v%d, 15, v0" % vT)
    k("v_lshrrev_b32 v%d, 4, v0" % (vT + 1))
    k("v_lshlrev_b32 v%d, 14, v%d" % (vT + 1, vT + 1))
    k("v_lshl_add_u32 v%d, v%d, 3, v%d" % (vT + 2, vT, vT + 1))
    k("v_lshrrev_b32 v%d, 5, v0" % (vT + 3))
    k("v_mul_u32_u24 v%d, %d, v%d" % (vT + 3, 147456 - 512, vT + 3))
    k("v_add_u32 v%d, v%d, v%d" % (vSt, vT + 3, vS))
    vm.wait("W0")
    wait_flags(k, req_group(3), vt=E, wave=7)
    stamp(k, 14)
    for t in range(2):
        vm.op("ST", "buffer_load_dwordx2 %s, v%d, %s, s%d offen offset:%d%s" % (vr(ACC + 2 * t, 2), vT + 2, R, T[12], t * 128, SC))
    def hload(ks):
        for t in range(2):
            k("s_add_u32 s%d, s%d, %d" % (T[0], sH, t * 18432 + (ks // 4) * 4096))
            vm.op("H%d" % ks, "buffer_load_dwordx4 %s, v%d, %s, s%d offen offset:%d%s" % (vr(H + (ks * 2 + t) * 4, 4), vS, R, T[0], (ks % 4) * 1024, SC))
    HPF = 6
    for ks in range(HPF): hload(ks)
    frs = [(ps, ks, b, m) for ps in range(3) for ks in range(18) for b in range(3) for m in range(2)]
    NF = len(frs)
    def wread(i):
        ps, ks, b, m = frs[i]
        s = ps * 3 + ks // 6; sl = s % 4
        for h in range(2):
            lq.op("f%d" % i, "ds_read_b64_tr_b16 %s, v%d offset:%d" % (vr(WF + 4 * (i % NWF) + 2 * h, 2), vA + sl,
                  m * 18432 + (ks % 6) * 3072 + h * 768 + b * 32))
    PF = 5
    for i in range(PF): wread(i)
    vm.wait("ST")
    sum_rows(k, [ACC, ACC + 1, ACC + 2, ACC + 3], [ACC + 4, ACC + 5, ACC + 6, ACC + 7])
    for t in range(2):
        ln_stats(k, ACC + 2 * t, ACC + 2 * t + 1, AB + 2 * t + 1, AB + 2 * t, E)
        k("v_mul_f32 v%d, -v%d, v%d" % (AB + 2 * t + 1, AB + 2 * t + 1, AB + 2 * t))
    def norm(ks):
        o = []
        for t in range(2):
            for i in range(4):
                r = H + (ks * 2 + t) * 4 + i; u = U + 2 * (i & 1)
                o.append("v_lshlrev_b32 v%d, 16, v%d" % (u, r))
                o.append("v_and_b32 v%d, 0xffff0000, v%d" % (u + 1, r))
                o.append("v_fma_f32 v%d, v%d, v%d, v%d" % (u, u, AB + 2 * t, AB + 2 * t + 1))
                o.append("v_fma_f32 v%d, v%d, v%d, v%d" % (u + 1, u + 1, AB + 2 * t, AB + 2 * t + 1))
                o.append("v_cvt_pk_bf16_f32 v%d, v%d, v%d" % (r, u, u + 1))
        return o
    def epilogue(ps):
        tr = [(b, t, r) for b in range(3) for t in range(2) for r in range(4)]
        G = lambda b, t, r: ACC + b * 16 + t * 4 + r
        Uu = lambda b, t, r: ACC + b * 16 + 8 + t * 4 + r
        k("s_nop 7")
        for b in range(3):
            tb = [(t, r) for t in range(2) for r in range(4)]
            for t, r in tb: k("v_mul_f32 v%d, %s, v%d" % (G(b, t, r), hx(f32bits(-1.4426950408889634)), G(b, t, r)))
            for t, r in tb: k("v_exp_f32 v%d, v%d" % (G(b, t, r), G(b, t, r)))
            for t, r in tb: k("v_add_f32 v%d, 1.0, v%d" % (G(b, t, r), G(b, t, r)))
            for t, r in tb: k("v_rcp_f32 v%d, v%d" % (G(b, t, r), G(b, t, r)))
            for t, r in tb: k("v_mul_f32 v%d, v%d, v%d" % (G(b, t, r), G(b, t, r), Uu(b, t, r)))
            e = E + 4 * (b & 1)
            for t in range(2):
                for i in range(2): k("v_cvt_pk_bf16_f32 v%d, v%d, v%d" % (e + 2 * t + i, G(b, t, 2 * i), G(b, t, 2 * i + 1)))
            k("s_add_u32 s%d, s%d, %d" % (T[1], sHH, (ps * 3 + b) * 512))
            k("s_nop 0")
            k("v_permlane32_swap_b32 v%d, v%d" % (e, e + 2))
            k("v_permlane32_swap_b32 v%d, v%d" % (e + 1, e + 3))
            k("s_nop 1")
            vm.op("S", "buffer_store_dwordx4 %s, v%d, %s, s%d offen%s" % (vr(e, 4), vSt, R, T[1], SC))
    vm.wait("H0")
    for x in norm(0): k(x)
    dm = []
    for i in range(NF):
        ps, ks, b, m = frs[i]
        s = ps * 3 + ks // 6
        first = (b == 0 and m == 0)
        if first and ks % 6 == 1:
            if s + 1 < 9: vm.wait("W%d" % (s + 1))
            k("s_barrier")
            if s >= 1 and s + 3 < 9: dm = [wdma(s + 3, j) for j in range(5)]
        if first and ps == 0:
            if ks + HPF < 18: hload(ks + HPF)
            fill = []
            if ks + 1 < 18:
                fill = norm(ks + 1)
                vm.wait("H%d" % (ks + 1))
        if i + PF < NF: wread(i + PF)
        lq.wait("f%d" % i)
        for t in range(2):
            d = vr(ACC + b * 16 + m * 8 + t * 4, 4)
            k("v_mfma_f32_16x16x32_bf16 %s, %s, %s, %s" % (d, vr(WF + 4 * (i % NWF), 4), vr(H + (ks * 2 + t) * 4, 4), "0" if ks == 0 else d))
            if ps == 0:
                n = 4 if (b, m, t) != (2, 1, 1) else 99
                for _ in range(n):
                    if fill: k(fill.pop(0))
        if dm and m == 1: dm.pop(0)()
        if ks == 17 and b == 2 and m == 1:
            epilogue(ps)
            if ps == 0: stamp(k, 15)
    stamp(k, 16)
    signal(k, 4, wave=7)
    stamp(k, 27)

def s5(k):
    STG = 34816; NS = 4; WOFF = 16384
    smt, sng, sSrc, sM0 = T[8], T[9], T[10], T[11]
    vA, vT = 2, 6
    ACC = 16; HF = 160; WF = 192; NWF = 15
    NST = 18
    k("s_lshl_b32 s%d, s%d, 1" % (smt, sg))
    k("s_and_b32 s%d, s%d, 1" % (T[0], ssub))
    k("s_add_u32 s%d, s%d, s%d" % (smt, smt, T[0]))
    k("s_lshr_b32 s%d, s%d, 1" % (sng, ssub))
    k("s_cmp_ge_u32 s%d, 4" % sw)
    k("s_cbranch_scc1 .L_s5_loader")
    lq = Q(k, "lgkmcnt", 15)
    k("s_and_b32 s%d, s%d, 1" % (T[0], sw))
    k("s_lshr_b32 s%d, s%d, 1" % (T[1], sw))
    k("s_lshl_b32 s%d, s%d, 12" % (T[0], T[0]))
    k("s_lshl_b32 s%d, s%d, 13" % (T[2], T[1]))
    k("s_add_u32 s%d, s%d, s%d" % (T[0], T[0], T[2]))
    k("v_add_u32 v%d, s%d, v%d" % (vA, T[0], vS))
    k("v_add_u32 v%d, %d, v%d" % (vA + 1, 2 * STG, vA))
    tr_addr(k, vA + 2, vT, 4608)
    k("s_mul_i32 s%d, s%d, 9216" % (T[1], T[1]))
    k("s_add_u32 s%d, s%d, %d" % (T[1], T[1], WOFF))
    k("v_add_u32 v%d, s%d, v%d" % (vA + 2, T[1], vA + 2))
    k("v_add_u32 v%d, %d, v%d" % (vA + 3, 2 * STG, vA + 2))
    def hread(st, t):
        sl = st % NS
        lq.op("h%d" % st, "ds_read_b128 %s, v%d offset:%d" % (vr(HF + ((st & 1) * 4 + t) * 4, 4), vA + (sl >> 1), (sl & 1) * STG + t * 1024))
    def wread(st, u):
        sl = st % NS
        for h in range(2):
            lq.op("w%d_%d" % (st, u), "ds_read_b64_tr_b16 %s, v%d offset:%d" % (vr(WF + 4 * ((st * 9 + u) % NWF) + 2 * h, 2), vA + 2 + (sl >> 1),
                  (sl & 1) * STG + h * 2304 + u * 32))
    PFW = 4
    k("s_barrier")
    stamp(k, 28)
    k("s_barrier")
    stamp(k, 17)
    for t in range(4): hread(0, t)
    for u in range(PFW): wread(0, u)
    for st in range(NST):
        for u in range(9):
            un = u + PFW
            lq.wait("w%d_%d" % (st, u))
            for t in range(4):
                d = vr(ACC + (t * 9 + u) * 4, 4)
                k("v_mfma_f32_16x16x32_bf16 %s, %s, %s, %s" % (d, vr(WF + 4 * ((st * 9 + u) % NWF), 4), vr(HF + ((st & 1) * 4 + t) * 4, 4), "0" if st == 0 else d))
                if t == 0:
                    if un < 9: wread(st, un)
                    elif st + 1 < NST:
                        if un == 9:
                            k("s_barrier")
                            for tt in range(4): hread(st + 1, tt)
                        wread(st + 1, un - 9)
    stamp(k, 18)
    k("s_nop 7")
    k("s_barrier")
    k("s_mul_i32 s%d, s%d, 18432" % (T[0], sw))
    k("v_add_u32 v%d, s%d, v%d" % (vA, T[0], vS))
    k("s_xor_b32 s%d, s%d, 2" % (T[1], sw))
    k("s_mul_i32 s%d, s%d, 18432" % (T[1], T[1]))
    k("v_add_u32 v%d, s%d, v%d" % (vA + 1, T[1], vS))
    k("s_lshl_b32 s%d, s%d, 2" % (T[2], smt))
    k("s_add_u32 s%d, s%d, s%d" % (T[2], T[2], sng))
    k("s_lshl_b32 s%d, s%d, 2" % (T[2], T[2]))
    k("s_and_b32 s%d, s%d, 1" % (T[3], sw))
    k("s_lshl_b32 s%d, s%d, 1" % (T[3], T[3]))
    k("s_lshr_b32 s%d, s%d, 1" % (T[4], sw))
    k("s_add_u32 s%d, s%d, s%d" % (T[3], T[3], T[4]))
    k("s_add_u32 s%d, s%d, s%d" % (T[2], T[2], T[3]))
    k("s_lshl_b32 s%d, s%d, 2" % (T[2], T[2]))
    k("s_add_u32 s%d, s%d, s%d" % (T[2], T[2], sq))
    k("s_mul_i32 s%d, s%d, 18432" % (T[2], T[2]))
    k("s_add_u32 s%d, s%d, %d" % (T[2], T[2], L.PART))
    k("s_cmp_ge_u32 s%d, 2" % sw)
    k("s_cbranch_scc1 .L_s5_kp1")
    for kp in range(2):
        if kp: k.label(".L_s5_kp1")
        keep = ACC + 72 * kp; give = ACC + 72 * (1 - kp)
        for i in range(18): k("ds_write_b128 v%d, %s offset:%d" % (vA, vr(give + 4 * i, 4), i * 1024))
        k("s_waitcnt lgkmcnt(0)")
        k("s_barrier")
        stamp(k, 29)
        for i in range(18): k("ds_read_b128 %s, v%d offset:%d" % (vr(give + 4 * i, 4), vA + 1, i * 1024))
        for i in range(18):
            k("s_waitcnt lgkmcnt(%d)" % min(15, 17 - i))
            for p in range(2): k("v_pk_add_f32 %s, %s, %s" % (vr(keep + 4 * i + 2 * p, 2), vr(keep + 4 * i + 2 * p, 2), vr(give + 4 * i + 2 * p, 2)))
            if i and i % 4 == 0: k("s_add_u32 s%d, s%d, 4096" % (T[2], T[2]))
            k("buffer_store_dwordx4 %s, v%d, %s, s%d offen offset:%d%s" % (vr(keep + 4 * i, 4), vS, R, T[2], (i % 4) * 1024, SC))
        k("s_branch .L_s5_done")
    k.label(".L_s5_loader")
    k("s_and_b32 s%d, s%d, 1" % (T[0], sw))
    k("s_cmp_ge_u32 s%d, 6" % sw)
    k("s_cbranch_scc1 .L_s5_ldh")
    for which in ("w", "h"):
        if which == "h": k.label(".L_s5_ldh")
        n = 8 if which == "h" else 9
        vO = 16
        if which == "h":
            k("s_mul_i32 s%d, s%d, %d" % (sSrc, smt, 8 * 144))
            k("s_mul_i32 s%d, s%d, 36" % (T[1], sq))
            k("s_add_u32 s%d, s%d, s%d" % (sSrc, sSrc, T[1]))
            k("s_add_u32 s%d, s%d, s%d" % (sSrc, sSrc, T[0]))
            k("s_lshl_b32 s%d, s%d, 10" % (sSrc, sSrc))
            k("s_add_u32 s%d, s%d, %d" % (sSrc, sSrc, L.HH))
            k("s_lshl_b32 s%d, s%d, 13" % (sM0, T[0]))
            for t in range(8): k("v_add_u32 v%d, %d, v%d" % (vO + t, t * 147456 - (t % 4) * 1024, vS))
        else:
            make_srd(k, sA, P_D, 4608 * 1152)
            k("s_mul_i32 s%d, s%d, 36" % (sSrc, sq))
            k("s_add_u32 s%d, s%d, s%d" % (sSrc, sSrc, T[0]))
            k("s_mul_i32 s%d, s%d, %d" % (sSrc, sSrc, 32 * 1152))
            k("s_mul_i32 s%d, s%d, 288" % (T[1], sng))
            k("s_add_u32 s%d, s%d, s%d" % (sSrc, sSrc, T[1]))
            k("s_mul_i32 s%d, s%d, 9216" % (sM0, T[0]))
            k("s_add_u32 s%d, s%d, %d" % (sM0, sM0, WOFF))
            for j in range(9):
                k("v_add_u32 v%d, %d, v0" % (vT, 64 * j))
                k("v_mul_u32_u24 v%d, 3641, v%d" % (vT + 1, vT))
                k("v_lshrrev_b32 v%d, 16, v%d" % (vT + 1, vT + 1))
                k("v_mul_u32_u24 v%d, %d, v%d" % (vT + 1, 1152 - 288, vT + 1))
                k("v_lshl_add_u32 v%d, v%d, 4, v%d" % (vO + j, vT, vT + 1))
                if j % 4: k("v_subrev_u32 v%d, %d, v%d" % (vO + j, (j % 4) * 1024, vO + j))
        def issue(st):
            k("s_add_u32 s%d, s%d, %d" % (T[1], sSrc, st * (2048 if which == "h" else 64 * 1152)))
            for j in range(n):
                if j % 4 == 0:
                    k("s_add_u32 m0, s%d, %d" % (sM0, (st % NS) * STG + j * 1024))
                    k("s_nop 0")
                if which == "h": k("buffer_load_dwordx4 v%d, %s, s%d offen offset:%d%s lds" % (vO + j, R, T[1], (j % 4) * 1024, SC))
                else: k("buffer_load_dwordx4 v%d, %s, s%d offen offset:%d lds" % (vO + j, RA, T[1], (j % 4) * 1024))
        if which == "w":
            for st in range(4): issue(st)
            k("s_barrier")
        else:
            wait_flags(k, req_group(4, None, mask_q), vt=40, wave=7)
            for st in range(4): issue(st)
        issued = 4
        for st in range(NST):
            k("s_waitcnt vmcnt(%d)" % (n * (issued - 1 - st)))
            k("s_barrier")
            if st >= 2 and st + 2 < NST:
                issue(st + 2); issued += 1
        k("s_barrier")
        k("s_barrier")
        if which == "w": k("s_branch .L_s5_done")
    k.label(".L_s5_done")
    stamp(k, 30)
    signal(k, 5, wave=7)
    stamp(k, 31)
    P = 16; HB = 80
    make_srd(k, sA, P_OUT, 2048 * 1152)
    k("s_lshl_b32 s%d, s%d, 2" % (T[4], smt))
    k("s_add_u32 s%d, s%d, s%d" % (T[4], T[4], sng))
    k("s_lshl_b32 s%d, s%d, 2" % (T[4], T[4]))
    k("s_add_u32 s%d, s%d, s%d" % (T[4], T[4], sq))
    k("s_mul_i32 s%d, s%d, %d" % (T[4], T[4], 4 * 18432))
    k("s_and_b32 s%d, s%d, 1" % (T[5], sw))
    k("s_lshr_b32 s%d, s%d, 1" % (T[6], sw))
    k("s_mul_i32 s%d, s%d, 9216" % (T[7], T[5]))
    k("s_add_u32 s%d, s%d, s%d" % (T[4], T[4], T[7]))
    k("s_mul_i32 s%d, s%d, 3072" % (T[7], T[6]))
    k("s_add_u32 s%d, s%d, s%d" % (T[4], T[4], T[7]))
    k("s_add_u32 s%d, s%d, %d" % (T[4], T[4], L.PART))
    k("s_lshl_b32 s%d, s%d, 3" % (T[12], smt))
    k("s_lshl_b32 s%d, s%d, 1" % (T[7], sq))
    k("s_add_u32 s%d, s%d, s%d" % (T[12], T[12], T[7]))
    k("s_add_u32 s%d, s%d, s%d" % (T[12], T[12], T[5]))
    k("s_mul_i32 s%d, s%d, 18432" % (T[12], T[12]))
    k("s_mul_i32 s%d, s%d, 9" % (T[7], sng))
    k("s_mul_i32 s%d, s%d, 3" % (T[13], T[6]))
    k("s_add_u32 s%d, s%d, s%d" % (T[7], T[7], T[13]))
    k("s_lshl_b32 s%d, s%d, 9" % (T[13], T[7]))
    k("s_add_u32 s%d, s%d, s%d" % (T[13], T[13], T[12]))
    k("s_add_u32 s%d, s%d, %d" % (T[13], T[13], L.HP))
    k("s_lshl_b32 s%d, s%d, 5" % (T[7], T[7]))
    k("s_add_u32 s%d, s%d, s%d" % (T[12], T[12], T[7]))
    k("v_and_b32 v%d, 15, v0" % vT)
    k("v_lshrrev_b32 v%d, 4, v0" % (vT + 1))
    k("v_and_b32 v%d, 1, v%d" % (vT + 2, vT + 1))
    k("v_lshlrev_b32 v%d, 8, v%d" % (vT + 2, vT + 2))
    k("v_lshl_add_u32 v%d, v%d, 4, v%d" % (vT + 2, vT, vT + 2))
    k("v_lshrrev_b32 v%d, 1, v%d" % (vT + 3, vT + 1))
    k("v_lshl_add_u32 v%d, v%d, 3, v%d" % (vT + 2, vT + 3, vT + 2))
    k("v_mul_u32_u24 v%d, 1152, v%d" % (vT + 3, vT))
    k("v_lshl_add_u32 v%d, v%d, 3, v%d" % (vT + 3, vT + 1, vT + 3))
    lab = k.newlab()
    k("s_cmp_ge_u32 s%d, 6" % sw)
    k("s_cbranch_scc1 %s" % lab)
    for u in range(3):
        k("buffer_load_dwordx2 %s, v%d, %s, s%d offen offset:%d%s" % (vr(HB + 2 * u, 2), vT + 2, R, T[13], u * 512, SC))
    k.label(lab)
    wait_flags(k, req_group(5, None, mask_sub), vt=100, wave=7)
    stamp(k, 32)
    k("s_cmp_ge_u32 s%d, 6" % sw)
    k("s_cbranch_scc1 .L_fin")
    for q in range(4):
        for u in range(3):
            k("buffer_load_dwordx4 %s, v%d, %s, s%d offen offset:%d%s" % (vr(P + (u * 4 + q) * 4, 4), vS, R, T[4], u * 1024, SC))
        if q < 3: k("s_add_u32 s%d, s%d, 18432" % (T[4], T[4]))
    k("s_waitcnt vmcnt(0)")
    stamp(k, 33)
    for u in range(3):
        a = P + u * 16
        for p in range(2):
            k("v_pk_add_f32 %s, %s, %s" % (vr(a + 2 * p, 2), vr(a + 2 * p, 2), vr(a + 4 + 2 * p, 2)))
            k("v_pk_add_f32 %s, %s, %s" % (vr(a + 8 + 2 * p, 2), vr(a + 8 + 2 * p, 2), vr(a + 12 + 2 * p, 2)))
            k("v_pk_add_f32 %s, %s, %s" % (vr(a + 2 * p, 2), vr(a + 2 * p, 2), vr(a + 8 + 2 * p, 2)))
        k("v_cvt_pk_bf16_f32 v%d, v%d, v%d" % (a + 4, a, a + 1))
        k("v_cvt_pk_bf16_f32 v%d, v%d, v%d" % (a + 5, a + 2, a + 3))
        for i in range(2):
            k("v_lshlrev_b32 v%d, 16, v%d" % (a + 2 * i, a + 4 + i))
            k("v_and_b32 v%d, 0xffff0000, v%d" % (a + 2 * i + 1, a + 4 + i))
            k("v_lshlrev_b32 v%d, 16, v%d" % (a + 8, HB + 2 * u + i))
            k("v_and_b32 v%d, 0xffff0000, v%d" % (a + 9, HB + 2 * u + i))
            k("v_pk_add_f32 %s, %s, %s" % (vr(a + 2 * i, 2), vr(a + 2 * i, 2), vr(a + 8, 2)))
        k("v_cvt_pk_bf16_f32 v%d, v%d, v%d" % (a + 4, a, a + 1))
        k("v_cvt_pk_bf16_f32 v%d, v%d, v%d" % (a + 5, a + 2, a + 3))
        k("buffer_store_dwordx2 %s, v%d, %s, s%d offen offset:%d" % (vr(a + 4, 2), vT + 3, RA, T[12], u * 32))
```

```python
import sys, struct, os
sys.path.insert(0, "dev")
import layout as L

NAME = "sequential_preLN__sliding_block__glu_gated_glu__prompt"
STAMPS = int(os.environ.get("STAMPS", "0"))
PF1 = int(os.environ.get("PF1", "0"))
WARM = int(os.environ.get("WARM", "0"))
WARM_DELAY = int(os.environ.get("WARM_DELAY", "64"))
POLL_SLEEP = int(os.environ.get("POLL_SLEEP", "8"))
STOP = int(os.environ.get("STOP", "99"))

def f32bits(x): return struct.unpack("<I", struct.pack("<f", x))[0]
def hx(x): return "0x%08x" % (x & 0xFFFFFFFF)
def vr(b, n=1): return "v%d" % b if n == 1 else "v[%d:%d]" % (b, b + n - 1)

class Kern:
    def __init__(self): self.L = []; self.nlab = 0
    def __call__(self, s): self.L.append("  " + s)
    def label(self, l): self.L.append(l + ":")
    def newlab(self):
        self.nlab += 1
        return ".Lm_%d" % self.nlab

class Q:
    def __init__(self, k, name, mx): self.k, self.q, self.name, self.mx = k, [], name, mx
    def op(self, tag, text): self.k(text); self.q.append(tag)
    def has(self, tag): return tag in self.q
    def wait(self, tag):
        idx = max(i for i, t in enumerate(self.q) if t == tag)
        self.k("s_waitcnt %s(%d)" % (self.name, min(self.mx, len(self.q) - 1 - idx)))

sw = 3
sWS, sA, sB, sDBG = 4, 8, 12, 36
P_X, P_WQKV, P_WO, P_G, P_U, P_D, P_OUT, P_DBG, P_WS = 16, 18, 20, 24, 26, 28, 30, 32, 34
sg, sq, ssub, si = 40, 41, 42, 43
T = list(range(44, 60))
R = "s[4:7]"; RA = "s[8:11]"; RB = "s[12:15]"; RD = "s[36:39]"
vS = 1
SC = os.environ.get("SC", " sc1")

def make_srd(k, d, base, nbytes):
    k("s_mov_b32 s%d, s%d" % (d, base))
    k("s_and_b32 s%d, s%d, 0xffff" % (d + 1, base + 1))
    k("s_mov_b32 s%d, %s" % (d + 2, hx(nbytes)))
    k("s_mov_b32 s%d, 0x00020000" % (d + 3))

STSEL = [int(x) for x in os.environ.get("STSEL", ",".join(str(i) for i in range(20))).split(",")]
def stamp(k, i):
    if STAMPS and i in STSEL:
        j = STSEL.index(i)
        k("%s s[%d:%d]" % ("s_memtime" if STAMPS == 2 else "s_memrealtime", 60 + 2 * j, 61 + 2 * j))
def stamp_out(k):
    if not STAMPS: return
    k("s_waitcnt lgkmcnt(0)")
    k("s_lshl_b32 s58, s2, 3")
    k("s_add_u32 s58, s58, s%d" % sw)
    k("s_lshl_b32 s58, s58, 7")
    k("s_add_u32 s58, s58, %d" % L.DBG)
    k("v_mov_b32 v2, 0")
    for i in range(20):
        k("v_mov_b32 v3, s%d" % (60 + 2 * i))
        k("buffer_store_dword v3, v2, %s, s58 offen offset:%d" % (R, 4 * i))

def rnd_bf16(k, d, s):
    k("v_cvt_pk_bf16_f32 v%d, v%d, v%d" % (d, s, s))
    k("v_lshlrev_b32 v%d, 16, v%d" % (d, d))

def ln_stats(k, vsum, vsq, vmean, vrstd, t0):
    k("v_mul_f32 v%d, %s, v%d" % (vmean, hx(f32bits(1.0 / 576)), vsum))
    k("v_mul_f32 v%d, %s, v%d" % (t0, hx(f32bits(1.0 / 576)), vsq))
    k("v_fma_f32 v%d, -v%d, v%d, v%d" % (t0, vmean, vmean, t0))
    k("v_max_f32 v%d, 0, v%d" % (t0, t0))
    rnd_bf16(k, vmean, vmean)
    rnd_bf16(k, t0, t0)
    k("v_add_f32 v%d, %s, v%d" % (t0, hx(f32bits(1e-5)), t0))
    rnd_bf16(k, t0, t0)
    k("v_sqrt_f32 v%d, v%d" % (t0, t0))
    k("s_nop 0")
    rnd_bf16(k, t0, t0)
    k("v_rcp_f32 v%d, v%d" % (vrstd, t0))
    k("s_nop 0")

def sum_rows(k, regs, tmp):
    for op in ("v_permlane32_swap_b32", "v_permlane16_swap_b32"):
        for a, t in zip(regs, tmp): k("v_mov_b32 v%d, v%d" % (t, a))
        k("s_nop 1")
        for a, t in zip(regs, tmp): k("%s v%d, v%d" % (op, a, t))
        k("s_nop 1")
        for a, t in zip(regs, tmp): k("v_add_f32 v%d, v%d, v%d" % (a, a, t))

sT = 101
def signal(k, val, spare=False, drain=True, vt=2, wave=0):
    if drain: k("s_waitcnt vmcnt(0) lgkmcnt(0)")
    k("s_barrier")
    lab = k.newlab()
    k("s_cmp_lg_u32 s%d, %d" % (sw, wave))
    k("s_cbranch_scc1 %s" % lab)
    k("s_mul_i32 s%d, s%d, %d" % (T[0], sg, 8 * L.FPITCH))
    k("s_lshl_b32 s%d, s%d, 2" % (T[1], si))
    k("s_add_u32 s%d, s%d, s%d" % (T[0], T[0], T[1]))
    k("s_add_u32 s%d, s%d, %d" % (T[0], T[0], L.FLG))
    k("s_add_u32 s%d, s%d, %d" % (T[1], sT, val))
    k("v_mov_b32 v%d, s%d" % (vt, T[1]))
    k("v_mul_u32_u24 v%d, %d, v0" % (vt + 1, L.FPITCH))
    if spare:
        lab2 = k.newlab()
        k("s_cmp_lt_u32 s%d, 6" % ssub)
        k("s_cbranch_scc1 %s" % lab2)
        k("s_lshl_b32 s%d, s%d, 2" % (T[2], sg))
        k("s_add_u32 s%d, s%d, s%d" % (T[2], T[2], sq))
        k("s_lshl_b32 s%d, s%d, 1" % (T[2], T[2]))
        k("s_and_b32 s%d, s%d, 1" % (T[3], ssub))
        k("s_add_u32 s%d, s%d, s%d" % (T[2], T[2], T[3]))
        k("s_lshl_b32 s%d, s%d, 2" % (T[2], T[2]))
        k("s_add_u32 s%d, s%d, %d" % (T[2], T[2], L.FSP))
        k("s_mov_b32 exec_hi, 0")
        k("buffer_store_dword v%d, v%d, %s, s%d offen sc1" % (vt, vt + 1, R, T[2]))
        k.label(lab2)
    k("s_mov_b64 exec, 0xff")
    k("buffer_store_dword v%d, v%d, %s, s%d offen sc1" % (vt, vt + 1, R, T[0]))
    k("s_mov_b64 exec, -1")
    k.label(lab)

def poll(k, req, vt):
    loop = k.newlab(); done = k.newlab()
    val = req(k, vt, vt + 1)
    k("s_add_u32 s%d, s%d, %d" % (T[1], sT, val))
    k("s_mov_b32 s%d, 0" % T[0])
    k("s_nop 2")
    k("s_mov_b64 exec, vcc")
    k.label(loop)
    k("buffer_load_dword v%d, v%d, %s, 0 offen sc1" % (vt + 2, vt, R))
    k("s_add_u32 s%d, s%d, 1" % (T[0], T[0]))
    k("s_waitcnt vmcnt(0)")
    k("v_subrev_u32 v%d, s%d, v%d" % (vt + 2, T[1], vt + 2))
    k("v_cmp_le_u32 vcc, %d, v%d" % (16 - val, vt + 2))
    k("s_nop 3")
    k("s_cmp_eq_u64 vcc, 0")
    k("s_cbranch_scc1 %s" % done)
    k("s_sleep %d" % POLL_SLEEP)
    k("s_cmp_lt_u32 s%d, 0x20000" % T[0])
    k("s_cbranch_scc1 %s" % loop)
    k.label(done)
    k("s_mov_b64 exec, -1")

def wait_flags(k, req, vt=2, wave=0):
    lab = k.newlab()
    k("s_cmp_lg_u32 s%d, %d" % (sw, wave))
    k("s_cbranch_scc1 %s" % lab)
    poll(k, req, vt)
    k.label(lab)
    k("s_barrier")

def req_group(val, sg2=None, mask=None):
    def f(k, va, vt):
        k("s_lshl_b32 s%d, s%d, 3" % (T[2], sg))
        k("s_add_u32 s%d, s%d, s%d" % (T[2], T[2], ssub))
        k("s_mul_i32 s%d, s%d, %d" % (T[2], T[2], L.FPITCH))
        k("s_add_u32 s%d, s%d, %d" % (T[2], T[2], L.FLG))
        k("v_and_b32 v%d, 31, v0" % vt)
        k("v_lshlrev_b32 v%d, 2, v%d" % (va, vt))
        if sg2 is not None:
            k("s_lshl_b32 s%d, s%d, 3" % (T[3], sg2))
            k("s_add_u32 s%d, s%d, s%d" % (T[3], T[3], ssub))
            k("s_mul_i32 s%d, s%d, %d" % (T[3], T[3], L.FPITCH))
            k("s_add_u32 s%d, s%d, %d" % (T[3], T[3], L.FLG))
            k("s_mov_b32 exec_lo, 0")
            k("v_add_u32 v%d, s%d, v%d" % (va, T[3], va))
            k("s_mov_b32 exec_lo, -1")
            k("s_mov_b32 exec_hi, 0")
            k("v_add_u32 v%d, s%d, v%d" % (va, T[2], va))
            k("s_mov_b32 exec_hi, -1")
        else:
            k("v_add_u32 v%d, s%d, v%d" % (va, T[2], va))
        if mask is None: k("s_mov_b64 vcc, -1")
        else: mask(k, vt)
        if sg2 is None:
            k("s_nop 3")
            k("s_mov_b32 vcc_hi, 0")
        return val
    return f
def mask_qkv(k, vt):
    k("v_and_b32 v%d, 7, v%d" % (vt, vt))
    k("v_cmp_gt_u32 vcc, 6, v%d" % vt)
def mask_q(k, vt):
    k("v_lshrrev_b32 v%d, 3, v%d" % (vt, vt))
    k("v_cmp_eq_u32 vcc, s%d, v%d" % (sq, vt))
def mask_sub(k, vt):
    k("v_and_b32 v%d, 7, v%d" % (vt, vt))
    k("v_cmp_eq_u32 vcc, s%d, v%d" % (ssub, vt))
def req_spare(k, va, vt):
    k("s_lshr_b32 s%d, s2, 3" % T[2])
    k("s_mul_i32 s%d, s%d, %d" % (T[2], T[2], L.FPITCH))
    k("s_add_u32 s%d, s%d, %d" % (T[2], T[2], L.FSP))
    k("v_lshlrev_b32 v%d, 2, v0" % va)
    k("v_add_u32 v%d, s%d, v%d" % (va, T[2], va))
    k("s_mov_b64 vcc, -1")
    return 1

def epoch_update(k):
    lab = k.newlab()
    k("s_cmp_lg_u32 s2, 0")
    k("s_cbranch_scc1 %s" % lab)
    k("s_cmp_lg_u32 s%d, 0" % sw)
    k("s_cbranch_scc1 %s" % lab)
    for gp in range(4):
        def rq(k, va, vt, gp=gp):
            k("v_lshrrev_b32 v%d, 5, v0" % vt)
            k("v_mul_u32_u24 v%d, %d, v%d" % (vt, 8 * L.FPITCH, vt))
            k("v_and_b32 v%d, 31, v0" % va)
            k("v_lshl_add_u32 v%d, v%d, 2, v%d" % (va, va, vt))
            k("v_add_u32 v%d, %d, v%d" % (va, L.FLG + gp * 16 * L.FPITCH, va))
            k("s_mov_b64 vcc, -1")
            return 1
        poll(k, rq, 2)
    k("v_mov_b32 v2, s%d" % sT)
    k("s_mov_b32 s%d, %d" % (T[0], L.EPOCH))
    k("s_mov_b64 exec, 1")
    k("buffer_store_dword v2, off, %s, s%d sc1" % (R, T[0]))
    k("s_mov_b64 exec, -1")
    k.label(lab)

def prologue(k):
    k("s_cmp_ge_u32 s2, 256")
    k("s_cbranch_scc1 .L_end")
    stamp(k, 0)
    k("s_load_dwordx16 s[16:31], s[0:1], 0")
    k("s_load_dwordx4 s[32:35], s[0:1], 64")
    k("v_lshrrev_b32 v1, 6, v0")
    k("v_and_b32 v0, 63, v0")
    k("v_readfirstlane_b32 s%d, v1" % sw)
    k("v_lshlrev_b32 v%d, 4, v0" % vS)
    k("s_and_b32 s%d, s2, 7" % T[0])
    k("s_lshr_b32 s%d, s2, 3" % T[1])
    k("s_and_b32 s%d, s%d, 1" % (sg, T[0]))
    k("s_lshl_b32 s%d, s%d, 2" % (sg, sg))
    k("s_and_b32 s%d, s%d, 3" % (T[2], T[1]))
    k("s_add_u32 s%d, s%d, s%d" % (sg, sg, T[2]))
    k("s_lshr_b32 s%d, s%d, 1" % (sq, T[0]))
    k("s_lshr_b32 s%d, s%d, 2" % (ssub, T[1]))
    k("s_lshl_b32 s%d, s%d, 3" % (si, sq))
    k("s_add_u32 s%d, s%d, s%d" % (si, si, ssub))
    k("s_waitcnt lgkmcnt(0)")
    make_srd(k, sWS, P_WS, 1 << 28)
    k("s_add_u32 s%d, s%d, %d" % (T[0], P_WS, L.EPOCH))
    k("s_addc_u32 s%d, s%d, 0" % (T[1], P_WS + 1))
    k("s_load_dword s%d, s[%d:%d], 0" % (sT, T[0], T[1]))

def div18(k, vq, vrho, vcc_, vt):
    k("v_mul_u32_u24 v%d, 3641, v%d" % (vrho, vq))
    k("v_lshrrev_b32 v%d, 16, v%d" % (vrho, vrho))
    k("v_mul_u32_u24 v%d, 18, v%d" % (vt, vrho))
    k("v_sub_u32 v%d, v%d, v%d" % (vcc_, vq, vt))

def half_offsets(k, vdst, vT, pitch, mode, sbase=None):
    for j in range(5):
        q, rho, t2, t3 = vT, vT + 1, vT + 2, vT + 3
        k("v_add_u32 v%d, %d, v0" % (q, 64 * j))
        div18(k, q, rho, q, t2)
        if mode == "leftover":
            k("v_lshrrev_b32 v%d, 1, v%d" % (t2, rho))
            k("v_mul_u32_u24 v%d, 18, v%d" % (t2, t2))
            k("v_and_b32 v%d, 1, v%d" % (rho, rho))
            k("v_add3_u32 v%d, v%d, v%d, 16" % (rho, rho, t2))
        elif mode == "swap23":
            k("v_and_b32 v%d, 3, v%d" % (t2, rho))
            k("v_and_b32 v%d, 4, v%d" % (t3, rho))
            k("v_lshl_or_b32 v%d, v%d, 1, v%d" % (t2, t3, t2))
            k("v_bfe_u32 v%d, v%d, 3, 1" % (t3, rho))
            k("v_lshl_or_b32 v%d, v%d, 2, v%d" % (rho, t3, t2))
        k("v_mul_u32_u24 v%d, %d, v%d" % (t2, pitch, rho))
        k("v_lshl_add_u32 v%d, v%d, 4, v%d" % (vdst + j, q, t2))
        if sbase is not None: k("v_add_u32 v%d, s%d, v%d" % (vdst + j, sbase, vdst + j))
        if 0 < j < 4: k("v_subrev_u32 v%d, %d, v%d" % (vdst + j, j * 1024, vdst + j))
        if j == 4:
            k("v_mov_b32 v%d, 0x7ff00000" % t2)
            k("v_cmp_gt_u32 vcc, 32, v0")
            k("s_nop 1")
            k("v_cndmask_b32 v%d, v%d, v%d, vcc" % (vdst + j, t2, vdst + j))

def tr_addr(k, vdst, vT, halfpitch):
    k("v_bfe_u32 v%d, v0, 5, 1" % vT)
    k("v_mul_u32_u24 v%d, %d, v%d" % (vT, halfpitch, vT))
    k("v_bfe_u32 v%d, v0, 2, 3" % (vT + 1))
    k("v_mul_u32_u24 v%d, 288, v%d" % (vT + 1, vT + 1))
    k("v_and_b32 v%d, 3, v0" % (vT + 2))
    k("v_lshlrev_b32 v%d, 3, v%d" % (vT + 2, vT + 2))
    k("v_add3_u32 v%d, v%d, v%d, v%d" % (vdst, vT, vT + 1, vT + 2))

import stages
def build():
    k = Kern()
    prologue(k)
    stages.emit_all(k, sys.modules[__name__])
    k.label(".L_fin")
    epoch_update(k)
    if STAMPS:
        k("s_waitcnt vmcnt(0)")
        stamp(k, 19)
        stamp_out(k)
    k.label(".L_end")
    k("s_endpgm")
    hdr = open("cdna_kernels/%s.s.ref" % NAME).read().split("; Override launch")[0]
    kn = NAME + "_kernel"
    o = hdr + "; @launch grid=(256,1,1) block=(512,1,1) lds=163840\n"
    o += '.amdgcn_target "amdgcn-amd-amdhsa--gfx950"\n.text\n.globl %s\n.p2align 8\n.type %s,@function\n%s:\n' % (kn, kn, kn)
    o += "\n".join(k.L) + "\n"
    o += ('.section .rodata,"a"\n.p2align 6\n.amdhsa_kernel %s\n  .amdhsa_next_free_vgpr 256\n  .amdhsa_next_free_sgpr 102\n'
          "  .amdhsa_accum_offset 256\n  .amdhsa_group_segment_fixed_size 0\n  .amdhsa_kernarg_size 80\n"
          "  .amdhsa_user_sgpr_count 2\n  .amdhsa_user_sgpr_kernarg_segment_ptr 1\n"
          "  .amdhsa_system_sgpr_workgroup_id_x 1\n.end_amdhsa_kernel\n") % kn
    return o

if __name__ == "__main__":
    out = sys.argv[1] if len(sys.argv) > 1 else "out.s"
    open(out, "w").write(build())
    print("wrote", out)
```

```python
import layout as L
import os

def emit_all(k, M):
    g = globals()
    for n in dir(M):
        if not n.startswith("__"): g[n] = getattr(M, n)
    s1(k)
    if STOP <= 1: return
    s2(k)
    if STOP <= 2: return
    s3(k)
    if STOP <= 3: return
    s45(k)

S4SLOT = 36864
def s4_srd(k):
    k("s_cmp_lt_u32 s%d, 4" % sw)
    k("s_cselect_b32 s%d, s%d, s%d" % (T[2], P_G, P_U))
    k("s_cselect_b32 s%d, s%d, s%d" % (T[3], P_G + 1, P_U + 1))
    make_srd(k, sB, T[2], 576 * 9216)
def s4_offsets(k, vO, vT):
    k("s_and_b32 s%d, s%d, 3" % (T[0], sw))
    k("s_mul_i32 s%d, s%d, %d" % (T[0], T[0], 48 * 9216))
    k("s_mul_i32 s%d, s%d, 288" % (T[1], si))
    k("s_add_u32 s%d, s%d, s%d" % (T[0], T[0], T[1]))
    for j in range(5):
        k("v_add_u32 v%d, %d, v0" % (vT, 64 * j))
        k("v_mul_u32_u24 v%d, 10923, v%d" % (vT + 1, vT))
        k("v_lshrrev_b32 v%d, 16, v%d" % (vT + 1, vT + 1))
        k("v_mul_u32_u24 v%d, %d, v%d" % (vT + 1, 9216 - 96, vT + 1))
        k("v_lshl_add_u32 v%d, v%d, 4, v%d" % (vO + j, vT, vT + 1))
        k("v_add_u32 v%d, s%d, v%d" % (vO + j, T[0], vO + j))
        if 0 < j < 4: k("v_subrev_u32 v%d, %d, v%d" % (vO + j, j * 1024, vO + j))
def s4_wdma(k, vO, s, j, emit=None):
    ps, st = divmod(s, 3)
    if j == 0 or j == 4:
        k("s_mul_i32 s%d, s%d, 4608" % (T[0], sw))
        k("s_add_u32 m0, s%d, %d" % (T[0], (s % 4) * S4SLOT + j * 1024))
    if ps == 1: k("s_mov_b32 s%d, %d" % (T[0], st * 192 * 9216 + 96))
    else:
        k("s_bitcmp1_b32 s%d, 0" % si)
        k("s_cselect_b32 s%d, %d, %d" % (T[0], (2 - ps) * 96, ps * 96))
        if st: k("s_add_u32 s%d, s%d, %d" % (T[0], T[0], st * 192 * 9216))
    if j == 4: k("s_mov_b32 exec_hi, 0")
    (emit or k)("buffer_load_dwordx4 v%d, %s, s%d offen offset:%d lds" % (vO + j, RB, T[0], (j % 4) * 1024))
    if j == 4: k("s_mov_b32 exec_hi, -1")

def fin_epoch(k):
    k("s_waitcnt lgkmcnt(0)")
    k("s_add_u32 s%d, s%d, 16" % (sT, sT))
    k("s_and_b32 s%d, s%d, 0xfffffff0" % (sT, sT))

def s1(k):
    SLOT = 36864; WOFF = 16384; STA = 4 * SLOT; STB = STA + 512; CSL = STA + 1024
    smt, snt, sM0x, sM0w, sh = T[8], T[9], T[10], T[11], T[12]
    k("s_cmp_ge_u32 s%d, 6" % ssub)
    k("s_cbranch_scc1 .L_s1_pp")
    k("s_mul_i32 s%d, s%d, 3" % (snt, sq))
    k("s_lshr_b32 s%d, s%d, 1" % (T[0], ssub))
    k("s_add_u32 s%d, s%d, s%d" % (snt, snt, T[0]))
    k("s_lshl_b32 s%d, s%d, 1" % (smt, sg))
    k("s_and_b32 s%d, s%d, 1" % (T[0], ssub))
    k("s_add_u32 s%d, s%d, s%d" % (smt, smt, T[0]))
    k("s_and_b32 s%d, s%d, 3" % (sh, sw))
    k("s_lshl_b32 s%d, s%d, 12" % (sM0x, sh))
    def xaddr(vXa, vT):
        k("v_and_b32 v%d, 15, v0" % vT)
        k("v_lshrrev_b32 v%d, 4, v0" % (vT + 1))
        k("v_lshrrev_b32 v%d, 1, v%d" % (vT + 2, vT))
        k("v_xor_b32 v%d, v%d, v%d" % (vT + 2, vT + 2, vT + 1))
        k("v_lshlrev_b32 v%d, 7, v%d" % (vT + 3, vT))
        k("v_add_u32 v%d, s%d, v%d" % (vT + 3, sM0x, vT + 3))
        k("v_lshl_add_u32 v%d, v%d, 4, v%d" % (vXa + 0, vT + 2, vT + 3))
        k("v_xor_b32 v%d, 4, v%d" % (vT + 2, vT + 2))
        k("v_lshl_add_u32 v%d, v%d, 4, v%d" % (vXa + 2, vT + 2, vT + 3))
        k("v_add_u32 v%d, %d, v%d" % (vXa + 1, 2 * SLOT, vXa + 0))
        k("v_add_u32 v%d, %d, v%d" % (vXa + 3, 2 * SLOT, vXa + 2))
    k("s_cmp_lt_u32 s%d, 4" % sw)
    k("s_cbranch_scc1 .L_s1_comp")
    vXo, vWo, vT = 2, 6, 19
    make_srd(k, sA, P_X, 2048 * 1152)
    make_srd(k, sB, P_WQKV, 576 * 3456)
    k("s_lshl_b32 s%d, s%d, 7" % (T[0], smt))
    k("s_lshl_b32 s%d, s%d, 5" % (T[1], sh))
    k("s_add_u32 s%d, s%d, s%d" % (T[0], T[0], T[1]))
    k("v_lshrrev_b32 v%d, 3, v0" % vT)
    k("v_add_u32 v%d, s%d, v%d" % (vT, T[0], vT))
    k("v_mul_u32_u24 v%d, 1152, v%d" % (vT, vT))
    k("v_lshrrev_b32 v%d, 4, v0" % (vT + 1))
    k("v_and_b32 v%d, 7, v0" % (vT + 2))
    k("v_xor_b32 v%d, v%d, v%d" % (vT + 2, vT + 2, vT + 1))
    k("v_xor_b32 v%d, 4, v%d" % (vT + 3, vT + 2))
    for j in range(4):
        k("v_lshl_add_u32 v%d, v%d, 4, v%d" % (vXo + j, vT + 2 + (j & 1), vT))
        if j: k("v_add_u32 v%d, %d, v%d" % (vXo + j, j * 8 * 1152 - j * 1024, vXo + j))
    def dma_x(c):
        k("s_add_u32 m0, s%d, %d" % (sM0x, (c % 4) * SLOT))
        k("s_mov_b32 s%d, %d" % (T[0], c * 128))
        for j in range(4):
            k("buffer_load_dwordx4 v%d, %s, s%d offen offset:%d lds" % (vXo + j, RA, T[0], j * 1024))
    def dma_w(c):
        k("s_add_u32 m0, s%d, %d" % (sM0w, (c % 4) * SLOT))
        k("s_mov_b32 s%d, %d" % (T[1], c * 64 * 3456))
        for j in range(4):
            k("buffer_load_dwordx4 v%d, %s, s%d offen offset:%d lds" % (vWo + j, RB, T[1], j * 1024))
        k("s_add_u32 m0, s%d, %d" % (sM0w, (c % 4) * SLOT + 4096))
        k("s_nop 0")
        k("buffer_load_dwordx4 v%d, %s, s%d offen lds" % (vWo + 4, RB, T[1]))
    dma_x(0)
    k("s_mul_i32 s%d, s%d, %d" % (T[2], sh, 16 * 3456))
    k("s_mul_i32 s%d, s%d, 288" % (T[3], snt))
    k("s_add_u32 s%d, s%d, s%d" % (T[2], T[2], T[3]))
    k("s_mul_i32 s%d, s%d, 5120" % (sM0w, sh))
    k("s_add_u32 s%d, s%d, %d" % (sM0w, sM0w, WOFF))
    half_offsets(k, vWo, vT, 3456, "swap23", sbase=T[2])
    dma_w(0)
    dma_x(1); dma_w(1)
    stamp(k, 1)
    issued = 2
    for c in range(9):
        k("s_waitcnt vmcnt(%d)" % (9 * (issued - 1 - c)))
        k("s_barrier")
        while issued < 9 and issued <= c + 3:
            dma_x(issued); dma_w(issued); issued += 1
        if c == 6:
            lab = k.newlab()
            k("s_cmp_lg_u32 s%d, 4" % sw)
            k("s_cbranch_scc1 %s" % lab)
            fin_epoch(k)
            if not os.environ.get("NOSW"): poll(k, req_spare, vt=30)
            k("v_lshlrev_b32 v%d, 3, v0" % vT)
            k("s_lshl_b32 s%d, s%d, 9" % (T[0], smt))
            k("s_add_u32 s%d, s%d, %d" % (T[0], T[0], L.ST1))
            k("buffer_load_dwordx2 v[40:41], v%d, %s, s%d offen%s" % (vT, R, T[0], SC))
            k("s_add_u32 s%d, s%d, 8192" % (T[0], T[0]))
            k("buffer_load_dwordx2 v[42:43], v%d, %s, s%d offen%s" % (vT, R, T[0], SC))
            k("s_mul_i32 s%d, s%d, 576" % (T[0], snt))
            k("s_add_u32 s%d, s%d, %d" % (T[0], T[0], L.CS1))
            k("v_min_u32 v%d, 560, v%d" % (vT + 1, vS))
            k("buffer_load_dwordx4 v[44:47], v%d, %s, s%d offen%s" % (vT + 1, R, T[0], SC))
            k("s_add_u32 s%d, s%d, 6912" % (T[0], T[0]))
            k("buffer_load_dwordx4 v[48:51], v%d, %s, s%d offen%s" % (vT + 1, R, T[0], SC))
            k("s_mov_b32 s%d, 1.0" % T[2])
            k("s_cmp_lt_u32 s%d, 4" % snt)
            k("s_cselect_b32 s%d, %s, s%d" % (T[2], hx(f32bits(L.QSCALE)), T[2]))
            k("v_add_u32 v%d, %d, v%d" % (vT, STA, vT))
            k("v_add_u32 v%d, %d, v%d" % (vT + 1, CSL, vT + 1))
            k("s_waitcnt vmcnt(0)")
            for i in range(4): k("v_mul_f32 v%d, s%d, v%d" % (40 + i, T[2], 40 + i))
            for i in range(4): k("v_add_f32 v%d, v%d, v%d" % (44 + i, 44 + i, 48 + i))
            k("ds_write_b64 v%d, v[40:41]" % vT)
            k("ds_write_b64 v%d, v[42:43] offset:512" % vT)
            k("ds_write_b128 v%d, v[44:47]" % (vT + 1))
            k("s_waitcnt lgkmcnt(0)")
            k.label(lab)
    k("s_barrier")
    k("s_cmp_lg_u32 s%d, 11" % snt)
    k("s_cbranch_scc1 .L_s1_done")
    k("s_cmp_lg_u32 s%d, 1" % sh)
    k("s_cbranch_scc1 .L_s1_done")
    for i in range(4): k("v_mov_b32 v%d, 0x3f803f80" % (40 + i))
    k("v_lshrrev_b32 v%d, 2, v0" % vT)
    k("v_mul_u32_u24 v%d, %d, v%d" % (vT, L.VPL, vT))
    k("v_and_b32 v%d, 3, v0" % (vT + 1))
    k("v_lshl_add_u32 v%d, v%d, 4, v%d" % (vT, vT + 1, vT))
    k("s_mul_i32 s%d, s%d, %d" % (T[0], smt, 16 * L.VPL))
    k("s_add_u32 s%d, s%d, %d" % (T[0], T[0], L.VP + 9216))
    k("buffer_store_dwordx4 v[40:43], v%d, %s, s%d offen%s" % (vT, R, T[0], SC))
    k("s_branch .L_s1_done")
    k.label(".L_s1_comp")
    vXa, vWa, vT = 2, 6, 8
    XF, WF, ACC, CSV, ST = 16, 32, 104, 176, 212
    if CODEPF:
        lab = k.newlab()
        k("s_cmp_lg_u32 s%d, 0" % ssub)
        k("s_cbranch_scc1 %s" % lab)
        k("s_getpc_b64 s[%d:%d]" % (T[0], T[1]))
        k.label(".L_pcref")
        k("s_sub_u32 s%d, s%d, .L_pcref-%s_kernel" % (T[0], T[0], NAME))
        k("s_subb_u32 s%d, s%d, 0" % (T[1], T[1]))
        k("s_lshl_b32 s%d, s%d, 13" % (T[2], sw))
        k("v_lshlrev_b32 v%d, 7, v0" % vT)
        k("v_add_u32 v%d, s%d, v%d" % (vT, T[2], vT))
        for j in range(3):
            k("v_min_u32 v%d, .L_end-%s_kernel, v%d" % (vT + 1 + j, NAME, vT))
            k("global_load_dword v%d, v%d, s[%d:%d]" % (CSV + 4 + j, vT + 1 + j, T[0], T[1]))
            k("v_add_u32 v%d, 32768, v%d" % (vT, vT))
        k.label(lab)
    if PF1:
        make_srd(k, sA, P_X, 2048 * 1152)
        make_srd(k, sB, P_WQKV, 576 * 3456)
        k("s_and_b32 s%d, s%d, 3" % (T[0], sg))
        k("s_mul_i32 s%d, s%d, 6" % (T[0], T[0]))
        k("s_add_u32 s%d, s%d, s%d" % (T[0], T[0], ssub))
        k("s_lshl_b32 s%d, s%d, 2" % (T[0], T[0]))
        k("s_add_u32 s%d, s%d, s%d" % (T[0], T[0], sw))
        k("s_mul_i32 s%d, s%d, %d" % (T[3], T[0], 6 * 3456))
        k("s_mul_i32 s%d, s%d, 864" % (T[2], sq))
        k("s_add_u32 s%d, s%d, s%d" % (T[3], T[3], T[2]))
        k("v_lshrrev_b32 v%d, 3, v0" % vT)
        k("v_min_u32 v%d, 5, v%d" % (vT, vT))
        k("v_mul_u32_u24 v%d, 3456, v%d" % (vT, vT))
        k("v_and_b32 v%d, 7, v0" % (vT + 1))
        k("v_lshlrev_b32 v%d, 7, v%d" % (vT + 1, vT + 1))
        k("v_min_u32 v%d, 860, v%d" % (vT + 1, vT + 1))
        k("v_add_u32 v%d, v%d, v%d" % (vT, vT, vT + 1))
        k("buffer_load_dword v%d, v%d, %s, s%d offen" % (CSV, vT, RB, T[3]))
        k("s_mul_i32 s%d, s%d, %d" % (T[1], T[0], 96 * 128))
        k("s_lshr_b32 s%d, s%d, 2" % (T[2], sg))
        k("s_mul_i32 s%d, s%d, %d" % (T[2], T[2], 1024 * 1152))
        k("s_add_u32 s%d, s%d, s%d" % (T[1], T[1], T[2]))
        k("v_lshlrev_b32 v%d, 7, v0" % (vT + 2))
        k("buffer_load_dword v%d, v%d, %s, s%d offen" % (CSV + 1, vT + 2, RA, T[1]))
        k("v_and_b32 v%d, 31, v0" % (vT + 3))
        k("v_lshlrev_b32 v%d, 7, v%d" % (vT + 3, vT + 3))
        k("s_add_u32 s%d, s%d, 8192" % (T[1], T[1]))
        k("buffer_load_dword v%d, v%d, %s, s%d offen" % (CSV + 2, vT + 3, RA, T[1]))
    xaddr(vXa, vT)
    tr_addr(k, vWa, vT, 5120)
    k("v_add_u32 v%d, %d, v%d" % (vWa, WOFF, vWa))
    k("v_add_u32 v%d, %d, v%d" % (vWa + 1, 2 * SLOT, vWa))
    def reads(s):
        c, ksl, buf = s // 2, s & 1, s & 1
        sl = c % 4; hi = sl >> 1; so = (sl & 1) * SLOT
        out = []
        for t in range(2):
            out.append("ds_read_b128 %s, v%d offset:%d" % (vr(XF + (buf * 2 + t) * 4, 4), vXa + ksl * 2 + hi, so + t * 2048))
        for u in range(9):
            for h in range(2):
                out.append("ds_read_b64_tr_b16 %s, v%d offset:%d" % (vr(WF + (buf * 9 + u) * 4 + 2 * h, 2), vWa + hi,
                           so + ksl * 10240 + h * 2304 + u * 32))
        return out
    k("s_cmp_ge_u32 s%d, 8" % snt)
    k("s_cbranch_scc1 .L_s1_v")
    for ori in ("qk", "v"):
        if ori == "v": k.label(".L_s1_v")
        k("s_barrier")
        stamp(k, 1)
        for r in reads(0): k(r)
        for s in range(18):
            buf = s & 1
            k("s_waitcnt lgkmcnt(0)")
            rd = []
            if s + 1 < 18:
                if (s + 1) % 2 == 0: k("s_barrier")
                rd = reads(s + 1)
            i = 0
            for u in range(9):
                for t in range(2):
                    a, b = vr(WF + (buf * 9 + u) * 4, 4), vr(XF + (buf * 2 + t) * 4, 4)
                    if ori == "v": a, b = b, a
                    d = vr(ACC + (t * 9 + u) * 4, 4)
                    k("v_mfma_f32_16x16x32_bf16 %s, %s, %s, %s" % (d, a, b, "0" if s == 0 else d))
                    for _ in range(2 if i < 2 else 1):
                        if rd: k(rd.pop(0))
                    i += 1
        stamp(k, 2)
        k("s_waitcnt vmcnt(0)")
        k("v_and_b32 v%d, 15, v0" % vT)
        k("v_lshrrev_b32 v%d, 4, v0" % (vT + 1))
        k("s_lshl_b32 s%d, s%d, 7" % (T[0], sw))
        k("s_add_u32 s%d, s%d, %d" % (T[0], T[0], STA))
        if ori == "qk":
            k("v_lshlrev_b32 v%d, 2, v%d" % (vT + 2, vT))
            k("v_add_u32 v%d, s%d, v%d" % (vT + 2, T[0], vT + 2))
            k("v_lshlrev_b32 v%d, 4, v%d" % (vT + 3, vT + 1))
            k("v_add_u32 v%d, %d, v%d" % (vT + 3, CSL, vT + 3))
            k("s_and_b32 s%d, s%d, 3" % (T[0], snt))
            k("s_mul_i32 s%d, s%d, 18" % (T[0], T[0]))
            k("s_lshl_b32 s%d, s%d, 2" % (T[1], smt))
            k("s_add_u32 s%d, s%d, s%d" % (T[1], T[1], sw))
            k("s_mul_i32 s%d, s%d, 72" % (T[1], T[1]))
            k("s_add_u32 s%d, s%d, s%d" % (T[0], T[0], T[1]))
            k("s_lshl_b32 s%d, s%d, 9" % (T[0], T[0]))
            k("s_mov_b32 s%d, %d" % (T[1], L.QP))
            k("s_cmp_lt_u32 s%d, 4" % snt)
            k("s_cselect_b32 s%d, s%d, %d" % (T[1], T[1], L.KP))
            k("s_add_u32 s%d, s%d, s%d" % (T[0], T[0], T[1]))
            k("s_barrier")
            for t in range(2):
                k("ds_read_b32 v%d, v%d offset:%d" % (ST + 2 * t, vT + 2, t * 64))
                k("ds_read_b32 v%d, v%d offset:%d" % (ST + 2 * t + 1, vT + 2, 512 + t * 64))
            for u in range(9): k("ds_read_b128 %s, v%d offset:%d" % (vr(CSV + 4 * u, 4), vT + 3, u * 64))
            for u in range(9):
                k("s_waitcnt lgkmcnt(%d)" % (8 - u))
                e = WF + 4 * u
                for t in range(2):
                    a = ACC + (t * 9 + u) * 4; ab = vr(ST + 2 * t, 2)
                    for p in range(2):
                        k("v_pk_mul_f32 %s, %s, %s op_sel_hi:[1,0]" % (vr(a + 2 * p, 2), vr(a + 2 * p, 2), ab))
                    for p in range(2):
                        k("v_pk_fma_f32 %s, %s, %s, %s op_sel:[0,1,0]" % (vr(a + 2 * p, 2), vr(CSV + 4 * u + 2 * p, 2), ab, vr(a + 2 * p, 2)))
                for t in range(2):
                    a = ACC + (t * 9 + u) * 4
                    for p in range(2): k("v_cvt_pk_bf16_f32 v%d, v%d, v%d" % (e + 2 * t + p, a + 2 * p, a + 2 * p + 1))
                k("s_nop 1")
                k("v_permlane16_swap_b32 v%d, v%d" % (e, e + 2))
                k("v_permlane16_swap_b32 v%d, v%d" % (e + 1, e + 3))
                if u and u % 4 == 0: k("s_add_u32 s%d, s%d, 4096" % (T[0], T[0]))
                k("s_nop 0")
                k("buffer_store_dwordx4 %s, v%d, %s, s%d offen offset:%d%s" % (vr(e, 4), vS, R, T[0], (u % 4) * 1024, SC))
            k("s_branch .L_s1_done")
        else:
            k("v_lshlrev_b32 v%d, 4, v%d" % (vT + 2, vT + 1))
            k("v_add_u32 v%d, s%d, v%d" % (vT + 2, T[0], vT + 2))
            k("v_lshlrev_b32 v%d, 2, v%d" % (vT + 3, vT))
            k("v_add_u32 v%d, %d, v%d" % (vT + 3, CSL, vT + 3))
            k("s_and_b32 s%d, s%d, 3" % (T[0], snt))
            k("s_mul_i32 s%d, s%d, 2304" % (T[0], T[0]))
            k("s_lshl_b32 s%d, s%d, 2" % (T[1], smt))
            k("s_add_u32 s%d, s%d, s%d" % (T[1], T[1], sw))
            k("s_mul_i32 s%d, s%d, %d" % (T[1], T[1], 4 * L.VPL))
            k("s_add_u32 s%d, s%d, s%d" % (T[0], T[0], T[1]))
            k("s_add_u32 s%d, s%d, %d" % (T[0], T[0], L.VP))
            k("v_mul_u32_u24 v%d, %d, v%d" % (vT + 4, L.VPL, vT + 1))
            k("v_lshl_add_u32 v%d, v%d, 4, v%d" % (vT + 4, vT, vT + 4))
            k("s_barrier")
            for t in range(2):
                k("ds_read_b128 %s, v%d offset:%d" % (vr(ST + 8 * t, 4), vT + 2, t * 64))
                k("ds_read_b128 %s, v%d offset:%d" % (vr(ST + 8 * t + 4, 4), vT + 2, 512 + t * 64))
            for u in range(9): k("ds_read_b32 v%d, v%d offset:%d" % (CSV + 2 * u, vT + 3, u * 64))
            for u in range(9):
                k("s_waitcnt lgkmcnt(%d)" % (8 - u))
                e = WF + 4 * u
                for t in range(2):
                    a = ACC + (t * 9 + u) * 4
                    for p in range(2):
                        k("v_pk_mul_f32 %s, %s, %s" % (vr(a + 2 * p, 2), vr(a + 2 * p, 2), vr(ST + 8 * t + 2 * p, 2)))
                    for p in range(2):
                        k("v_pk_fma_f32 %s, %s, %s, %s op_sel_hi:[0,1,1]" % (vr(a + 2 * p, 2), vr(CSV + 2 * u, 2), vr(ST + 8 * t + 4 + 2 * p, 2), vr(a + 2 * p, 2)))
                for t in range(2):
                    a = ACC + (t * 9 + u) * 4
                    for p in range(2): k("v_cvt_pk_bf16_f32 v%d, v%d, v%d" % (e + 2 * t + p, a + 2 * p, a + 2 * p + 1))
                k("s_nop 1")
                k("v_permlane32_swap_b32 v%d, v%d" % (e, e + 2))
                k("v_permlane32_swap_b32 v%d, v%d" % (e + 1, e + 3))
                k("s_nop 1")
                k("buffer_store_dwordx4 %s, v%d, %s, s%d offen offset:%d%s" % (vr(e, 4), vT + 4, R, T[0], u * 256, SC))
            k("s_branch .L_s1_done")
    k.label(".L_s1_pp")
    s1_prepack(k)
    k.label(".L_s1_done")
    lab = k.newlab()
    k("s_cmp_lt_u32 s%d, 6" % ssub)
    k("s_cselect_b32 s%d, 4, 99" % T[0])
    k("s_cmp_eq_u32 s%d, s%d" % (sw, T[0]))
    k("s_cbranch_scc1 %s" % lab)
    fin_epoch(k)
    k.label(lab)
    stamp(k, 3)
    if WARM == 3:
        lab = k.newlab()
        k("s_cmp_ge_u32 s%d, 5" % sw)
        k("s_cselect_b32 s%d, s%d, 0" % (T[0], ssub))
        k("s_cmp_ge_u32 s%d, 6" % T[0])
        k("s_cbranch_scc1 %s" % lab)
        k("s_waitcnt vmcnt(0)")
        k.label(lab)
        k("s_waitcnt lgkmcnt(0)")
    signal(k, 1, spare=True, drain=(WARM != 3))
    stamp(k, 4)
    lab = k.newlab()
    k("s_cmp_lt_u32 s%d, 6" % ssub)
    k("s_cbranch_scc1 %s" % lab)
    k("s_cmp_lg_u32 s%d, 0" % sw)
    k("s_cbranch_scc1 %s" % lab)
    poll(k, req_spare, vt=30)
    k.label(lab)
    if WARM in (1, 4): warm_spare(k)

def s1_prepack(k):
    SL = 10240; HF_ = 5120; RED = 2 * SL
    sp, sM0, sS1, sD, sid = T[8], T[9], T[11], T[12], T[13]
    vO2, vA, vT = 7, 12, 16
    F = 28; X = 64; AC = 100
    k("s_lshl_b32 s%d, s%d, 2" % (sp, sg))
    k("s_add_u32 s%d, s%d, s%d" % (sp, sp, sq))
    k("s_lshl_b32 s%d, s%d, 1" % (sp, sp))
    k("s_and_b32 s%d, s%d, 1" % (T[0], ssub))
    k("s_add_u32 s%d, s%d, s%d" % (sp, sp, T[0]))
    k("v_lshrrev_b32 v%d, 3, v0" % vT)
    k("v_and_b32 v%d, 7, v0" % (vT + 1))
    k("v_lshlrev_b32 v%d, 4, v%d" % (vT + 1, vT + 1))
    k("s_cmp_ge_u32 s%d, 4" % sw)
    k("s_cbranch_scc1 .L_pp_cs")
    make_srd(k, sA, P_X, 2048 * 1152)
    k("v_mul_u32_u24 v%d, 1152, v%d" % (vT + 2, vT))
    k("v_add_u32 v%d, v%d, v%d" % (vT + 2, vT + 2, vT + 1))
    k("s_lshl_b32 s%d, s%d, 2" % (T[1], sp))
    k("s_add_u32 s%d, s%d, s%d" % (T[1], T[1], sw))
    k("s_mul_i32 s%d, s%d, %d" % (T[2], T[1], 8 * 1152))
    for j in range(9): k("buffer_load_dwordx4 %s, v%d, %s, s%d offen offset:%d" % (vr(X + 4 * j, 4), vT + 2, RA, T[2], j * 128))
    k("s_lshl_b32 s%d, s%d, 6" % (sid, sw))
    k("s_add_u32 s%d, s%d, s%d" % (sid, sid, sp))
    k("s_cmp_ge_u32 s%d, 72" % sid)
    k("s_cbranch_scc1 .L_pp_st")
    k("s_mul_i32 s%d, s%d, %d" % (sM0, sw, SL))
    make_srd(k, sB, P_WO, 576 * 1152)
    k("s_and_b32 s%d, s%d, 3" % (T[4], sid))
    k("s_lshr_b32 s%d, s%d, 2" % (T[5], sid))
    k("s_cmp_ge_u32 s%d, 16" % T[5])
    k("s_cbranch_scc1 .L_pp_wol")
    half_offsets(k, vO2, vT + 4, 1152, "nat")
    k("s_mul_i32 s%d, s%d, %d" % (sS1, T[5], 36 * 1152))
    k("s_mov_b32 s%d, %d" % (T[6], 18 * 1152))
    k("s_branch .L_pp_wo2")
    k.label(".L_pp_wol")
    half_offsets(k, vO2, vT + 4, 1152, "leftover")
    k("s_sub_u32 s%d, s%d, 16" % (sS1, T[5]))
    k("s_mul_i32 s%d, s%d, %d" % (sS1, sS1, 16 * 18 * 1152))
    k("s_mov_b32 s%d, %d" % (T[6], 8 * 18 * 1152))
    k.label(".L_pp_wo2")
    k("s_mul_i32 s%d, s%d, 288" % (T[3], T[4]))
    k("s_add_u32 s%d, s%d, s%d" % (sS1, sS1, T[3]))
    for hlf in range(2):
        if hlf: k("s_add_u32 s%d, s%d, s%d" % (sS1, sS1, T[6]))
        k("s_add_u32 m0, s%d, %d" % (sM0, hlf * HF_))
        k("s_nop 0")
        for j in range(4):
            k("buffer_load_dwordx4 v%d, %s, s%d offen offset:%d lds" % (vO2 + j, RB, sS1, j * 1024))
        k("s_add_u32 m0, s%d, %d" % (sM0, hlf * HF_ + 4096))
        k("s_nop 0")
        k("buffer_load_dwordx4 v%d, %s, s%d offen lds" % (vO2 + 4, RB, sS1))
    k.label(".L_pp_st")
    stamp(k, 1)
    for i in range(4): k("v_mov_b32 v%d, 0" % (AC + i))
    k("s_waitcnt vmcnt(0)")
    for i in range(36):
        a0, a1 = AC + 4 + 2 * (i & 1), AC + 5 + 2 * (i & 1)
        k("v_lshlrev_b32 v%d, 16, v%d" % (a0, X + i))
        k("v_and_b32 v%d, 0xffff0000, v%d" % (a1, X + i))
        k("v_add_f32 v%d, v%d, v%d" % (AC, AC, a0))
        k("v_add_f32 v%d, v%d, v%d" % (AC + 1, AC + 1, a1))
        k("v_fmac_f32 v%d, v%d, v%d" % (AC + 2, a0, a0))
        k("v_fmac_f32 v%d, v%d, v%d" % (AC + 3, a1, a1))
    k("v_add_f32 v%d, v%d, v%d" % (AC, AC, AC + 1))
    k("v_add_f32 v%d, v%d, v%d" % (AC + 2, AC + 2, AC + 3))
    for dpp in ("quad_perm:[1,0,3,2]", "quad_perm:[2,3,0,1]", "row_half_mirror"):
        k("s_nop 1")
        k("v_add_f32_dpp v%d, v%d, v%d %s row_mask:0xf bank_mask:0xf" % (AC + 1, AC, AC, dpp))
        k("v_add_f32_dpp v%d, v%d, v%d %s row_mask:0xf bank_mask:0xf" % (AC + 3, AC + 2, AC + 2, dpp))
        k("v_mov_b32 v%d, v%d" % (AC, AC + 1))
        k("v_mov_b32 v%d, v%d" % (AC + 2, AC + 3))
    ln_stats(k, AC, AC + 2, AC + 4, AC + 5, AC + 6)
    k("v_mul_f32 v%d, -v%d, v%d" % (AC + 4, AC + 4, AC + 5))
    k("v_lshlrev_b32 v%d, 2, v%d" % (vT + 2, vT))
    k("s_lshl_b32 s%d, s%d, 5" % (T[2], T[1]))
    k("s_add_u32 s%d, s%d, %d" % (T[2], T[2], L.ST1))
    k("s_mov_b32 exec_lo, 0x01010101")
    k("s_mov_b32 exec_hi, 0x01010101")
    k("buffer_store_dword v%d, v%d, %s, s%d offen%s" % (AC + 5, vT + 2, R, T[2], SC))
    k("s_add_u32 s%d, s%d, 8192" % (T[2], T[2]))
    k("buffer_store_dword v%d, v%d, %s, s%d offen%s" % (AC + 4, vT + 2, R, T[2], SC))
    k("s_mov_b64 exec, -1")
    k("s_cmp_ge_u32 s%d, 72" % sid)
    k("s_cbranch_scc1 .L_pp_bar")
    tr_addr(k, vA, vT + 4, HF_)
    k("v_add_u32 v%d, s%d, v%d" % (vA, sM0, vA))
    k("s_mul_i32 s%d, s%d, %d" % (sD, T[4], 9 * 18))
    k("s_add_u32 s%d, s%d, s%d" % (sD, sD, T[5]))
    k("s_lshl_b32 s%d, s%d, 10" % (sD, sD))
    k("s_add_u32 s%d, s%d, %d" % (sD, sD, L.WOP))
    for u in range(9):
        for h in range(2):
            k("ds_read_b64_tr_b16 %s, v%d offset:%d" % (vr(F + 4 * u + 2 * h, 2), vA, h * 2304 + u * 32))
    k("s_waitcnt lgkmcnt(0)")
    for u in range(9):
        k("buffer_store_dwordx4 %s, v%d, %s, s%d offen%s" % (vr(F + 4 * u, 4), vS, R, sD, SC))
        k("s_add_u32 s%d, s%d, 18432" % (sD, sD))
    k("s_branch .L_pp_bar")
    k.label(".L_pp_cs")
    make_srd(k, sB, P_WQKV, 576 * 3456)
    k("v_mul_u32_u24 v%d, 3456, v%d" % (vT + 2, vT))
    k("v_add_u32 v%d, v%d, v%d" % (vT + 2, vT + 2, vT + 1))
    k("s_lshl_b32 s%d, s%d, 2" % (T[1], T[0]))
    k("s_add_u32 s%d, s%d, s%d" % (T[1], T[1], sw))
    k("s_sub_u32 s%d, s%d, 4" % (T[1], T[1]))
    k("s_mul_i32 s%d, s%d, %d" % (T[2], T[1], 72 * 3456))
    k("s_lshr_b32 s%d, s%d, 1" % (T[3], sp))
    k("s_lshl_b32 s%d, s%d, 7" % (T[4], T[3]))
    k("s_add_u32 s%d, s%d, s%d" % (T[2], T[2], T[4]))
    k("s_cmp_ge_u32 s%d, 54" % sp)
    k("s_cselect_b32 s%d, 0x7f000000, s%d" % (T[2], T[2]))
    for j in range(9):
        k("buffer_load_dwordx4 %s, v%d, %s, s%d offen" % (vr(X + 4 * j, 4), vT + 2, RB, T[2]))
        k("s_add_u32 s%d, s%d, %d" % (T[2], T[2], 8 * 3456))
    stamp(k, 1)
    NW3 = 0
    if WARM == 3:
        NW3 = 9
        warm3(k)
    for i in range(8): k("v_mov_b32 v%d, 0" % (AC + i))
    for j in range(9):
        k("s_waitcnt vmcnt(%d)" % (8 - j + NW3))
        for i in range(4):
            k("v_lshlrev_b32 v%d, 16, v%d" % (AC + 8 + 2 * i, X + 4 * j + i))
            k("v_and_b32 v%d, 0xffff0000, v%d" % (AC + 9 + 2 * i, X + 4 * j + i))
        for i in range(8): k("v_add_f32 v%d, v%d, v%d" % (AC + i, AC + i, AC + 8 + i))
    k("s_lshl_b32 s%d, s%d, 11" % (T[4], sw))
    k("s_add_u32 s%d, s%d, %d" % (T[4], T[4], RED - 4 * 2048))
    k("v_lshlrev_b32 v%d, 5, v0" % (vT + 2))
    k("v_add_u32 v%d, s%d, v%d" % (vT + 2, T[4], vT + 2))
    k("ds_write_b128 v%d, %s" % (vT + 2, vr(AC, 4)))
    k("ds_write_b128 v%d, %s offset:16" % (vT + 2, vr(AC + 4, 4)))
    k("s_waitcnt lgkmcnt(0)")
    k.label(".L_pp_bar")
    k("s_barrier")
    k("s_cmp_lg_u32 s%d, 4" % sw)
    k("s_cbranch_scc1 .L_pp_warm")
    k("v_lshlrev_b32 v%d, 2, v0" % (vT + 2))
    k("v_add_u32 v%d, %d, v%d" % (vT + 3, RED, vT + 2))
    for i in range(32): k("ds_read_b32 v%d, v%d offset:%d" % (X + i, vT + 3, i * 256))
    k("s_waitcnt lgkmcnt(0)")
    for st in (16, 8, 4, 2, 1):
        for i in range(st): k("v_add_f32 v%d, v%d, v%d" % (X + i, X + i, X + i + st))
    k("s_mul_i32 s%d, s%d, 6912" % (T[2], T[0]))
    k("s_lshl_b32 s%d, s%d, 8" % (T[4], T[3]))
    k("s_add_u32 s%d, s%d, s%d" % (T[2], T[2], T[4]))
    k("s_add_u32 s%d, s%d, %d" % (T[2], T[2], L.CS1))
    k("s_cmp_ge_u32 s%d, 54" % sp)
    k("s_cselect_b32 s%d, 0x7f000000, s%d" % (T[2], T[2]))
    k("buffer_store_dword v%d, v%d, %s, s%d offen%s" % (X, vT + 2, R, T[2], SC))
    k.label(".L_pp_warm")

def warm_spare(k):
    vT, F = 16, 244
    lab = k.newlab()
    k("s_cmp_lt_u32 s%d, 6" % ssub)
    k("s_cbranch_scc1 %s" % lab)
    make_srd(k, sA, P_G, 576 * 9216)
    make_srd(k, sB, P_U, 576 * 9216)
    k("s_lshl_b32 s%d, s%d, 1" % (T[1], sg))
    k("s_and_b32 s%d, s%d, 1" % (T[0], ssub))
    k("s_add_u32 s%d, s%d, s%d" % (T[1], T[1], T[0]))
    k("s_lshl_b32 s%d, s%d, 3" % (T[1], T[1]))
    k("s_add_u32 s%d, s%d, s%d" % (T[1], T[1], sw))
    k("s_mul_i32 s%d, s%d, 81" % (T[4], T[1]))
    k("s_mul_i32 s%d, s%d, 2304" % (T[2], sq))
    for j in range(2):
        k("v_add_u32 v%d, %d, v0" % (vT, 64 * j))
        k("v_min_u32 v%d, 80, v%d" % (vT, vT))
        k("v_add_u32 v%d, s%d, v%d" % (vT, T[4], vT))
        k("v_lshlrev_b32 v%d, 7, v%d" % (vT + 8 + j, vT))
        k("v_mul_u32_u24 v%d, 58255, v%d" % (vT + 1, vT))
        k("v_lshrrev_b32 v%d, 20, v%d" % (vT + 1, vT + 1))
        k("v_mul_u32_u24 v%d, %d, v%d" % (vT + 1, 9216 - 2304, vT + 1))
        k("v_add_u32 v%d, v%d, v%d" % (vT + 4 + j, vT + 8 + j, vT + 1))
        if j == 1: k("s_mov_b64 exec, 0x1ffff")
        k("buffer_load_dword v%d, v%d, %s, s%d offen" % (F + 2 * j, vT + 4 + j, RA, T[2]))
        k("buffer_load_dword v%d, v%d, %s, s%d offen" % (F + 2 * j + 1, vT + 4 + j, RB, T[2]))
    k("s_mov_b64 exec, -1")
    if WARM == 1:
        make_srd(k, sA, P_D, 4608 * 1152)
        k("s_mul_i32 s%d, s%d, %d" % (T[3], sq, 1152 * 1152))
        k("buffer_load_dword v%d, v%d, %s, s%d offen" % (F + 8, vT + 8, RA, T[3]))
        k("s_mov_b64 exec, 0x1ffff")
        k("buffer_load_dword v%d, v%d, %s, s%d offen" % (F + 9, vT + 9, RA, T[3]))
        k("s_mov_b64 exec, -1")
    k.label(lab)

def warm3(k):
    vT, F = 140, 160
    k("s_cmp_eq_u32 s%d, 6" % sw)
    k("s_cselect_b32 s%d, s%d, s%d" % (T[4], P_U, P_G)); k("s_cselect_b32 s%d, s%d, s%d" % (T[5], P_U + 1, P_G + 1))
    k("s_mov_b32 s%d, %d" % (T[6], 9216 - 2304))
    k("s_mul_i32 s%d, s%d, 2304" % (T[7], sq))
    k("s_mul_i32 s%d, s%d, %d" % (T[14], sq, 1152 * 1152))
    k("s_cmp_eq_u32 s%d, 7" % sw)
    k("s_cselect_b32 s%d, s%d, s%d" % (T[4], P_D, T[4])); k("s_cselect_b32 s%d, s%d, s%d" % (T[5], P_D + 1, T[5]))
    k("s_cselect_b32 s%d, 0, s%d" % (T[6], T[6]))
    k("s_cselect_b32 s%d, s%d, s%d" % (T[7], T[14], T[7]))
    k("s_cmp_eq_u32 s%d, 4" % sw)
    k("s_cselect_b32 s%d, 0x7f000000, s%d" % (T[7], T[7]))
    make_srd(k, sA, T[4], 576 * 9216)
    k("s_lshl_b32 s%d, s%d, 1" % (T[14], sg))
    k("s_add_u32 s%d, s%d, s%d" % (T[14], T[14], T[0]))
    k("s_mul_i32 s%d, s%d, 648" % (T[14], T[14]))
    for j in range(9):
        k("v_add_u32 v%d, %d, v0" % (vT, 72 * j))
        k("v_add_u32 v%d, s%d, v%d" % (vT, T[14], vT))
        k("v_mul_u32_u24 v%d, 58255, v%d" % (vT + 1, vT))
        k("v_lshrrev_b32 v%d, 20, v%d" % (vT + 1, vT + 1))
        k("v_mul_lo_u32 v%d, s%d, v%d" % (vT + 1, T[6], vT + 1))
        k("v_lshl_add_u32 v%d, v%d, 7, v%d" % (vT, vT, vT + 1))
        k("buffer_load_dword v%d, v%d, %s, s%d offen" % (F + j, vT, RA, T[7]))

def warm(k, vT, vdst):
    lab = k.newlab()
    k("s_and_b32 s%d, s%d, 3" % (T[0], sg))
    k("s_lshl_b32 s%d, s%d, 3" % (T[0], T[0]))
    k("s_add_u32 s%d, s%d, s%d" % (T[0], T[0], ssub))
    k("s_lshl_b32 s%d, s%d, 3" % (T[0], T[0]))
    k("s_add_u32 s%d, s%d, s%d" % (T[0], T[0], sw))
    k("s_min_u32 s%d, s%d, 242" % (T[0], T[0]))
    k("s_mov_b32 s%d, s%d" % (T[2], P_G)); k("s_mov_b32 s%d, s%d" % (T[3], P_G + 1))
    k("s_mov_b32 s%d, %d" % (T[1], 9216 - 2304))
    k("s_mul_i32 s%d, s%d, 2304" % (T[13], sq))
    k("s_cmp_ge_u32 s%d, 81" % T[0])
    k("s_cselect_b32 s%d, s%d, s%d" % (T[2], P_U, T[2])); k("s_cselect_b32 s%d, s%d, s%d" % (T[3], P_U + 1, T[3]))
    k("s_cselect_b32 s%d, 81, 0" % T[14])
    k("s_mul_i32 s%d, s%d, %d" % (T[15], sq, 1152 * 1152))
    k("s_cmp_ge_u32 s%d, 162" % T[0])
    k("s_cselect_b32 s%d, s%d, s%d" % (T[2], P_D, T[2])); k("s_cselect_b32 s%d, s%d, s%d" % (T[3], P_D + 1, T[3]))
    k("s_cselect_b32 s%d, 162, s%d" % (T[14], T[14]))
    k("s_cselect_b32 s%d, 0, s%d" % (T[1], T[1]))
    k("s_cselect_b32 s%d, s%d, s%d" % (T[13], T[15], T[13]))
    make_srd(k, sA, T[2], 576 * 9216)
    k("s_sub_u32 s%d, s%d, s%d" % (T[0], T[0], T[14]))
    k("s_lshr_b32 s%d, s%d, 2" % (T[14], sg))
    k("s_mul_i32 s%d, s%d, 81" % (T[14], T[14]))
    k("s_add_u32 s%d, s%d, s%d" % (T[0], T[0], T[14]))
    k("s_lshl_b32 s%d, s%d, 6" % (T[0], T[0]))
    k("v_add_u32 v%d, s%d, v0" % (vT, T[0]))
    k("v_mul_u32_u24 v%d, 58255, v%d" % (vT + 1, vT))
    k("v_lshrrev_b32 v%d, 20, v%d" % (vT + 1, vT + 1))
    k("v_mul_lo_u32 v%d, s%d, v%d" % (vT + 1, T[1], vT + 1))
    k("v_lshl_add_u32 v%d, v%d, 7, v%d" % (vT, vT, vT + 1))
    k("v_add_u32 v%d, s%d, v%d" % (vdst, T[13], vT))

def s2(k):
    LB = 73728
    KI, VI, QI = 0, 24576, 45056
    BIAS = 36864
    shd, sqb, sgp = si, T[8], T[9]
    sC = 80
    SB = 16
    M0_, M8_, CM = 64, 80, 96
    KF = 112
    VF = 184
    O = 216; Q_ = 232
    vKa, vKb, vVa, vQb, vT, vM = 2, 3, 4, 5, 6, 14
    NEG = hx(f32bits(-1e30))
    k("s_lshl_b32 s%d, s%d, 3" % (sqb, sg))
    k("s_add_u32 s%d, s%d, s%d" % (sqb, sqb, sw))
    k("s_mul_i32 s%d, s%d, 9" % (T[4], shd))
    k("s_lshr_b32 s%d, s%d, 2" % (T[4], T[4]))
    k("s_lshl_b32 s%d, s%d, 9" % (T[4], T[4]))
    k("s_mul_i32 s%d, s%d, %d" % (T[5], sg, 8 * 36864))
    k("s_add_u32 s%d, s%d, s%d" % (T[4], T[4], T[5]))
    k("s_add_u32 s%d, s%d, %d" % (T[5], T[4], L.QP))
    k("s_add_u32 s%d, s%d, %d" % (T[4], T[4], L.KP - 8 * 36864))
    k("s_mul_i32 s%d, s%d, %d" % (T[6], sg, 32 * L.VPL))
    k("s_add_u32 s%d, s%d, %d" % (T[6], T[6], L.VP - 32 * L.VPL))
    k("s_mul_i32 s%d, s%d, 288" % (T[12], shd))
    k("s_lshl_b32 s%d, s%d, 6" % (T[7], sw))
    k("v_add_u32 v%d, s%d, v0" % (vT, T[7]))
    OFF = KF
    k("v_mov_b32 v%d, 0x7ff00000" % (vT + 4))
    k("s_cmp_eq_u32 s%d, 0" % sg)
    k("s_cselect_b32 s%d, 768, 0" % T[10])
    k("s_cselect_b32 s%d, 640, 0" % T[11])
    k("s_cselect_b32 s%d, 8, 0" % T[13])
    for i in range(3):
        k("v_add_u32 v%d, %d, v%d" % (vT + 1, 512 * i, vT))
        k("v_mul_u32_u24 v%d, 43691, v%d" % (vT + 2, vT + 1))
        k("v_lshrrev_b32 v%d, 22, v%d" % (vT + 2, vT + 2))
        k("v_mul_u32_u24 v%d, %d, v%d" % (vT + 3, 36864 - 1536, vT + 2))
        k("v_lshl_add_u32 v%d, v%d, 4, v%d" % (OFF + 6 + i, vT + 1, vT + 3))
        k("v_mul_u32_u24 v%d, 3277, v%d" % (vT + 2, vT + 1))
        k("v_lshrrev_b32 v%d, 16, v%d" % (vT + 2, vT + 2))
        k("v_mul_u32_u24 v%d, 20, v%d" % (vT + 3, vT + 2))
        k("v_sub_u32 v%d, v%d, v%d" % (vT + 3, vT + 1, vT + 3))
        k("v_cmp_gt_u32 vcc, 18, v%d" % (vT + 3))
        k("v_lshlrev_b32 v%d, 4, v%d" % (vT + 3, vT + 3))
        k("v_add_u32 v%d, s%d, v%d" % (vT + 3, T[12], vT + 3))
        k("v_mov_b32 v%d, 9216" % (vT + 5))
        k("v_cndmask_b32 v%d, v%d, v%d, vcc" % (vT + 3, vT + 5, vT + 3))
        k("v_mul_u32_u24 v%d, %d, v%d" % (vT + 2, L.VPL, vT + 2))
        k("v_add_u32 v%d, v%d, v%d" % (OFF + 3 + i, vT + 2, vT + 3))
        k("v_cmp_gt_u32 vcc, s%d, v%d" % (T[10], vT + 1))
        k("v_cmp_gt_u32 s[%d:%d], s%d, v%d" % (sC, sC + 1, T[11], vT + 1))
        k("s_nop 1")
        k("v_cndmask_b32 v%d, v%d, v%d, vcc" % (OFF + i, OFF + 6 + i, vT + 4))
        k("v_cndmask_b32 v%d, v%d, v%d, s[%d:%d]" % (OFF + 3 + i, OFF + 3 + i, vT + 4, sC, sC + 1))
    k("v_cmp_gt_u32 vcc, s%d, v0" % T[13])
    k("v_mov_b32 v%d, 0xf149" % (vT + 2))
    k("v_mul_u32_u24 v%d, 1536, v0" % (vT + 1))
    k("v_cndmask_b32 v%d, 0, v%d, vcc" % (SB, vT + 2))
    for i in range(1, 4): k("v_mov_b32 v%d, 0" % (SB + i))
    k("s_mov_b64 exec, 0xffff")
    k("ds_write_b128 v%d, %s offset:%d" % (vT + 1, vr(SB, 4), BIAS))
    k("s_mov_b64 exec, -1")
    k("v_and_b32 v%d, 31, v0" % vT)
    k("v_lshrrev_b32 v%d, 5, v0" % (vT + 1))
    k("s_mul_i32 s%d, s%d, 1536" % (T[0], sw))
    k("s_add_u32 s%d, s%d, %d" % (T[1], T[0], LB))
    k("v_add_u32 v%d, s%d, v%d" % (vKa, T[1], vS))
    k("v_lshlrev_b32 v%d, 4, v%d" % (vT + 2, vT))
    k("v_add_u32 v%d, s%d, v%d" % (vQb, T[1], vT + 2))
    k("v_add_u32 v%d, 1024, v%d" % (vQb, vQb))
    k("s_add_u32 s%d, s%d, %d" % (T[1], T[0], BIAS))
    k("v_mov_b32 v%d, s%d" % (vKb, T[1]))
    k("v_cmp_gt_u32 vcc, 32, v0")
    k("s_mul_i32 s%d, s%d, 1280" % (T[0], sw))
    k("s_add_u32 s%d, s%d, %d" % (T[0], T[0], LB))
    k("v_cndmask_b32 v%d, v%d, v%d, vcc" % (vKb, vKb, vQb))
    k("v_mul_u32_u24 v%d, 320, v%d" % (vVa, vT + 1))
    k("v_add3_u32 v%d, v%d, v%d, s%d" % (vVa, vVa, vT + 2, T[0]))
    k("v_lshlrev_b32 v%d, 2, v%d" % (vT + 2, vT + 1))
    k("v_sub_u32 v%d, v%d, v%d" % (vT + 2, vT, vT + 2))
    k("v_mov_b32 v%d, %s" % (vT + 3, NEG))
    for half in range(2):
        for r8 in range(8):
            r = half * 8 + r8
            k("v_cmp_le_i32 s[%d:%d], %d, v%d" % (sC + 2 * r8, sC + 2 * r8 + 1, 8 * (r >> 2) + (r & 3), vT + 2))
        for r8 in range(8):
            r = half * 8 + r8
            k("v_cndmask_b32 v%d, v%d, 0, s[%d:%d]" % (M8_ + r, vT + 3, sC + 2 * r8, sC + 2 * r8 + 1))
            k("v_cndmask_b32 v%d, 0, v%d, s[%d:%d]" % (M0_ + r, vT + 3, sC + 2 * r8, sC + 2 * r8 + 1))
    k("s_lshl_b32 s%d, s%d, 1" % (T[0], shd))
    k("s_and_b32 s%d, s%d, 7" % (T[0], T[0]))
    k("v_lshlrev_b32 v%d, 3, v%d" % (vT + 4, vT + 1))
    k("v_subrev_u32 v%d, s%d, v%d" % (vT + 4, T[0], vT + 4))
    for p in range(8):
        k("v_add_u32 v%d, %d, v%d" % (vT + 5, (p >> 2) * 16 + (p & 3) * 2, vT + 4))
        k("v_cmp_gt_u32 s[%d:%d], 18, v%d" % (sC + 2 * p, sC + 2 * p + 1, vT + 5))
    k("v_mul_u32_u24 v%d, 0x3f80, v%d" % (vT + 6, vT + 1))
    s4_srd(k)
    s4_offsets(k, 200, 210)
    k("s_sub_u32 s%d, s%d, 1" % (sgp, sg))
    k("s_max_i32 s%d, s%d, 0" % (sgp, sgp))
    k("s_lshl_b32 s%d, s%d, 10" % (T[7], sw))
    wait_flags(k, req_group(1, sgp, mask_qkv), vt=240)
    stamp(k, 5)
    def dma(img, i, voff, soff, wlim):
        lab = None
        if wlim < 8:
            lab = k.newlab()
            k("s_cmp_ge_u32 s%d, %d" % (sw, wlim))
            k("s_cbranch_scc1 %s" % lab)
        k("s_add_u32 m0, s%d, %d" % (T[7], LB + img + i * 8192))
        k("s_nop 0")
        k("buffer_load_dwordx4 v%d, %s, s%d offen%s lds" % (voff, R, soff, SC))
        if lab: k.label(lab)
    dma(QI, 0, OFF + 6, T[5], 8); dma(QI, 1, OFF + 7, T[5], 4)
    for i in range(3): dma(KI, i, OFF + i, T[4], 8)
    dma(VI, 2, OFF + 5, T[6], 4)
    for i in range(2): dma(VI, i, OFF + 3 + i, T[6], 8)
    k("s_waitcnt vmcnt(2) lgkmcnt(0)")
    k("s_barrier")
    stamp(k, 6)
    order = [8, 7, 6, 5, 4, 3, 2, 1, 0]
    lq = Q(k, "lgkmcnt", 15)
    lq.op("q", "ds_read_b128 %s, v%d offset:%d" % (vr(Q_, 4), vKa, QI))
    lq.op("q", "ds_read_b128 %s, v%d offset:%d" % (vr(Q_ + 4, 4), vQb, QI))
    def kread(n):
        j = order[n]
        lq.op("k%d" % n, "ds_read_b128 %s, v%d offset:%d" % (vr(KF + 8 * n, 4), vKa, KI + j * 1536))
        lq.op("k%d" % n, "ds_read_b128 %s, v%d offset:%d" % (vr(KF + 8 * n + 4, 4), vKb, KI + j * 1536))
    def vread(n):
        j = order[n]
        for ks in range(2):
            lq.op("v%d" % n, "ds_read_b128 %s, v%d offset:%d" % (vr(VF + 8 * (n % 4) + 4 * ks, 4), vVa, VI + j * 1280 + ks * 640))
    for n in range(5): kread(n)
    lq.wait("q")
    for p in range(8): k("v_cndmask_b32 v%d, %s, v%d, s[%d:%d]" % (Q_ + p, "v%d" % (vT + 6) if p == 4 else "0", Q_ + p, sC + 2 * p, sC + 2 * p + 1))
    for i in range(16): k("v_mov_b32 v%d, 0" % (O + i))
    def qk(n, part, cfirst):
        sb = vr(SB + 16 * (n % 3), 16)
        if part == 0: k("v_mfma_f32_32x32x16_bf16 %s, %s, %s, %s" % (sb, vr(KF + 8 * n, 4), vr(Q_, 4), cfirst))
        else: k("v_mfma_f32_32x32x16_bf16 %s, %s, %s, %s" % (sb, vr(KF + 8 * n + 4, 4), vr(Q_ + 4, 4), sb))
    ch = [vT + 4, vT + 5, vM, vM + 1]
    def mx(n):
        o = []
        b = SB + 16 * (n % 3)
        for i in range(8):
            c = ch[i & 3]
            if n == 0 and i < 4: o.append("v_max_f32 v%d, v%d, v%d" % (c, b + 2 * i, b + 2 * i + 1))
            else: o.append("v_max3_f32 v%d, v%d, v%d, v%d" % (c, c, b + 2 * i, b + 2 * i + 1))
        return o
    for n in range(11):
        f = mx(n - 2) if n >= 2 else []
        if n < 9:
            if n + 5 < 9: kread(n + 5)
            lq.wait("k%d" % n)
            for x in f[:4]: k(x)
            qk(n, 0, vr(M8_, 16) if n == 0 else (vr(M0_, 16) if n == 8 else "0"))
            for x in f[4:]: k(x)
            qk(n, 1, None)
            if n < 2: k("s_nop 3")
            if EARLYW and 2 <= n < 7: s4_wdma(k, 200, 0, n - 2)
        else:
            if n == 9: k("s_nop 3")
            if n == 10: k("s_nop 1")
            for x in f: k(x)
    k("s_waitcnt vmcnt(%d)" % (5 if EARLYW else 0))
    k("s_barrier")
    for n in range(3): vread(n)
    k("v_max3_f32 v%d, v%d, v%d, v%d" % (vM, vM, ch[0], ch[1]))
    k("v_max_f32 v%d, v%d, v%d" % (vM, vM, vM + 1))
    k("v_mov_b32 v%d, v%d" % (vM + 1, vM))
    k("s_nop 1")
    k("v_permlane32_swap_b32 v%d, v%d" % (vM, vM + 1))
    k("s_nop 1")
    k("v_max_f32 v%d, v%d, v%d" % (vM, vM, vM + 1))
    for r in range(16): k("v_sub_f32 v%d, v%d, v%d" % (M8_ + r, M8_ + r, vM))
    for r in range(16): k("v_sub_f32 v%d, 0, v%d" % (CM + r, vM))
    stamp(k, 7)
    def pv(n, ks):
        b = SB + 16 * (n % 3)
        k("v_mfma_f32_32x32x16_bf16 %s, %s, %s, %s" % (vr(O, 16), vr(VF + 8 * (n % 4) + 4 * ks, 4), vr(b + 4 * ks, 4), vr(O, 16)))
    for n in range(11):
        ex = []
        if 1 <= n <= 9:
            b = SB + 16 * ((n - 1) % 3)
            ex = ["v_exp_f32 v%d, v%d" % (b + r, b + r) for r in range(16)]
            cv = ["v_cvt_pk_bf16_f32 v%d, v%d, v%d" % (b + i, b + 2 * i, b + 2 * i + 1) for i in range(8)]
        mf = []
        if n >= 2:
            lq.wait("v%d" % (n - 2))
            mf += [lambda n=n: pv(n - 2, 0), lambda n=n: pv(n - 2, 1)]
        if n < 9:
            c = vr(M8_, 16) if n == 0 else (vr(M0_, 16) if n == 8 else vr(CM, 16))
            mf += [lambda n=n, c=c: qk(n, 0, c), lambda n=n: qk(n, 1, None)]
        if n == 1:
            mf[0](); mf[1](); mf = []
            for r in range(16): k("v_sub_f32 v%d, v%d, v%d" % (M0_ + r, M0_ + r, vM))
        for i in range(4):
            if mf: mf.pop(0)()
            for x in ex[4 * i:4 * i + 4]: k(x)
        if ex:
            for x in cv: k(x)
        if 2 <= n and n + 1 < 9: vread(n + 1)
        if n == 9: k("s_nop 1")
    k("v_lshrrev_b32 v%d, 4, v%d" % (vT + 2, vT))
    k("v_mul_u32_u24 v%d, 18432, v%d" % (vT + 2, vT + 2))
    k("v_and_b32 v%d, 15, v%d" % (vT + 3, vT))
    k("v_lshl_add_u32 v%d, v%d, 4, v%d" % (vT + 2, vT + 3, vT + 2))
    k("v_lshl_add_u32 v%d, v%d, 8, v%d" % (vT + 3, vT + 1, vT + 2))
    k("s_mul_i32 s%d, s%d, 36864" % (T[0], sqb))
    k("s_add_u32 s%d, s%d, %d" % (T[0], T[0], L.OP))
    k("s_lshl_b32 s%d, s%d, 9" % (T[1], shd))
    k("s_add_u32 s%d, s%d, s%d" % (T[1], T[1], T[0]))
    k("s_lshr_b32 s%d, s%d, 4" % (T[2], shd))
    k("s_add_u32 s%d, s%d, 16" % (T[2], T[2]))
    k("s_lshl_b32 s%d, s%d, 10" % (T[2], T[2]))
    k("s_add_u32 s%d, s%d, s%d" % (T[2], T[2], T[0]))
    for bit, sh in ((3, 9), (1, 8), (2, 3), (0, 2)):
        k("s_bfe_u32 s%d, s%d, 0x1000%d" % (T[3], shd, bit))
        k("s_lshl_b32 s%d, s%d, %d" % (T[3], T[3], sh))
        k("s_add_u32 s%d, s%d, s%d" % (T[2], T[2], T[3]))
    k("v_mov_b32 v%d, v%d" % (vM, O + 10))
    k("v_mov_b32 v%d, v%d" % (vM + 1, O + 10))
    k("s_nop 1")
    k("v_permlane32_swap_b32 v%d, v%d" % (vM, vM + 1))
    k("s_nop 1")
    k("v_rcp_f32 v%d, v%d" % (vM, vM))
    k("s_nop 0")
    for r in range(10): k("v_mul_f32 v%d, v%d, v%d" % (O + r, O + r, vM))
    for i in range(5): k("v_cvt_pk_bf16_f32 v%d, v%d, v%d" % (O + i, O + 2 * i, O + 2 * i + 1))
    k("buffer_store_dwordx4 %s, v%d, %s, s%d offen%s" % (vr(O, 4), vT + 3, R, T[1], SC))
    k("s_mov_b32 exec_hi, 0")
    k("buffer_store_dword v%d, v%d, %s, s%d offen%s" % (O + 4, vT + 2, R, T[2], SC))
    k("s_mov_b32 exec_hi, -1")
    stamp(k, 8)
    if STOP <= 2:
        signal(k, 2)
        stamp(k, 9)

def s3(k):
    OI, XI, SI = 73728, 131072, 131072 + 9216
    stt = T[8]
    vT = 2
    OF = 12
    WF = 28
    WX = 100
    ACC = 172
    E = 184
    k("s_lshl_b32 s%d, s%d, 3" % (stt, sg))
    k("s_add_u32 s%d, s%d, s%d" % (stt, stt, ssub))
    make_srd(k, sA, P_X, 2048 * 1152)
    k("s_mul_i32 s%d, s%d, 9" % (T[4], sq))
    k("s_mul_i32 s%d, s%d, 36864" % (T[6], stt))
    k("s_mul_i32 s%d, s%d, 288" % (T[7], sq))
    k("s_add_u32 s%d, s%d, s%d" % (T[6], T[6], T[7]))
    def wloads(dst, sidx):
        k("s_add_u32 s%d, s%d, %s" % (T[5], T[4], sidx))
        k("s_mul_i32 s%d, s%d, 18432" % (T[5], T[5]))
        k("s_add_u32 s%d, s%d, %d" % (T[5], T[5], L.WOP))
        for ks in range(18):
            if ks and ks % 4 == 0: k("s_add_u32 s%d, s%d, 4096" % (T[5], T[5]))
            k("buffer_load_dwordx4 %s, v%d, %s, s%d offen offset:%d%s" % (vr(dst + 4 * ks, 4), vS, R, T[5], (ks % 4) * 1024, SC))
    def xdma(sidx):
        k("s_lshl_b32 s%d, s%d, 6" % (T[7], sidx))
        k("v_add_u32 v%d, s%d, v0" % (vT, T[7]))
        k("v_mul_u32_u24 v%d, 3641, v%d" % (vT + 1, vT))
        k("v_lshrrev_b32 v%d, 16, v%d" % (vT + 1, vT + 1))
        k("v_mul_u32_u24 v%d, %d, v%d" % (vT + 1, 1152 - 288, vT + 1))
        k("v_lshl_add_u32 v%d, v%d, 4, v%d" % (vT + 1, vT, vT + 1))
        k("s_lshl_b32 s%d, s%d, 10" % (T[7], sidx))
        k("s_add_u32 m0, s%d, %d" % (T[7], XI))
        k("s_nop 0")
        k("buffer_load_dwordx4 v%d, %s, s%d offen lds" % (vT + 1, RA, T[6]))
    lab = k.newlab(); lab2 = k.newlab(); lab3 = k.newlab(); lab4 = k.newlab()
    k("s_cmp_ge_u32 s%d, 4" % sw)
    k("s_cbranch_scc1 %s" % lab)
    wloads(WF, "s%d" % sw)
    xdma(sw)
    k("s_waitcnt vmcnt(19)")
    k("s_cmp_ge_u32 s%d, 2" % sw)
    k("s_cbranch_scc1 %s" % lab2)
    wloads(WX, "8")
    k("s_branch %s" % lab3)
    k.label(lab2)
    k("s_add_u32 s%d, s%d, 6" % (T[9], sw))
    k("s_cmp_eq_u32 s%d, 9" % T[9])
    k("s_cbranch_scc1 %s" % lab3)
    xdma(T[9])
    k("s_branch %s" % lab3)
    k.label(lab)
    k("s_waitcnt vmcnt(0)")
    k.label(lab3)
    signal(k, 2, drain=False, vt=E, wave=7)
    k("s_cmp_lt_u32 s%d, 4" % sw)
    k("s_cbranch_scc1 %s" % lab4)
    wloads(WF, "s%d" % sw)
    xdma(sw)
    k.label(lab4)
    stamp(k, 9)
    k("v_and_b32 v%d, 15, v0" % vT)
    k("v_lshrrev_b32 v%d, 4, v0" % (vT + 1))
    k("v_mul_u32_u24 v%d, 288, v%d" % (vT + 2, vT))
    k("v_lshl_add_u32 v%d, v%d, 3, v%d" % (vT + 2, vT + 1, vT + 2))
    k("v_add_u32 v%d, %d, v%d" % (vT + 2, XI, vT + 2))
    k("s_lshl_b32 s%d, s%d, 5" % (T[4], sw))
    k("v_add_u32 v%d, s%d, v%d" % (vT + 4, T[4], vT + 2))
    k("s_mul_i32 s%d, s%d, 4608" % (T[4], sw))
    k("v_add_u32 v%d, s%d, v%d" % (vT + 5, T[4], vT + 2))
    k("v_lshrrev_b32 v%d, 5, v0" % (vT + 3))
    k("v_mul_u32_u24 v%d, %d, v%d" % (vT + 3, 18432 - 512, vT + 3))
    k("v_add_u32 v%d, v%d, v%d" % (vT + 3, vT + 3, vS))
    k("v_add_u32 v%d, %d, v%d" % (vT + 6, OI, vS))
    k("s_mul_i32 s%d, s%d, 36864" % (T[10], stt))
    k("s_mul_i32 s%d, s%d, 9" % (T[4], sq))
    k("s_add_u32 s%d, s%d, s%d" % (T[5], T[4], sw))
    k("s_lshl_b32 s%d, s%d, 9" % (T[5], T[5]))
    k("s_add_u32 s%d, s%d, s%d" % (T[11], T[10], T[5]))
    k("s_add_u32 s%d, s%d, %d" % (T[11], T[11], L.HP))
    k("s_add_u32 s%d, s%d, 8" % (T[5], T[4]))
    k("s_lshl_b32 s%d, s%d, 9" % (T[5], T[5]))
    k("s_add_u32 s%d, s%d, s%d" % (T[12], T[10], T[5]))
    k("s_mul_i32 s%d, s%d, 18432" % (T[5], sw))
    k("s_add_u32 s%d, s%d, s%d" % (T[12], T[12], T[5]))
    k("s_add_u32 s%d, s%d, %d" % (T[12], T[12], L.HP))
    k("s_mul_i32 s%d, s%d, 4608" % (T[13], sw))
    k("s_add_u32 s%d, s%d, s%d" % (T[10], T[10], T[13]))
    k("s_add_u32 s%d, s%d, %d" % (T[10], T[10], L.OP))
    s4_offsets(k, 210, 220)
    wait_flags(k, req_group(2), vt=E, wave=3)
    stamp(k, 10)
    k("s_add_u32 m0, s%d, %d" % (T[13], OI))
    k("s_nop 0")
    for j in range(4): k("buffer_load_dwordx4 v%d, %s, s%d offen offset:%d%s lds" % (vS, R, T[10], j * 1024, SC))
    k("s_add_u32 m0, s%d, %d" % (T[13], OI + 4096))
    k("s_add_u32 s%d, s%d, 4096" % (T[10], T[10]))
    k("s_mov_b32 exec_hi, 0")
    k("buffer_load_dwordx4 v%d, %s, s%d offen%s lds" % (vS, R, T[10], SC))
    k("s_mov_b32 exec_hi, -1")
    for j in range(5 if EARLYW else 0): s4_wdma(k, 210, 1, j)
    k("s_waitcnt vmcnt(%d)" % (5 if EARLYW else 0))
    k("s_barrier")
    stamp(k, 11)
    def oread(ks):
        for t in range(2):
            k("ds_read_b128 %s, v%d offset:%d" % (vr(OF + ((ks & 1) * 2 + t) * 4, 4), vT + 6, (t * 18 + ks) * 1024))
    def resid(a, x, e):
        k("v_cvt_pk_bf16_f32 v%d, v%d, v%d" % (e, a, a + 1))
        k("v_cvt_pk_bf16_f32 v%d, v%d, v%d" % (e + 1, a + 2, a + 3))
        for i in range(2):
            k("v_lshlrev_b32 v%d, 16, v%d" % (a + 2 * i, e + i))
            k("v_and_b32 v%d, 0xffff0000, v%d" % (a + 2 * i + 1, e + i))
            k("v_lshlrev_b32 v%d, 16, v%d" % (E + 20, x + i))
            k("v_and_b32 v%d, 0xffff0000, v%d" % (E + 21, x + i))
            k("v_pk_add_f32 %s, %s, %s" % (vr(a + 2 * i, 2), vr(a + 2 * i, 2), vr(E + 20, 2)))
        k("v_cvt_pk_bf16_f32 v%d, v%d, v%d" % (e, a, a + 1))
        k("v_cvt_pk_bf16_f32 v%d, v%d, v%d" % (e + 1, a + 2, a + 3))
        for i in range(2):
            k("v_lshlrev_b32 v%d, 16, v%d" % (a + 2 * i, e + i))
            k("v_and_b32 v%d, 0xffff0000, v%d" % (a + 2 * i + 1, e + i))
    def stats(a, sm, first):
        if first:
            k("v_add_f32 v%d, v%d, v%d" % (sm, a, a + 1))
            k("v_mul_f32 v%d, v%d, v%d" % (sm + 1, a, a))
        else:
            k("v_add_f32 v%d, v%d, v%d" % (sm, sm, a))
            k("v_fmac_f32 v%d, v%d, v%d" % (sm + 1, a, a))
            k("v_add_f32 v%d, v%d, v%d" % (sm, sm, a + 1))
        k("v_fmac_f32 v%d, v%d, v%d" % (sm + 1, a + 1, a + 1))
        for i in (2, 3):
            k("v_add_f32 v%d, v%d, v%d" % (sm, sm, a + i))
            k("v_fmac_f32 v%d, v%d, v%d" % (sm + 1, a + i, a + i))
    k("s_cmp_lt_u32 s%d, 2" % sw)
    k("s_cbranch_scc1 .L_s3_x")
    for var in ("main", 0, 1):
        if var == 0:
            k.label(".L_s3_x")
            k("s_cmp_eq_u32 s%d, 1" % sw)
            k("s_cbranch_scc1 .L_s3_x1")
        if var == 1: k.label(".L_s3_x1")
        oread(0)
        for ks in range(18):
            if ks + 1 < 18:
                oread(ks + 1); k("s_waitcnt lgkmcnt(2)")
            else:
                for t in range(2): k("ds_read_b64 %s, v%d offset:%d" % (vr(E + 8 + 2 * t, 2), vT + 4, t * 4608))
                if var != "main": k("ds_read_b64 %s, v%d offset:256" % (vr(E + 12, 2), vT + 5))
                k("s_waitcnt lgkmcnt(%d)" % (2 if var == "main" else 3))
            for t in range(2):
                d = vr(ACC + 4 * t, 4)
                k("v_mfma_f32_16x16x32_bf16 %s, %s, %s, %s" % (d, vr(WF + 4 * ks, 4), vr(OF + ((ks & 1) * 2 + t) * 4, 4), "0" if ks == 0 else d))
            if var != "main":
                d = vr(ACC + 8, 4)
                k("v_mfma_f32_16x16x32_bf16 %s, %s, %s, %s" % (d, vr(WX + 4 * ks, 4), vr(OF + ((ks & 1) * 2 + var) * 4, 4), "0" if ks == 0 else d))
        k("s_nop 6")
        k("s_waitcnt lgkmcnt(0)")
        SM = E + 16
        for t in range(2):
            resid(ACC + 4 * t, E + 8 + 2 * t, E + 2 * t)
            stats(ACC + 4 * t, SM + 2 * t, True)
        k("v_permlane32_swap_b32 v%d, v%d" % (E, E + 2))
        k("v_permlane32_swap_b32 v%d, v%d" % (E + 1, E + 3))
        k("s_nop 1")
        k("buffer_store_dwordx4 %s, v%d, %s, s%d offen%s" % (vr(E, 4), vT + 3, R, T[11], SC))
        if var != "main":
            resid(ACC + 8, E + 12, E + 4)
            k("v_mov_b32 v%d, v%d" % (E + 6, E + 4))
            k("v_mov_b32 v%d, v%d" % (E + 7, E + 5))
            stats(ACC + 8, SM + 2 * var, False)
            k("v_permlane32_swap_b32 v%d, v%d" % (E + 4, E + 6))
            k("v_permlane32_swap_b32 v%d, v%d" % (E + 5, E + 7))
            k("s_mov_b32 exec_hi, 0")
            k("s_nop 0")
            k("buffer_store_dwordx4 %s, v%d, %s, s%d offen%s" % (vr(E + 4, 4), vS, R, T[12], SC))
            k("s_mov_b32 exec_hi, -1")
        if var != 1: k("s_branch .L_s3_j")
    k.label(".L_s3_j")
    SM = E + 16
    sum_rows(k, [SM, SM + 1, SM + 2, SM + 3], [E + 8, E + 9, E + 10, E + 11])
    k("s_lshl_b32 s%d, s%d, 8" % (T[4], sw))
    k("s_add_u32 s%d, s%d, %d" % (T[4], T[4], SI))
    k("v_lshlrev_b32 v%d, 3, v%d" % (vT + 2, vT))
    k("v_add_u32 v%d, s%d, v%d" % (vT + 2, T[4], vT + 2))
    k("s_mov_b64 exec, 0xffff")
    for t in range(2): k("ds_write_b64 v%d, %s offset:%d" % (vT + 2, vr(SM + 2 * t, 2), t * 128))
    k("s_mov_b64 exec, -1")
    k("s_waitcnt lgkmcnt(0)")
    k("s_barrier")
    lab = k.newlab()
    k("s_cmp_lg_u32 s%d, 7" % sw)
    k("s_cbranch_scc1 %s" % lab)
    k("v_lshlrev_b32 v%d, 2, v0" % (vT + 2))
    k("v_add_u32 v%d, %d, v%d" % (vT + 4, SI, vT + 2))
    for ww in range(8): k("ds_read_b32 v%d, v%d offset:%d" % (WF + ww, vT + 4, ww * 256))
    k("s_lshl_b32 s%d, s%d, 14" % (T[4], sq))
    k("s_lshl_b32 s%d, s%d, 8" % (T[5], stt))
    k("s_add_u32 s%d, s%d, s%d" % (T[4], T[4], T[5]))
    k("s_add_u32 s%d, s%d, %d" % (T[4], T[4], L.ST2))
    k("s_waitcnt lgkmcnt(0)")
    for st in (4, 2, 1):
        for i in range(st): k("v_add_f32 v%d, v%d, v%d" % (WF + i, WF + i, WF + i + st))
    k("buffer_store_dword v%d, v%d, %s, s%d offen%s" % (WF, vT + 2, R, T[4], SC))
    k.label(lab)
    stamp(k, 12)
    signal(k, 3, wave=7)
    stamp(k, 13)

def publish(k, val, wave, vt):
    lab = k.newlab()
    k("s_cmp_lg_u32 s%d, %d" % (sw, wave))
    k("s_cbranch_scc1 %s" % lab)
    k("s_mul_i32 s%d, s%d, %d" % (T[0], sg, NREP * L.FPITCH))
    k("s_lshl_b32 s%d, s%d, 2" % (T[1], si))
    k("s_add_u32 s%d, s%d, s%d" % (T[0], T[0], T[1]))
    k("s_add_u32 s%d, s%d, %d" % (T[0], T[0], L.FLG))
    k("s_add_u32 s%d, s%d, %d" % (T[1], sT, val))
    k("v_mov_b32 v%d, s%d" % (vt, T[1]))
    k("v_mul_u32_u24 v%d, %d, v0" % (vt + 1, L.FPITCH))
    k("s_mov_b32 exec_lo, %s" % ("0xff" if NREP == 8 else "-1")); k("s_mov_b32 exec_hi, 0")
    k("buffer_store_dword v%d, v%d, %s, s%d offen sc1" % (vt, vt + 1, R, T[0]))
    k("s_mov_b64 exec, -1")
    k.label(lab)

def peek_issue(k, wave, vt):
    lab = k.newlab()
    k("s_cmp_lg_u32 s%d, %d" % (sw, wave))
    k("s_cbranch_scc1 %s" % lab)
    k("s_lshl_b32 s%d, s%d, %d" % (T[2], sg, REPSH))
    k("s_add_u32 s%d, s%d, s%d" % (T[2], T[2], srep))
    k("s_mul_i32 s%d, s%d, %d" % (T[2], T[2], L.FPITCH))
    k("s_lshl_b32 s%d, s%d, 5" % (T[3], sq))
    k("s_add_u32 s%d, s%d, s%d" % (T[2], T[2], T[3]))
    k("s_add_u32 s%d, s%d, %d" % (T[2], T[2], L.FLG))
    k("v_and_b32 v%d, 7, v0" % vt)
    k("v_lshlrev_b32 v%d, 2, v%d" % (vt, vt))
    k("buffer_load_dword v%d, v%d, %s, s%d offen sc1" % (vt + 1, vt, R, T[2]))
    k.label(lab)
def peek_check(k, wave, vt, val):
    lab = k.newlab()
    k("s_cmp_lg_u32 s%d, %d" % (sw, wave))
    k("s_cbranch_scc1 %s" % lab)
    k("s_add_u32 s%d, s%d, %d" % (T[1], sT, val))
    k("s_waitcnt vmcnt(0)")
    k("v_subrev_u32 v%d, s%d, v%d" % (vt + 1, T[1], vt + 1))
    k("v_cmp_le_u32 vcc, %d, v%d" % (16 - val, vt + 1))
    k("s_nop 3")
    k("s_cmp_eq_u64 vcc, 0")
    k("s_cbranch_scc1 %s" % lab)
    poll(k, req_group(val, None, mask_q), vt)
    k.label(lab)

def s45(k):
    SLOT = S4SLOT
    sHH, sH = T[10], T[11]
    vO, vA, vSt, vT = 2, 7, 11, 12
    AB = 16; U = 20; H = 24; ACC = 168; WF = 216; NWF = 8; E = 248
    vm = Q(k, "vmcnt", 63); lq = Q(k, "lgkmcnt", 15)
    s4_offsets(k, vO, vT)
    def wdma(s, j):
        return lambda: s4_wdma(k, vO, s, j, emit=lambda t: vm.op("W%d" % s, t))
    vm.mark("W0"); vm.mark("W1")
    lab = k.newlab()
    k("s_cmp_eq_u32 s%d, 7" % sw)
    k("s_cbranch_scc1 %s" % lab)
    for s in (2, 3):
        for j in range(5): s4_wdma(k, vO, s, j)
    k.label(lab)
    k("v_bfe_u32 v%d, v0, 5, 1" % vT)
    k("v_lshlrev_b32 v%d, 4, v%d" % (vT, vT))
    k("v_bfe_u32 v%d, v0, 2, 3" % (vT + 1))
    k("v_add_u32 v%d, v%d, v%d" % (vT, vT, vT + 1))
    k("v_mul_u32_u24 v%d, 96, v%d" % (vT, vT))
    k("v_and_b32 v%d, 3, v0" % (vT + 1))
    k("v_lshl_add_u32 v%d, v%d, 3, v%d" % (vA, vT + 1, vT))
    for i in range(1, 4): k("v_add_u32 v%d, %d, v%d" % (vA + i, i * SLOT, vA))
    k("s_lshl_b32 s%d, s%d, 4" % (T[1], sg))
    k("s_lshl_b32 s%d, s%d, 1" % (T[2], sw))
    k("s_add_u32 s%d, s%d, s%d" % (T[1], T[1], T[2]))
    k("s_mul_i32 s%d, s%d, 147456" % (sHH, T[1]))
    k("s_mul_i32 s%d, s%d, %d" % (T[2], si, 9 * 512))
    k("s_add_u32 s%d, s%d, s%d" % (sHH, sHH, T[2]))
    k("s_add_u32 s%d, s%d, %d" % (sHH, sHH, L.HH))
    k("s_mul_i32 s%d, s%d, 18432" % (sH, T[1]))
    k("s_add_u32 s%d, s%d, %d" % (sH, sH, L.HP))
    k("s_lshl_b32 s%d, s%d, 7" % (T[9], T[1]))
    k("s_add_u32 s%d, s%d, %d" % (T[9], T[9], L.ST2))
    k("v_and_b32 v%d, 15, v0" % vT)
    k("v_lshrrev_b32 v%d, 4, v0" % (vT + 1))
    k("v_lshlrev_b32 v%d, 14, v%d" % (vT + 1, vT + 1))
    k("v_lshl_add_u32 v%d, v%d, 3, v%d" % (vT + 2, vT, vT + 1))
    k("v_lshrrev_b32 v%d, 5, v0" % (vT + 3))
    k("v_mul_u32_u24 v%d, %d, v%d" % (vT + 3, 147456 - 512, vT + 3))
    k("v_add_u32 v%d, v%d, v%d" % (vSt, vT + 3, vS))
    wait_flags(k, req_group(3), vt=E, wave=7)
    stamp(k, 14)
    for t in range(2):
        vm.op("ST", "buffer_load_dwordx2 %s, v%d, %s, s%d offen offset:%d%s" % (vr(ACC + 2 * t, 2), vT + 2, R, T[9], t * 128, SC))
    def hload(ks):
        for t in range(2):
            k("s_add_u32 s%d, s%d, %d" % (T[0], sH, t * 18432 + (ks // 4) * 4096))
            vm.op("H%d" % ks, "buffer_load_dwordx4 %s, v%d, %s, s%d offen offset:%d%s" % (vr(H + (ks * 2 + t) * 4, 4), vS, R, T[0], (ks % 4) * 1024, SC))
    HPF = int(os.environ.get('HPF', '4'))
    for ks in range(HPF): hload(ks)
    lab = k.newlab()
    k("s_cmp_lg_u32 s%d, 7" % sw)
    k("s_cbranch_scc1 %s" % lab)
    for s in (2, 3):
        for j in range(5): s4_wdma(k, vO, s, j)
    k.label(lab)
    vm.mark("W2"); vm.mark("W3")
    frs = [(ps, ks, b, m) for ps in range(3) for ks in range(18) for b in range(3) for m in range(2)]
    NF = len(frs)
    def wread(i):
        ps, ks, b, m = frs[i]
        s = ps * 3 + ks // 6; sl = s % 4
        for h in range(2):
            lq.op("f%d" % i, "ds_read_b64_tr_b16 %s, v%d offset:%d" % (vr(WF + 4 * (i % NWF) + 2 * h, 2), vA + sl,
                  m * 18432 + (ks % 6) * 3072 + h * 768 + b * 32))
    PF = int(os.environ.get('PF4', '6')); WG4 = int(os.environ.get('WG4', '2'))
    for i in range(PF): wread(i)
    vm.wait("ST")
    sum_rows(k, [ACC, ACC + 1, ACC + 2, ACC + 3], [ACC + 4, ACC + 5, ACC + 6, ACC + 7])
    for t in range(2):
        ln_stats(k, ACC + 2 * t, ACC + 2 * t + 1, AB + 2 * t + 1, AB + 2 * t, E)
        k("v_mul_f32 v%d, -v%d, v%d" % (AB + 2 * t + 1, AB + 2 * t + 1, AB + 2 * t))
    def norm(ks):
        o = []
        for t in range(2):
            for i in range(4):
                r = H + (ks * 2 + t) * 4 + i; u = U + 2 * (i & 1)
                o.append("v_lshlrev_b32 v%d, 16, v%d" % (u, r))
                o.append("v_and_b32 v%d, 0xffff0000, v%d" % (u + 1, r))
                if PKNORM:
                    o.append("v_pk_fma_f32 %s, %s, %s, %s op_sel:[0,0,1] op_sel_hi:[1,0,1]" % (vr(u, 2), vr(u, 2), vr(AB + 2 * t, 2), vr(AB + 2 * t, 2)))
                else:
                    o.append("v_fma_f32 v%d, v%d, v%d, v%d" % (u, u, AB + 2 * t, AB + 2 * t + 1))
                    o.append("v_fma_f32 v%d, v%d, v%d, v%d" % (u + 1, u + 1, AB + 2 * t, AB + 2 * t + 1))
                o.append("v_cvt_pk_bf16_f32 v%d, v%d, v%d" % (r, u, u + 1))
        return o
    def epilogue(ps, vmq):
        G = lambda b, t, r: ACC + b * 16 + t * 4 + r
        Uu = lambda b, t, r: ACC + b * 16 + 8 + t * 4 + r
        if ps == 1: k("s_add_u32 s%d, s%d, %d" % (T[1], sHH, 3 * 512))
        else:
            k("s_bitcmp1_b32 s%d, 0" % si)
            k("s_cselect_b32 s%d, %d, %d" % (T[1], (2 - ps) * 1536, ps * 1536))
            k("s_add_u32 s%d, s%d, s%d" % (T[1], T[1], sHH))
        k("s_nop 6")
        for b in range(3):
            tb = [(t, r) for t in range(2) for r in range(4)]
            for t, r in tb: k("v_mul_f32 v%d, %s, v%d" % (G(b, t, r), hx(f32bits(-1.4426950408889634)), G(b, t, r)))
            for t, r in tb: k("v_exp_f32 v%d, v%d" % (G(b, t, r), G(b, t, r)))
            for t, r in tb: k("v_add_f32 v%d, 1.0, v%d" % (G(b, t, r), G(b, t, r)))
            for t, r in tb: k("v_rcp_f32 v%d, v%d" % (G(b, t, r), G(b, t, r)))
            for t, r in tb: k("v_mul_f32 v%d, v%d, v%d" % (G(b, t, r), G(b, t, r), Uu(b, t, r)))
            e = E + 4 * (b & 1)
            for t in range(2):
                for i in range(2): k("v_cvt_pk_bf16_f32 v%d, v%d, v%d" % (e + 2 * t + i, G(b, t, 2 * i), G(b, t, 2 * i + 1)))
            k("s_nop 1")
            k("v_permlane32_swap_b32 v%d, v%d" % (e, e + 2))
            k("v_permlane32_swap_b32 v%d, v%d" % (e + 1, e + 3))
            k("s_nop 1")
            vmq.op("S", "buffer_store_dwordx4 %s, v%d, %s, s%d offen offset:%d%s" % (vr(e, 4), vSt, R, T[1], b * 512, SC))
    vm.wait("H0")
    for x in norm(0): k(x)
    dm = []
    for i in range(NF):
        ps, ks, b, m = frs[i]
        s = ps * 3 + ks // 6
        first = (b == 0 and m == 0)
        if first and ks % 6 == 1:
            if s == 7: vm.wait("S")
            elif s + 1 < 9: vm.wait("W%d" % (s + 1))
            k("s_barrier")
            if s >= 1 and s + 3 < 9: dm = [wdma(s + 3, j) for j in range(5)]
            if s == 7: publish(k, 4, 7, vT)
        if first and s == 8 and ks % 6 == 3: peek_issue(k, 5, vT)
        if WARM == 4 and first and ps == WPS and ks == 3:
            make_srd(k, sA, P_D, 4608 * 1152)
            k("s_and_b32 s%d, s%d, 3" % (T[0], sg))
            k("s_lshl_b32 s%d, s%d, 3" % (T[0], T[0]))
            k("s_add_u32 s%d, s%d, s%d" % (T[0], T[0], ssub))
            k("s_lshl_b32 s%d, s%d, 3" % (T[0], T[0]))
            k("s_add_u32 s%d, s%d, s%d" % (T[0], T[0], sw))
            k("s_mul_i32 s%d, s%d, 21" % (T[0], T[0]))
            k("s_lshl_b32 s%d, s%d, 1" % (T[1], sq))
            k("s_lshr_b32 s%d, s%d, 2" % (T[2], sg))
            k("s_add_u32 s%d, s%d, s%d" % (T[1], T[1], T[2]))
            k("s_mul_i32 s%d, s%d, %d" % (T[1], T[1], 5184 * 128))
            k("v_add_u32 v%d, s%d, v0" % (vT, T[0]))
            k("v_min_u32 v%d, 5183, v%d" % (vT, vT))
            k("v_lshlrev_b32 v%d, 7, v%d" % (vT, vT))
            k("s_mov_b64 exec, 0x1fffff")
            vm.op("warm", "buffer_load_dword v%d, v%d, %s, s%d offen" % (vT + 3, vT, RA, T[1]))
            k("s_mov_b64 exec, -1")
        if first and ps == 0:
            if ks + HPF < 18: hload(ks + HPF)
            fill = []
            if ks + 1 < 18:
                fill = norm(ks + 1)
                vm.wait("H%d" % (ks + 1))
        if i + PF < NF: wread(i + PF)
        if i % WG4 == 0: lq.wait("f%d" % (i + WG4 - 1))
        for t in range(2):
            d = vr(ACC + b * 16 + m * 8 + t * 4, 4)
            k("v_mfma_f32_16x16x32_bf16 %s, %s, %s, %s" % (d, vr(WF + 4 * (i % NWF), 4), vr(H + (ks * 2 + t) * 4, 4), "0" if ks == 0 else d))
            if ps == 0:
                n = (3 if PKNORM else 4) if (b, m, t) != (2, 1, 1) else 99
                for _ in range(n):
                    if fill: k(fill.pop(0))
        if dm and m == 1: dm.pop(0)()
        if ks == 17 and b == 2 and m == 1 and ps < 2:
            epilogue(ps, vm)
            if ps == 0: stamp(k, 15)
    stamp(k, 16)
    peek_check(k, 5, vT, 4)
    k("s_barrier")
    STG = 34816; NS = 4; WOFF = 16384; NST = 18; OWN = 4 * STG
    smt, sng, sSrc, sM0 = T[12], T[13], T[14], T[15]
    korder = [9 * c + j for c in range(4) for j in (0, 1, 2, 6, 7, 8)] + [9 * c + j for c in range(4) for j in (3, 4, 5)]
    k("s_lshl_b32 s%d, s%d, 1" % (smt, sg))
    k("s_and_b32 s%d, s%d, 1" % (T[0], ssub))
    k("s_add_u32 s%d, s%d, s%d" % (smt, smt, T[0]))
    k("s_lshr_b32 s%d, s%d, 1" % (sng, ssub))
    k("s_cmp_ge_u32 s%d, 4" % sw)
    k("s_cbranch_scc1 .L_s5_loader")
    epilogue(2, Q(k, "vmcnt", 63))
    stamp(k, 27)
    vA, vT = 2, 6
    ACC5 = 16; HF = 96; WF5 = 128; NW5 = 14
    lq = Q(k, "lgkmcnt", 15)
    k("s_lshl_b32 s%d, s%d, 11" % (T[0], sw))
    k("v_add_u32 v%d, s%d, v%d" % (vA, T[0], vS))
    k("v_add_u32 v%d, %d, v%d" % (vA + 1, 2 * STG, vA))
    tr_addr(k, vA + 2, vT, 4608)
    k("v_add_u32 v%d, %d, v%d" % (vA + 2, WOFF, vA + 2))
    k("v_add_u32 v%d, %d, v%d" % (vA + 3, 2 * STG, vA + 2))
    NK = 2 * NST
    def hread(kk):
        st, kp = divmod(kk, 2); sl = st % NS
        for t in range(2):
            lq.op("h%d" % kk, "ds_read_b128 %s, v%d offset:%d" % (vr(HF + ((kk & 3) * 2 + t) * 4, 4), vA + (sl >> 1), (sl & 1) * STG + kp * 8192 + t * 1024))
    def wread5(i):
        kk, u = divmod(i, 9); st, kp = divmod(kk, 2); sl = st % NS
        for h in range(2):
            lq.op("w%d" % i, "ds_read_b64_tr_b16 %s, v%d offset:%d" % (vr(WF5 + 4 * (i % NW5) + 2 * h, 2), vA + 2 + (sl >> 1),
                  (sl & 1) * STG + kp * 9216 + h * 2304 + u * 32))
    PFW = int(os.environ.get('PFW', '8')); WG5 = int(os.environ.get('WG5', '3'))
    k("s_barrier")
    stamp(k, 17)
    hread(0)
    for i in range(PFW): wread5(i)
    for i in range(NK * 9):
        kk, u = divmod(i, 9)
        if u % WG5 == 0: lq.wait("w%d" % (i + WG5 - 1))
        for t in range(2):
            d = vr(ACC5 + (t * 9 + u) * 4, 4)
            k("v_mfma_f32_16x16x32_bf16 %s, %s, %s, %s" % (d, vr(WF5 + 4 * (i % NW5), 4), vr(HF + ((kk & 3) * 2 + t) * 4, 4), "0" if kk == 0 else d))
            if t == 0:
                ni = i + PFW
                if ni < NK * 9:
                    if ni % 18 == 0:
                        sn = ni // 18
                        if sn == 4: k("s_waitcnt vmcnt(0)")
                        if sn == 10: peek_check(k, 0, vT, 5)
                        k("s_barrier")
                        if sn == 4: publish(k, 5, 1, vT)
                        if sn == 8: peek_issue(k, 0, vT)
                    if ni % 9 == 0: hread(ni // 9)
                    wread5(ni)
    stamp(k, 18)
    k("s_lshl_b32 s%d, s%d, 2" % (T[2], smt))
    k("s_add_u32 s%d, s%d, s%d" % (T[2], T[2], sng))
    k("s_lshl_b32 s%d, s%d, 2" % (T[2], T[2]))
    k("s_add_u32 s%d, s%d, s%d" % (T[2], T[2], sw))
    k("s_lshl_b32 s%d, s%d, 2" % (T[2], T[2]))
    k("s_add_u32 s%d, s%d, s%d" % (T[2], T[2], sq))
    k("s_mul_i32 s%d, s%d, 9216" % (T[2], T[2]))
    k("s_add_u32 s%d, s%d, %d" % (T[2], T[2], L.PART))
    k("v_add_u32 v%d, %d, v%d" % (vT + 1, OWN, vS))
    own = k.newlab()
    k("s_cmp_eq_u32 s%d, s%d" % (sw, sq))
    k("s_cbranch_scc1 %s" % own)
    for u in range(9):
        e = HF + 4 * (u % 8)
        for t in range(2):
            a = ACC5 + (t * 9 + u) * 4
            for p in range(2): k("v_cvt_pk_bf16_f32 v%d, v%d, v%d" % (e + 2 * t + p, a + 2 * p, a + 2 * p + 1))
        if u and u % 4 == 0: k("s_add_u32 s%d, s%d, 4096" % (T[2], T[2]))
        k("buffer_store_dwordx4 %s, v%d, %s, s%d offen offset:%d%s" % (vr(e, 4), vS, R, T[2], (u % 4) * 1024, SC))
    k("s_branch .L_s5_done")
    k.label(own)
    for i in range(18): k("ds_write_b128 v%d, %s offset:%d" % (vT + 1, vr(ACC5 + 4 * i, 4), i * 1024))
    k("s_branch .L_s5_done")
    k.label(".L_s5_loader")
    k("s_and_b32 s%d, s%d, 1" % (T[0], sw))
    k("s_cmp_ge_u32 s%d, 6" % sw)
    k("s_cbranch_scc1 .L_s5_ldh")
    for which in ("w", "h"):
        if which == "h": k.label(".L_s5_ldh")
        n = 8 if which == "h" else 9
        vO5 = 30; vT5 = 24
        vq = Q(k, "vmcnt", 63)
        if which == "h":
            k("s_mul_i32 s%d, s%d, %d" % (sSrc, smt, 8 * 144))
            k("s_mul_i32 s%d, s%d, 36" % (T[1], sq))
            k("s_add_u32 s%d, s%d, s%d" % (sSrc, sSrc, T[1]))
            k("s_lshl_b32 s%d, s%d, 10" % (sSrc, sSrc))
            k("s_add_u32 s%d, s%d, %d" % (sSrc, sSrc, L.HH))
            k("s_lshl_b32 s%d, s%d, 13" % (sM0, T[0]))
            for t in range(8): k("v_add_u32 v%d, %d, v%d" % (vO5 + t, t * 147456 - (t % 4) * 1024, vS))
        else:
            make_srd(k, sA, P_D, 4608 * 1152)
            k("s_mul_i32 s%d, s%d, %d" % (sSrc, sq, 36 * 32 * 1152))
            k("s_mul_i32 s%d, s%d, 288" % (T[1], sng))
            k("s_add_u32 s%d, s%d, s%d" % (sSrc, sSrc, T[1]))
            k("s_mul_i32 s%d, s%d, 9216" % (sM0, T[0]))
            k("s_add_u32 s%d, s%d, %d" % (sM0, sM0, WOFF))
            for j in range(9):
                k("v_add_u32 v%d, %d, v0" % (vT5, 64 * j))
                k("v_mul_u32_u24 v%d, 3641, v%d" % (vT5 + 1, vT5))
                k("v_lshrrev_b32 v%d, 16, v%d" % (vT5 + 1, vT5 + 1))
                k("v_mul_u32_u24 v%d, %d, v%d" % (vT5 + 1, 1152 - 288, vT5 + 1))
                k("v_lshl_add_u32 v%d, v%d, 4, v%d" % (vO5 + j, vT5, vT5 + 1))
                if j % 4: k("v_subrev_u32 v%d, %d, v%d" % (vO5 + j, (j % 4) * 1024, vO5 + j))
        unit = 1024 if which == "h" else 32 * 1152
        def issue(st):
            k("s_bitcmp1_b32 s%d, 0" % sw)
            k("s_cselect_b32 s%d, %d, %d" % (T[2], korder[2 * st + 1], korder[2 * st]))
            k("s_mul_i32 s%d, s%d, %d" % (T[2], T[2], unit))
            k("s_add_u32 s%d, s%d, s%d" % (T[2], T[2], sSrc))
            for j in range(n):
                if j % 4 == 0:
                    k("s_add_u32 m0, s%d, %d" % (sM0, (st % NS) * STG + j * 1024))
                    k("s_nop 0")
                if which == "h": vq.op("d%d" % st, "buffer_load_dwordx4 v%d, %s, s%d offen offset:%d%s lds" % (vO5 + j, R, T[2], (j % 4) * 1024, SC))
                else: vq.op("d%d" % st, "buffer_load_dwordx4 v%d, %s, s%d offen offset:%d lds" % (vO5 + j, RA, T[2], (j % 4) * 1024))
        for st in range(2): issue(st)
        epilogue(2, vq)
        for st in range(NST):
            vq.wait("d%d" % st)
            k("s_barrier")
            if st + 2 < NST: issue(st + 2)
        if which == "w": k("s_branch .L_s5_done")
    k.label(".L_s5_done")
    stamp(k, 30)
    signal(k, 6, wave=7, vt=120)
    stamp(k, 31)
    P = 16; HB = 80; X = 96
    vT = 6
    sj = T[11]
    k("s_add_u32 s%d, s%d, 4" % (sj, sw))
    k("s_and_b32 s%d, s%d, 7" % (sj, sj))
    make_srd(k, sA, P_OUT, 2048 * 1152)
    k("s_lshl_b32 s%d, s%d, 2" % (T[4], smt))
    k("s_add_u32 s%d, s%d, s%d" % (T[4], T[4], sng))
    k("s_lshl_b32 s%d, s%d, 2" % (T[4], T[4]))
    k("s_add_u32 s%d, s%d, s%d" % (T[4], T[4], sq))
    k("s_mul_i32 s%d, s%d, %d" % (T[4], T[4], 4 * 9216))
    k("s_lshl_b32 s%d, s%d, 11" % (T[8], sj))
    k("s_add_u32 s%d, s%d, s%d" % (T[4], T[4], T[8]))
    k("s_add_u32 s%d, s%d, %d" % (T[4], T[4], L.PART))
    k("s_lshl_b32 s%d, s%d, 3" % (T[9], smt))
    k("s_lshl_b32 s%d, s%d, 1" % (T[7], sq))
    k("s_add_u32 s%d, s%d, s%d" % (T[9], T[9], T[7]))
    k("s_mul_i32 s%d, s%d, 18432" % (T[9], T[9]))
    k("s_mul_i32 s%d, s%d, 9" % (T[7], sng))
    k("s_lshl_b32 s%d, s%d, 1" % (T[10], sj))
    k("s_add_u32 s%d, s%d, s%d" % (T[7], T[7], T[10]))
    k("s_lshl_b32 s%d, s%d, 9" % (T[10], T[7]))
    k("s_add_u32 s%d, s%d, s%d" % (T[10], T[10], T[9]))
    k("s_add_u32 s%d, s%d, %d" % (T[10], T[10], L.HP))
    k("s_lshl_b32 s%d, s%d, 5" % (T[7], T[7]))
    k("s_add_u32 s%d, s%d, s%d" % (T[9], T[9], T[7]))
    k("s_add_u32 s%d, s%d, 32" % (T[14], T[9]))
    k("s_cmp_ge_u32 s%d, 4" % sj)
    k("s_cselect_b32 s%d, 0x7f000000, s%d" % (T[14], T[14]))
    k("v_and_b32 v%d, 15, v0" % vT)
    k("v_lshrrev_b32 v%d, 4, v0" % (vT + 1))
    k("v_and_b32 v%d, 1, v%d" % (vT + 2, vT + 1))
    k("v_lshlrev_b32 v%d, 8, v%d" % (vT + 2, vT + 2))
    k("v_lshl_add_u32 v%d, v%d, 4, v%d" % (vT + 2, vT, vT + 2))
    k("v_lshrrev_b32 v%d, 1, v%d" % (vT + 3, vT + 1))
    k("v_lshl_add_u32 v%d, v%d, 3, v%d" % (vT + 2, vT + 3, vT + 2))
    k("v_add_u32 v%d, 18432, v%d" % (vT + 5, vT + 2))
    k("v_and_b32 v%d, 31, v0" % (vT + 4))
    k("v_mul_u32_u24 v%d, 1152, v%d" % (vT + 4, vT + 4))
    k("v_lshl_add_u32 v%d, v%d, 4, v%d" % (vT + 3, vT + 3, vT + 4))
    k("s_add_u32 s%d, s%d, %d" % (T[8], T[8], OWN))
    k("v_add_u32 v%d, s%d, v%d" % (vT + 4, T[8], vS))
    for n in range(3):
        k("s_add_u32 s%d, s%d, %d" % (T[5 + n], sq, n + 1))
        k("s_and_b32 s%d, s%d, 3" % (T[5 + n], T[5 + n]))
        k("s_mul_i32 s%d, s%d, 9216" % (T[5 + n], T[5 + n]))
        k("s_add_u32 s%d, s%d, s%d" % (T[5 + n], T[5 + n], T[4]))
    lab = k.newlab()
    k("s_cmp_ge_u32 s%d, 5" % sj)
    k("s_cbranch_scc1 %s" % lab)
    for c in range(2):
        for t in range(2):
            k("buffer_load_dwordx2 %s, v%d, %s, s%d offen offset:%d%s" % (vr(HB + (c * 2 + t) * 2, 2), [vT + 2, vT + 5][t], R, T[10], c * 512, SC))
            k("ds_read_b128 %s, v%d offset:%d" % (vr(X + (c * 2 + t) * 4, 4), vT + 4, c * 1024 + t * 9216))
    k.label(lab)
    wait_flags(k, req_group(6, None, mask_sub), vt=120, wave=3)
    stamp(k, 32)
    k("s_cmp_ge_u32 s%d, 5" % sj)
    k("s_cbranch_scc1 .L_fin")
    for c in range(2):
        for n in range(3):
            k("buffer_load_dwordx4 %s, v%d, %s, s%d offen offset:%d%s" % (vr(P + (c * 3 + n) * 4, 4), vS, R, T[5 + n], c * 1024, SC))
    TM = 48
    for c in range(2):
        k("s_waitcnt vmcnt(%d) lgkmcnt(0)" % (3 - 2 * c))
        for t in range(2):
            a = X + (c * 2 + t) * 4
            for n in range(3):
                for p in range(2):
                    src = P + (c * 3 + n) * 4 + 2 * t + p
                    k("v_lshlrev_b32 v%d, 16, v%d" % (TM + 2 * p, src))
                    k("v_and_b32 v%d, 0xffff0000, v%d" % (TM + 2 * p + 1, src))
                    k("v_pk_add_f32 %s, %s, %s" % (vr(a + 2 * p, 2), vr(a + 2 * p, 2), vr(TM + 2 * p, 2)))
            e = 56 + c * 4 + 2 * t
            k("v_cvt_pk_bf16_f32 v%d, v%d, v%d" % (e, a, a + 1))
            k("v_cvt_pk_bf16_f32 v%d, v%d, v%d" % (e + 1, a + 2, a + 3))
            for i in range(2):
                k("v_lshlrev_b32 v%d, 16, v%d" % (a + 2 * i, e + i))
                k("v_and_b32 v%d, 0xffff0000, v%d" % (a + 2 * i + 1, e + i))
                k("v_lshlrev_b32 v%d, 16, v%d" % (TM, HB + (c * 2 + t) * 2 + i))
                k("v_and_b32 v%d, 0xffff0000, v%d" % (TM + 1, HB + (c * 2 + t) * 2 + i))
                k("v_pk_add_f32 %s, %s, %s" % (vr(a + 2 * i, 2), vr(a + 2 * i, 2), vr(TM, 2)))
            k("v_cvt_pk_bf16_f32 v%d, v%d, v%d" % (e, a, a + 1))
            k("v_cvt_pk_bf16_f32 v%d, v%d, v%d" % (e + 1, a + 2, a + 3))
        e = 56 + c * 4
        k("s_nop 1")
        k("v_permlane16_swap_b32 v%d, v%d" % (e, e + 2))
        k("v_permlane16_swap_b32 v%d, v%d" % (e + 1, e + 3))
        k("s_nop 1")
        k("buffer_store_dwordx4 %s, v%d, %s, s%d offen" % (vr(e, 4), vT + 3, RA, [T[9], T[14]][c]))
```

```python
import sys, struct, os
sys.path.insert(0, "dev")
import layout as L

NAME = "sequential_preLN__sliding_block__glu_gated_glu__prompt"
STAMPS = int(os.environ.get("STAMPS", "0"))
CODEPF = int(os.environ.get("CODEPF", "1"))
S6TAG = int(os.environ.get("S6TAG", "0"))
EARLYW = int(os.environ.get("EARLYW", "1"))
PKNORM = int(os.environ.get("PKNORM", "0"))
NREP = int(os.environ.get("NREP", "32"))
REPSH = {8: 3, 32: 5}[NREP]
srep = {8: 42, 32: 43}[NREP]
WPS = int(os.environ.get("WPS", "1"))
PF1 = int(os.environ.get("PF1", "0"))
WARM = int(os.environ.get("WARM", "4"))
WARM_DELAY = int(os.environ.get("WARM_DELAY", "64"))
POLL_SLEEP = int(os.environ.get("POLL_SLEEP", "3"))
STOP = int(os.environ.get("STOP", "99"))

def f32bits(x): return struct.unpack("<I", struct.pack("<f", x))[0]
def hx(x): return "0x%08x" % (x & 0xFFFFFFFF)
def vr(b, n=1): return "v%d" % b if n == 1 else "v[%d:%d]" % (b, b + n - 1)

class Kern:
    def __init__(self): self.L = []; self.nlab = 0
    def __call__(self, s): self.L.append("  " + s)
    def label(self, l): self.L.append(l + ":")
    def newlab(self):
        self.nlab += 1
        return ".Lm_%d" % self.nlab

class Q:
    def __init__(self, k, name, mx): self.k, self.n, self.pos, self.name, self.mx = k, 0, {}, name, mx
    def op(self, tag, text): self.k(text); self.n += 1; self.pos[tag] = self.n
    def mark(self, tag): self.pos[tag] = self.n
    def wait(self, tag): self.k("s_waitcnt %s(%d)" % (self.name, min(self.mx, self.n - self.pos[tag])))

sw = 3
sWS, sA, sB, sDBG = 4, 8, 12, 36
P_X, P_WQKV, P_WO, P_G, P_U, P_D, P_OUT, P_DBG, P_WS = 16, 18, 20, 24, 26, 28, 30, 32, 34
sg, sq, ssub, si = 40, 41, 42, 43
T = list(range(44, 60))
R = "s[4:7]"; RA = "s[8:11]"; RB = "s[12:15]"; RD = "s[36:39]"
vS = 1
SC = os.environ.get("SC", " sc1")
SC5 = os.environ.get("SC5", " sc1")

def make_srd(k, d, base, nbytes):
    k("s_mov_b32 s%d, s%d" % (d, base))
    k("s_and_b32 s%d, s%d, 0xffff" % (d + 1, base + 1))
    k("s_mov_b32 s%d, %s" % (d + 2, hx(nbytes)))
    k("s_mov_b32 s%d, 0x00020000" % (d + 3))

STSEL = [int(x) for x in os.environ.get("STSEL", ",".join(str(i) for i in range(20))).split(",")]
def stamp(k, i):
    if STAMPS and i in STSEL:
        j = STSEL.index(i)
        k("%s s[%d:%d]" % ("s_memtime" if STAMPS == 2 else "s_memrealtime", 60 + 2 * j, 61 + 2 * j))
def stamp_out(k):
    if not STAMPS: return
    k("s_waitcnt lgkmcnt(0)")
    k("s_lshl_b32 s58, s2, 3")
    k("s_add_u32 s58, s58, s%d" % sw)
    k("s_lshl_b32 s58, s58, 7")
    k("s_add_u32 s58, s58, %d" % L.DBG)
    k("v_mov_b32 v2, 0")
    for i in range(20):
        k("v_mov_b32 v3, s%d" % (60 + 2 * i))
        k("buffer_store_dword v3, v2, %s, s58 offen offset:%d" % (R, 4 * i))

def rnd_bf16(k, d, s):
    k("v_cvt_pk_bf16_f32 v%d, v%d, v%d" % (d, s, s))
    k("v_lshlrev_b32 v%d, 16, v%d" % (d, d))

def ln_stats(k, vsum, vsq, vmean, vrstd, t0):
    k("v_mul_f32 v%d, %s, v%d" % (vmean, hx(f32bits(1.0 / 576)), vsum))
    k("v_mul_f32 v%d, %s, v%d" % (t0, hx(f32bits(1.0 / 576)), vsq))
    k("v_fma_f32 v%d, -v%d, v%d, v%d" % (t0, vmean, vmean, t0))
    k("v_max_f32 v%d, 0, v%d" % (t0, t0))
    rnd_bf16(k, vmean, vmean)
    rnd_bf16(k, t0, t0)
    k("v_add_f32 v%d, %s, v%d" % (t0, hx(f32bits(1e-5)), t0))
    rnd_bf16(k, t0, t0)
    k("v_sqrt_f32 v%d, v%d" % (t0, t0))
    k("s_nop 0")
    rnd_bf16(k, t0, t0)
    k("v_rcp_f32 v%d, v%d" % (vrstd, t0))
    k("s_nop 0")

def sum_rows(k, regs, tmp):
    for op in ("v_permlane32_swap_b32", "v_permlane16_swap_b32"):
        for a, t in zip(regs, tmp): k("v_mov_b32 v%d, v%d" % (t, a))
        k("s_nop 1")
        for a, t in zip(regs, tmp): k("%s v%d, v%d" % (op, a, t))
        k("s_nop 1")
        for a, t in zip(regs, tmp): k("v_add_f32 v%d, v%d, v%d" % (a, a, t))

sT = 101
def signal(k, val, spare=False, drain=True, vt=2, wave=0):
    if drain: k("s_waitcnt vmcnt(0) lgkmcnt(0)")
    k("s_barrier")
    lab = k.newlab()
    k("s_cmp_lg_u32 s%d, %d" % (sw, wave))
    k("s_cbranch_scc1 %s" % lab)
    k("s_mul_i32 s%d, s%d, %d" % (T[0], sg, NREP * L.FPITCH))
    k("s_lshl_b32 s%d, s%d, 2" % (T[1], si))
    k("s_add_u32 s%d, s%d, s%d" % (T[0], T[0], T[1]))
    k("s_add_u32 s%d, s%d, %d" % (T[0], T[0], L.FLG))
    k("s_add_u32 s%d, s%d, %d" % (T[1], sT, val))
    k("v_mov_b32 v%d, s%d" % (vt, T[1]))
    k("v_mul_u32_u24 v%d, %d, v0" % (vt + 1, L.FPITCH))
    if spare:
        lab2 = k.newlab()
        k("s_cmp_lt_u32 s%d, 6" % ssub)
        k("s_cbranch_scc1 %s" % lab2)
        k("s_lshl_b32 s%d, s%d, 2" % (T[2], sg))
        k("s_add_u32 s%d, s%d, s%d" % (T[2], T[2], sq))
        k("s_lshl_b32 s%d, s%d, 1" % (T[2], T[2]))
        k("s_and_b32 s%d, s%d, 1" % (T[3], ssub))
        k("s_add_u32 s%d, s%d, s%d" % (T[2], T[2], T[3]))
        k("s_lshl_b32 s%d, s%d, 2" % (T[2], T[2]))
        k("s_add_u32 s%d, s%d, %d" % (T[2], T[2], L.FSP))
        k("s_mov_b32 exec_hi, 0")
        k("buffer_store_dword v%d, v%d, %s, s%d offen sc1" % (vt, vt + 1, R, T[2]))
        k.label(lab2)
    if spare != "only":
        k("s_mov_b32 exec_lo, %s" % ("0xff" if NREP == 8 else "-1")); k("s_mov_b32 exec_hi, 0")
        k("buffer_store_dword v%d, v%d, %s, s%d offen sc1" % (vt, vt + 1, R, T[0]))
    k("s_mov_b64 exec, -1")
    k.label(lab)

def poll(k, req, vt):
    loop = k.newlab(); done = k.newlab()
    val = req(k, vt, vt + 1)
    k("s_add_u32 s%d, s%d, %d" % (T[1], sT, val))
    k("s_mov_b32 s%d, 0" % T[0])
    k("s_nop 2")
    k("s_mov_b64 exec, vcc")
    k.label(loop)
    k("buffer_load_dword v%d, v%d, %s, 0 offen sc1" % (vt + 2, vt, R))
    k("s_add_u32 s%d, s%d, 1" % (T[0], T[0]))
    k("s_waitcnt vmcnt(0)")
    k("v_subrev_u32 v%d, s%d, v%d" % (vt + 2, T[1], vt + 2))
    k("v_cmp_le_u32 vcc, %d, v%d" % (16 - val, vt + 2))
    k("s_nop 3")
    k("s_cmp_eq_u64 vcc, 0")
    k("s_cbranch_scc1 %s" % done)
    k("s_sleep %d" % POLL_SLEEP)
    k("s_cmp_lt_u32 s%d, 0x20000" % T[0])
    k("s_cbranch_scc1 %s" % loop)
    k.label(done)
    k("s_mov_b64 exec, -1")

def wait_flags(k, req, vt=2, wave=0):
    lab = k.newlab()
    k("s_cmp_lg_u32 s%d, %d" % (sw, wave))
    k("s_cbranch_scc1 %s" % lab)
    poll(k, req, vt)
    k.label(lab)
    k("s_barrier")

def req_group(val, sg2=None, mask=None):
    def f(k, va, vt):
        k("s_lshl_b32 s%d, s%d, %d" % (T[2], sg, REPSH))
        k("s_add_u32 s%d, s%d, s%d" % (T[2], T[2], srep))
        k("s_mul_i32 s%d, s%d, %d" % (T[2], T[2], L.FPITCH))
        k("s_add_u32 s%d, s%d, %d" % (T[2], T[2], L.FLG))
        k("v_and_b32 v%d, 31, v0" % vt)
        k("v_lshlrev_b32 v%d, 2, v%d" % (va, vt))
        if sg2 is not None:
            k("s_lshl_b32 s%d, s%d, %d" % (T[3], sg2, REPSH))
            k("s_add_u32 s%d, s%d, s%d" % (T[3], T[3], srep))
            k("s_mul_i32 s%d, s%d, %d" % (T[3], T[3], L.FPITCH))
            k("s_add_u32 s%d, s%d, %d" % (T[3], T[3], L.FLG))
            k("s_mov_b32 exec_lo, 0")
            k("v_add_u32 v%d, s%d, v%d" % (va, T[3], va))
            k("s_mov_b32 exec_lo, -1")
            k("s_mov_b32 exec_hi, 0")
            k("v_add_u32 v%d, s%d, v%d" % (va, T[2], va))
            k("s_mov_b32 exec_hi, -1")
        else:
            k("v_add_u32 v%d, s%d, v%d" % (va, T[2], va))
        if mask is None: k("s_mov_b64 vcc, -1")
        else: mask(k, vt)
        if sg2 is None:
            k("s_nop 3")
            k("s_mov_b32 vcc_hi, 0")
        return val
    return f
def mask_qkv(k, vt):
    k("v_and_b32 v%d, 7, v%d" % (vt, vt))
    k("v_cmp_gt_u32 vcc, 6, v%d" % vt)
def mask_q(k, vt):
    k("v_lshrrev_b32 v%d, 3, v%d" % (vt, vt))
    k("v_cmp_eq_u32 vcc, s%d, v%d" % (sq, vt))
def mask_sub(k, vt):
    k("v_and_b32 v%d, 7, v%d" % (vt, vt))
    k("v_cmp_eq_u32 vcc, s%d, v%d" % (ssub, vt))
def req_spare(k, va, vt):
    k("s_lshr_b32 s%d, s2, 3" % T[2])
    k("s_mul_i32 s%d, s%d, %d" % (T[2], T[2], L.FPITCH))
    k("s_add_u32 s%d, s%d, %d" % (T[2], T[2], L.FSP))
    k("v_lshlrev_b32 v%d, 2, v0" % va)
    k("v_add_u32 v%d, s%d, v%d" % (va, T[2], va))
    k("s_mov_b64 vcc, -1")
    return 1

def req_spare2(k, va, vt):
    req_spare(k, va, vt)
    return 2

def epoch_update(k):
    lab = k.newlab()
    k("s_cmp_lg_u32 s2, 0")
    k("s_cbranch_scc1 %s" % lab)
    k("s_cmp_lg_u32 s%d, 0" % sw)
    k("s_cbranch_scc1 %s" % lab)
    for gp in range(4):
        def rq(k, va, vt, gp=gp):
            k("v_lshrrev_b32 v%d, 5, v0" % vt)
            k("v_mul_u32_u24 v%d, %d, v%d" % (vt, NREP * L.FPITCH, vt))
            k("v_and_b32 v%d, 31, v0" % va)
            k("v_lshl_add_u32 v%d, v%d, 2, v%d" % (va, va, vt))
            k("v_add_u32 v%d, %d, v%d" % (va, L.FLG + gp * 2 * NREP * L.FPITCH, va))
            k("s_mov_b64 vcc, -1")
            return 1
        poll(k, rq, 2)
    k("v_mov_b32 v2, s%d" % sT)
    k("s_mov_b32 s%d, %d" % (T[0], L.EPOCH))
    k("s_mov_b64 exec, 1")
    k("buffer_store_dword v2, off, %s, s%d sc1" % (R, T[0]))
    k("s_mov_b64 exec, -1")
    k.label(lab)

def prologue(k):
    k("s_cmp_ge_u32 s2, 256")
    k("s_cbranch_scc1 .L_end")
    stamp(k, 0)
    k("s_load_dwordx16 s[16:31], s[0:1], 0")
    k("s_load_dwordx4 s[32:35], s[0:1], 64")
    k("v_lshrrev_b32 v1, 6, v0")
    k("v_and_b32 v0, 63, v0")
    k("v_readfirstlane_b32 s%d, v1" % sw)
    k("v_lshlrev_b32 v%d, 4, v0" % vS)
    k("s_and_b32 s%d, s2, 7" % T[0])
    k("s_lshr_b32 s%d, s2, 3" % T[1])
    k("s_and_b32 s%d, s%d, 1" % (sg, T[0]))
    k("s_lshl_b32 s%d, s%d, 2" % (sg, sg))
    k("s_and_b32 s%d, s%d, 3" % (T[2], T[1]))
    k("s_add_u32 s%d, s%d, s%d" % (sg, sg, T[2]))
    k("s_lshr_b32 s%d, s%d, 1" % (sq, T[0]))
    k("s_lshr_b32 s%d, s%d, 2" % (ssub, T[1]))
    k("s_lshl_b32 s%d, s%d, 3" % (si, sq))
    k("s_add_u32 s%d, s%d, s%d" % (si, si, ssub))
    k("s_waitcnt lgkmcnt(0)")
    make_srd(k, sWS, P_WS, 1 << 28)
    k("s_add_u32 s%d, s%d, %d" % (T[0], P_WS, L.EPOCH))
    k("s_addc_u32 s%d, s%d, 0" % (T[1], P_WS + 1))
    k("s_load_dword s%d, s[%d:%d], 0" % (sT, T[0], T[1]))

def div18(k, vq, vrho, vcc_, vt):
    k("v_mul_u32_u24 v%d, 3641, v%d" % (vrho, vq))
    k("v_lshrrev_b32 v%d, 16, v%d" % (vrho, vrho))
    k("v_mul_u32_u24 v%d, 18, v%d" % (vt, vrho))
    k("v_sub_u32 v%d, v%d, v%d" % (vcc_, vq, vt))

def half_offsets(k, vdst, vT, pitch, mode, sbase=None):
    for j in range(5):
        q, rho, t2, t3 = vT, vT + 1, vT + 2, vT + 3
        k("v_add_u32 v%d, %d, v0" % (q, 64 * j))
        div18(k, q, rho, q, t2)
        if mode == "leftover":
            k("v_lshrrev_b32 v%d, 1, v%d" % (t2, rho))
            k("v_mul_u32_u24 v%d, 18, v%d" % (t2, t2))
            k("v_and_b32 v%d, 1, v%d" % (rho, rho))
            k("v_add3_u32 v%d, v%d, v%d, 16" % (rho, rho, t2))
        elif mode == "swap23":
            k("v_and_b32 v%d, 3, v%d" % (t2, rho))
            k("v_and_b32 v%d, 4, v%d" % (t3, rho))
            k("v_lshl_or_b32 v%d, v%d, 1, v%d" % (t2, t3, t2))
            k("v_bfe_u32 v%d, v%d, 3, 1" % (t3, rho))
            k("v_lshl_or_b32 v%d, v%d, 2, v%d" % (rho, t3, t2))
        k("v_mul_u32_u24 v%d, %d, v%d" % (t2, pitch, rho))
        k("v_lshl_add_u32 v%d, v%d, 4, v%d" % (vdst + j, q, t2))
        if sbase is not None: k("v_add_u32 v%d, s%d, v%d" % (vdst + j, sbase, vdst + j))
        if 0 < j < 4: k("v_subrev_u32 v%d, %d, v%d" % (vdst + j, j * 1024, vdst + j))
        if j == 4:
            k("v_mov_b32 v%d, 0x7ff00000" % t2)
            k("v_cmp_gt_u32 vcc, 32, v0")
            k("s_nop 1")
            k("v_cndmask_b32 v%d, v%d, v%d, vcc" % (vdst + j, t2, vdst + j))

def tr_addr(k, vdst, vT, halfpitch):
    k("v_bfe_u32 v%d, v0, 5, 1" % vT)
    k("v_mul_u32_u24 v%d, %d, v%d" % (vT, halfpitch, vT))
    k("v_bfe_u32 v%d, v0, 2, 3" % (vT + 1))
    k("v_mul_u32_u24 v%d, 288, v%d" % (vT + 1, vT + 1))
    k("v_and_b32 v%d, 3, v0" % (vT + 2))
    k("v_lshlrev_b32 v%d, 3, v%d" % (vT + 2, vT + 2))
    k("v_add3_u32 v%d, v%d, v%d, v%d" % (vdst, vT, vT + 1, vT + 2))

import stages
def build():
    k = Kern()
    prologue(k)
    stages.emit_all(k, sys.modules[__name__])
    k.label(".L_fin")
    epoch_update(k)
    if STAMPS:
        k("s_waitcnt vmcnt(0)")
        stamp(k, 19)
        stamp_out(k)
    k.label(".L_end")
    k("s_endpgm")
    hdr = open("cdna_kernels/%s.s.ref" % NAME).read().split("; Override launch")[0]
    kn = NAME + "_kernel"
    o = hdr + "; @launch grid=(256,1,1) block=(512,1,1) lds=163840\n"
    o += '.amdgcn_target "amdgcn-amd-amdhsa--gfx950"\n.text\n.globl %s\n.p2align 8\n.type %s,@function\n%s:\n' % (kn, kn, kn)
    o += "\n".join(k.L) + "\n"
    o += ('.section .rodata,"a"\n.p2align 6\n.amdhsa_kernel %s\n  .amdhsa_next_free_vgpr 256\n  .amdhsa_next_free_sgpr 102\n'
          "  .amdhsa_accum_offset 256\n  .amdhsa_group_segment_fixed_size 0\n  .amdhsa_kernarg_size 80\n"
          "  .amdhsa_user_sgpr_count 2\n  .amdhsa_user_sgpr_kernarg_segment_ptr 1\n"
          "  .amdhsa_system_sgpr_workgroup_id_x 1\n.end_amdhsa_kernel\n") % kn
    return o

if __name__ == "__main__":
    out = sys.argv[1] if len(sys.argv) > 1 else "out.s"
    open(out, "w").write(build())
    print("wrote", out)
```

```python
import os
MB = 1 << 20
KB = 1 << 10
QSCALE = (18 ** -0.5) * 1.4426950408889634
VPL = 9344
FPITCH = 4352
EPOCH = 0
FSP = 4 * KB
ST1 = 160 * KB
CS1 = 180 * KB
ST2 = 200 * KB
WOP = 300 * KB
FLG = 1 * MB
QP = 2304 * KB
KP = QP + 2304 * KB
VP = KP + 2304 * KB + 320 * KB
OP = VP + 2400 * KB
HP = OP + 2304 * KB
PART = HP + 2304 * KB
HH = PART + 9216 * KB
WSEND = HH + 18432 * KB
WGU = 64 * MB; WDP = 80 * MB; CS = 90 * MB
DBG = 200 * MB
```

```python
import layout as L
import os

def emit_all(k, M):
    g = globals()
    for n in dir(M):
        if not n.startswith("__"): g[n] = getattr(M, n)
    s1(k)
    if STOP <= 1: return
    s2(k)
    if STOP <= 2: return
    s3(k)
    if STOP <= 3: return
    s45(k)

S4SLOT = 36864
def s4_srd(k):
    k("s_cmp_lt_u32 s%d, 4" % sw)
    k("s_cselect_b32 s%d, s%d, s%d" % (T[2], P_G, P_U))
    k("s_cselect_b32 s%d, s%d, s%d" % (T[3], P_G + 1, P_U + 1))
    make_srd(k, sB, T[2], 576 * 9216)
def s4_offsets(k, vO, vT):
    k("s_and_b32 s%d, s%d, 3" % (T[0], sw))
    k("s_mul_i32 s%d, s%d, %d" % (T[0], T[0], 48 * 9216))
    k("s_mul_i32 s%d, s%d, 288" % (T[1], si))
    k("s_add_u32 s%d, s%d, s%d" % (T[0], T[0], T[1]))
    for j in range(5):
        k("v_add_u32 v%d, %d, v0" % (vT, 64 * j))
        k("v_mul_u32_u24 v%d, 10923, v%d" % (vT + 1, vT))
        k("v_lshrrev_b32 v%d, 16, v%d" % (vT + 1, vT + 1))
        k("v_mul_u32_u24 v%d, %d, v%d" % (vT + 1, 9216 - 96, vT + 1))
        k("v_lshl_add_u32 v%d, v%d, 4, v%d" % (vO + j, vT, vT + 1))
        k("v_add_u32 v%d, s%d, v%d" % (vO + j, T[0], vO + j))
        if 0 < j < 4: k("v_subrev_u32 v%d, %d, v%d" % (vO + j, j * 1024, vO + j))
def s4_wdma(k, vO, s, j, emit=None):
    ps, st = divmod(s, 3)
    if j == 0 or j == 4:
        k("s_mul_i32 s%d, s%d, 4608" % (T[0], sw))
        k("s_add_u32 m0, s%d, %d" % (T[0], (s % 4) * S4SLOT + j * 1024))
    if ps == 1: k("s_mov_b32 s%d, %d" % (T[0], st * 192 * 9216 + 96))
    else:
        k("s_bitcmp1_b32 s%d, 0" % si)
        k("s_cselect_b32 s%d, %d, %d" % (T[0], (2 - ps) * 96, ps * 96))
        if st: k("s_add_u32 s%d, s%d, %d" % (T[0], T[0], st * 192 * 9216))
    if j == 4: k("s_mov_b32 exec_hi, 0")
    (emit or k)("buffer_load_dwordx4 v%d, %s, s%d offen offset:%d lds" % (vO + j, RB, T[0], (j % 4) * 1024))
    if j == 4: k("s_mov_b32 exec_hi, -1")

def fin_epoch(k):
    k("s_waitcnt lgkmcnt(0)")
    k("s_add_u32 s%d, s%d, 16" % (sT, sT))
    k("s_and_b32 s%d, s%d, 0xfffffff0" % (sT, sT))

def s1(k):
    SLOT = 36864; WOFF = 16384; STA = 4 * SLOT; STB = STA + 512; CSL = STA + 1024
    smt, snt, sM0x, sM0w, sh = T[8], T[9], T[10], T[11], T[12]
    k("s_cmp_ge_u32 s%d, 6" % ssub)
    k("s_cbranch_scc1 .L_s1_pp")
    k("s_mul_i32 s%d, s%d, 3" % (snt, sq))
    k("s_lshr_b32 s%d, s%d, 1" % (T[0], ssub))
    k("s_add_u32 s%d, s%d, s%d" % (snt, snt, T[0]))
    k("s_lshl_b32 s%d, s%d, 1" % (smt, sg))
    k("s_and_b32 s%d, s%d, 1" % (T[0], ssub))
    k("s_add_u32 s%d, s%d, s%d" % (smt, smt, T[0]))
    k("s_and_b32 s%d, s%d, 3" % (sh, sw))
    k("s_lshl_b32 s%d, s%d, 12" % (sM0x, sh))
    def xaddr(vXa, vT):
        k("v_and_b32 v%d, 15, v0" % vT)
        k("v_lshrrev_b32 v%d, 4, v0" % (vT + 1))
        k("v_lshrrev_b32 v%d, 1, v%d" % (vT + 2, vT))
        k("v_xor_b32 v%d, v%d, v%d" % (vT + 2, vT + 2, vT + 1))
        k("v_lshlrev_b32 v%d, 7, v%d" % (vT + 3, vT))
        k("v_add_u32 v%d, s%d, v%d" % (vT + 3, sM0x, vT + 3))
        k("v_lshl_add_u32 v%d, v%d, 4, v%d" % (vXa + 0, vT + 2, vT + 3))
        k("v_xor_b32 v%d, 4, v%d" % (vT + 2, vT + 2))
        k("v_lshl_add_u32 v%d, v%d, 4, v%d" % (vXa + 2, vT + 2, vT + 3))
        k("v_add_u32 v%d, %d, v%d" % (vXa + 1, 2 * SLOT, vXa + 0))
        k("v_add_u32 v%d, %d, v%d" % (vXa + 3, 2 * SLOT, vXa + 2))
    k("s_cmp_lt_u32 s%d, 4" % sw)
    k("s_cbranch_scc1 .L_s1_comp")
    vXo, vWo, vT = 2, 6, 19
    make_srd(k, sA, P_X, 2048 * 1152)
    make_srd(k, sB, P_WQKV, 576 * 3456)
    k("s_lshl_b32 s%d, s%d, 7" % (T[0], smt))
    k("s_lshl_b32 s%d, s%d, 5" % (T[1], sh))
    k("s_add_u32 s%d, s%d, s%d" % (T[0], T[0], T[1]))
    k("v_lshrrev_b32 v%d, 3, v0" % vT)
    k("v_add_u32 v%d, s%d, v%d" % (vT, T[0], vT))
    k("v_mul_u32_u24 v%d, 1152, v%d" % (vT, vT))
    k("v_lshrrev_b32 v%d, 4, v0" % (vT + 1))
    k("v_and_b32 v%d, 7, v0" % (vT + 2))
    k("v_xor_b32 v%d, v%d, v%d" % (vT + 2, vT + 2, vT + 1))
    k("v_xor_b32 v%d, 4, v%d" % (vT + 3, vT + 2))
    for j in range(4):
        k("v_lshl_add_u32 v%d, v%d, 4, v%d" % (vXo + j, vT + 2 + (j & 1), vT))
        if j: k("v_add_u32 v%d, %d, v%d" % (vXo + j, j * 8 * 1152 - j * 1024, vXo + j))
    def dma_x(c):
        k("s_add_u32 m0, s%d, %d" % (sM0x, (c % 4) * SLOT))
        k("s_mov_b32 s%d, %d" % (T[0], c * 128))
        for j in range(4):
            k("buffer_load_dwordx4 v%d, %s, s%d offen offset:%d lds" % (vXo + j, RA, T[0], j * 1024))
    def dma_w(c):
        k("s_add_u32 m0, s%d, %d" % (sM0w, (c % 4) * SLOT))
        k("s_mov_b32 s%d, %d" % (T[1], c * 64 * 3456))
        for j in range(4):
            k("buffer_load_dwordx4 v%d, %s, s%d offen offset:%d lds" % (vWo + j, RB, T[1], j * 1024))
        k("s_add_u32 m0, s%d, %d" % (sM0w, (c % 4) * SLOT + 4096))
        k("s_nop 0")
        k("buffer_load_dwordx4 v%d, %s, s%d offen lds" % (vWo + 4, RB, T[1]))
    dma_x(0)
    k("s_mul_i32 s%d, s%d, %d" % (T[2], sh, 16 * 3456))
    k("s_mul_i32 s%d, s%d, 288" % (T[3], snt))
    k("s_add_u32 s%d, s%d, s%d" % (T[2], T[2], T[3]))
    k("s_mul_i32 s%d, s%d, 5120" % (sM0w, sh))
    k("s_add_u32 s%d, s%d, %d" % (sM0w, sM0w, WOFF))
    half_offsets(k, vWo, vT, 3456, "swap23", sbase=T[2])
    dma_w(0)
    dma_x(1); dma_w(1)
    stamp(k, 1)
    issued = 2
    for c in range(9):
        k("s_waitcnt vmcnt(%d)" % (9 * (issued - 1 - c)))
        k("s_barrier")
        while issued < 9 and issued <= c + 3:
            dma_x(issued); dma_w(issued); issued += 1
        if c == 6:
            lab = k.newlab()
            k("s_cmp_lg_u32 s%d, 4" % sw)
            k("s_cbranch_scc1 %s" % lab)
            fin_epoch(k)
            if not os.environ.get("NOSW"): poll(k, req_spare, vt=30)
            k("v_lshlrev_b32 v%d, 3, v0" % vT)
            k("s_lshl_b32 s%d, s%d, 9" % (T[0], smt))
            k("s_add_u32 s%d, s%d, %d" % (T[0], T[0], L.ST1))
            k("buffer_load_dwordx2 v[40:41], v%d, %s, s%d offen%s" % (vT, R, T[0], SC))
            k("s_add_u32 s%d, s%d, 8192" % (T[0], T[0]))
            k("buffer_load_dwordx2 v[42:43], v%d, %s, s%d offen%s" % (vT, R, T[0], SC))
            k("s_mul_i32 s%d, s%d, 576" % (T[0], snt))
            k("s_add_u32 s%d, s%d, %d" % (T[0], T[0], L.CS1))
            k("v_min_u32 v%d, 560, v%d" % (vT + 1, vS))
            k("buffer_load_dwordx4 v[44:47], v%d, %s, s%d offen%s" % (vT + 1, R, T[0], SC))
            k("s_add_u32 s%d, s%d, 6912" % (T[0], T[0]))
            k("buffer_load_dwordx4 v[48:51], v%d, %s, s%d offen%s" % (vT + 1, R, T[0], SC))
            k("s_mov_b32 s%d, 1.0" % T[2])
            k("s_cmp_lt_u32 s%d, 4" % snt)
            k("s_cselect_b32 s%d, %s, s%d" % (T[2], hx(f32bits(L.QSCALE)), T[2]))
            k("v_add_u32 v%d, %d, v%d" % (vT, STA, vT))
            k("v_add_u32 v%d, %d, v%d" % (vT + 1, CSL, vT + 1))
            k("s_waitcnt vmcnt(0)")
            for i in range(4): k("v_mul_f32 v%d, s%d, v%d" % (40 + i, T[2], 40 + i))
            for i in range(4): k("v_add_f32 v%d, v%d, v%d" % (44 + i, 44 + i, 48 + i))
            k("ds_write_b64 v%d, v[40:41]" % vT)
            k("ds_write_b64 v%d, v[42:43] offset:512" % vT)
            k("ds_write_b128 v%d, v[44:47]" % (vT + 1))
            k("s_waitcnt lgkmcnt(0)")
            k.label(lab)
    k("s_barrier")
    k("s_cmp_lg_u32 s%d, 11" % snt)
    k("s_cbranch_scc1 .L_s1_done")
    k("s_cmp_lg_u32 s%d, 1" % sh)
    k("s_cbranch_scc1 .L_s1_done")
    for i in range(4): k("v_mov_b32 v%d, 0x3f803f80" % (40 + i))
    k("v_lshrrev_b32 v%d, 2, v0" % vT)
    k("v_mul_u32_u24 v%d, %d, v%d" % (vT, L.VPL, vT))
    k("v_and_b32 v%d, 3, v0" % (vT + 1))
    k("v_lshl_add_u32 v%d, v%d, 4, v%d" % (vT, vT + 1, vT))
    k("s_mul_i32 s%d, s%d, %d" % (T[0], smt, 16 * L.VPL))
    k("s_add_u32 s%d, s%d, %d" % (T[0], T[0], L.VP + 9216))
    k("buffer_store_dwordx4 v[40:43], v%d, %s, s%d offen%s" % (vT, R, T[0], SC))
    k("s_branch .L_s1_done")
    k.label(".L_s1_comp")
    vXa, vWa, vT = 2, 6, 8
    XF, WF, ACC, CSV, ST = 16, 32, 104, 176, 212
    if CODEPF:
        lab = k.newlab()
        k("s_cmp_lg_u32 s%d, 0" % ssub)
        k("s_cbranch_scc1 %s" % lab)
        k("s_getpc_b64 s[%d:%d]" % (T[0], T[1]))
        k.label(".L_pcref")
        k("s_sub_u32 s%d, s%d, .L_pcref-%s_kernel" % (T[0], T[0], NAME))
        k("s_subb_u32 s%d, s%d, 0" % (T[1], T[1]))
        k("s_lshl_b32 s%d, s%d, 13" % (T[2], sw))
        k("v_lshlrev_b32 v%d, 7, v0" % vT)
        k("v_add_u32 v%d, s%d, v%d" % (vT, T[2], vT))
        for j in range(3):
            k("v_min_u32 v%d, .L_end-%s_kernel, v%d" % (vT + 1 + j, NAME, vT))
            k("global_load_dword v%d, v%d, s[%d:%d]" % (CSV + 4 + j, vT + 1 + j, T[0], T[1]))
            k("v_add_u32 v%d, 32768, v%d" % (vT, vT))
        k.label(lab)
    if PF1:
        make_srd(k, sA, P_X, 2048 * 1152)
        make_srd(k, sB, P_WQKV, 576 * 3456)
        k("s_and_b32 s%d, s%d, 3" % (T[0], sg))
        k("s_mul_i32 s%d, s%d, 6" % (T[0], T[0]))
        k("s_add_u32 s%d, s%d, s%d" % (T[0], T[0], ssub))
        k("s_lshl_b32 s%d, s%d, 2" % (T[0], T[0]))
        k("s_add_u32 s%d, s%d, s%d" % (T[0], T[0], sw))
        k("s_mul_i32 s%d, s%d, %d" % (T[3], T[0], 6 * 3456))
        k("s_mul_i32 s%d, s%d, 864" % (T[2], sq))
        k("s_add_u32 s%d, s%d, s%d" % (T[3], T[3], T[2]))
        k("v_lshrrev_b32 v%d, 3, v0" % vT)
        k("v_min_u32 v%d, 5, v%d" % (vT, vT))
        k("v_mul_u32_u24 v%d, 3456, v%d" % (vT, vT))
        k("v_and_b32 v%d, 7, v0" % (vT + 1))
        k("v_lshlrev_b32 v%d, 7, v%d" % (vT + 1, vT + 1))
        k("v_min_u32 v%d, 860, v%d" % (vT + 1, vT + 1))
        k("v_add_u32 v%d, v%d, v%d" % (vT, vT, vT + 1))
        k("buffer_load_dword v%d, v%d, %s, s%d offen" % (CSV, vT, RB, T[3]))
        k("s_mul_i32 s%d, s%d, %d" % (T[1], T[0], 96 * 128))
        k("s_lshr_b32 s%d, s%d, 2" % (T[2], sg))
        k("s_mul_i32 s%d, s%d, %d" % (T[2], T[2], 1024 * 1152))
        k("s_add_u32 s%d, s%d, s%d" % (T[1], T[1], T[2]))
        k("v_lshlrev_b32 v%d, 7, v0" % (vT + 2))
        k("buffer_load_dword v%d, v%d, %s, s%d offen" % (CSV + 1, vT + 2, RA, T[1]))
        k("v_and_b32 v%d, 31, v0" % (vT + 3))
        k("v_lshlrev_b32 v%d, 7, v%d" % (vT + 3, vT + 3))
        k("s_add_u32 s%d, s%d, 8192" % (T[1], T[1]))
        k("buffer_load_dword v%d, v%d, %s, s%d offen" % (CSV + 2, vT + 3, RA, T[1]))
    xaddr(vXa, vT)
    tr_addr(k, vWa, vT, 5120)
    k("v_add_u32 v%d, %d, v%d" % (vWa, WOFF, vWa))
    k("v_add_u32 v%d, %d, v%d" % (vWa + 1, 2 * SLOT, vWa))
    def reads(s):
        c, ksl, buf = s // 2, s & 1, s & 1
        sl = c % 4; hi = sl >> 1; so = (sl & 1) * SLOT
        out = []
        for t in range(2):
            out.append("ds_read_b128 %s, v%d offset:%d" % (vr(XF + (buf * 2 + t) * 4, 4), vXa + ksl * 2 + hi, so + t * 2048))
        for u in range(9):
            for h in range(2):
                out.append("ds_read_b64_tr_b16 %s, v%d offset:%d" % (vr(WF + (buf * 9 + u) * 4 + 2 * h, 2), vWa + hi,
                           so + ksl * 10240 + h * 2304 + u * 32))
        return out
    k("s_cmp_ge_u32 s%d, 8" % snt)
    k("s_cbranch_scc1 .L_s1_v")
    for ori in ("qk", "v"):
        if ori == "v": k.label(".L_s1_v")
        k("s_barrier")
        stamp(k, 1)
        for r in reads(0): k(r)
        for s in range(18):
            buf = s & 1
            k("s_waitcnt lgkmcnt(0)")
            rd = []
            if s + 1 < 18:
                if (s + 1) % 2 == 0: k("s_barrier")
                rd = reads(s + 1)
            i = 0
            for u in range(9):
                for t in range(2):
                    a, b = vr(WF + (buf * 9 + u) * 4, 4), vr(XF + (buf * 2 + t) * 4, 4)
                    if ori == "v": a, b = b, a
                    d = vr(ACC + (t * 9 + u) * 4, 4)
                    k("v_mfma_f32_16x16x32_bf16 %s, %s, %s, %s" % (d, a, b, "0" if s == 0 else d))
                    for _ in range(2 if i < 2 else 1):
                        if rd: k(rd.pop(0))
                    i += 1
        stamp(k, 2)
        k("s_waitcnt vmcnt(0)")
        k("v_and_b32 v%d, 15, v0" % vT)
        k("v_lshrrev_b32 v%d, 4, v0" % (vT + 1))
        k("s_lshl_b32 s%d, s%d, 7" % (T[0], sw))
        k("s_add_u32 s%d, s%d, %d" % (T[0], T[0], STA))
        if ori == "qk":
            k("v_lshlrev_b32 v%d, 2, v%d" % (vT + 2, vT))
            k("v_add_u32 v%d, s%d, v%d" % (vT + 2, T[0], vT + 2))
            k("v_lshlrev_b32 v%d, 4, v%d" % (vT + 3, vT + 1))
            k("v_add_u32 v%d, %d, v%d" % (vT + 3, CSL, vT + 3))
            k("s_and_b32 s%d, s%d, 3" % (T[0], snt))
            k("s_mul_i32 s%d, s%d, 18" % (T[0], T[0]))
            k("s_lshl_b32 s%d, s%d, 2" % (T[1], smt))
            k("s_add_u32 s%d, s%d, s%d" % (T[1], T[1], sw))
            k("s_mul_i32 s%d, s%d, 72" % (T[1], T[1]))
            k("s_add_u32 s%d, s%d, s%d" % (T[0], T[0], T[1]))
            k("s_lshl_b32 s%d, s%d, 9" % (T[0], T[0]))
            k("s_mov_b32 s%d, %d" % (T[1], L.QP))
            k("s_cmp_lt_u32 s%d, 4" % snt)
            k("s_cselect_b32 s%d, s%d, %d" % (T[1], T[1], L.KP))
            k("s_add_u32 s%d, s%d, s%d" % (T[0], T[0], T[1]))
            k("s_barrier")
            for t in range(2):
                k("ds_read_b32 v%d, v%d offset:%d" % (ST + 2 * t, vT + 2, t * 64))
                k("ds_read_b32 v%d, v%d offset:%d" % (ST + 2 * t + 1, vT + 2, 512 + t * 64))
            for u in range(9): k("ds_read_b128 %s, v%d offset:%d" % (vr(CSV + 4 * u, 4), vT + 3, u * 64))
            for u in range(9):
                k("s_waitcnt lgkmcnt(%d)" % (8 - u))
                e = WF + 4 * u
                for t in range(2):
                    a = ACC + (t * 9 + u) * 4; ab = vr(ST + 2 * t, 2)
                    for p in range(2):
                        k("v_pk_mul_f32 %s, %s, %s op_sel_hi:[1,0]" % (vr(a + 2 * p, 2), vr(a + 2 * p, 2), ab))
                    for p in range(2):
                        k("v_pk_fma_f32 %s, %s, %s, %s op_sel:[0,1,0]" % (vr(a + 2 * p, 2), vr(CSV + 4 * u + 2 * p, 2), ab, vr(a + 2 * p, 2)))
                for t in range(2):
                    a = ACC + (t * 9 + u) * 4
                    for p in range(2): k("v_cvt_pk_bf16_f32 v%d, v%d, v%d" % (e + 2 * t + p, a + 2 * p, a + 2 * p + 1))
                k("s_nop 1")
                k("v_permlane16_swap_b32 v%d, v%d" % (e, e + 2))
                k("v_permlane16_swap_b32 v%d, v%d" % (e + 1, e + 3))
                if u and u % 4 == 0: k("s_add_u32 s%d, s%d, 4096" % (T[0], T[0]))
                k("s_nop 0")
                k("buffer_store_dwordx4 %s, v%d, %s, s%d offen offset:%d%s" % (vr(e, 4), vS, R, T[0], (u % 4) * 1024, SC))
            k("s_branch .L_s1_done")
        else:
            k("v_lshlrev_b32 v%d, 4, v%d" % (vT + 2, vT + 1))
            k("v_add_u32 v%d, s%d, v%d" % (vT + 2, T[0], vT + 2))
            k("v_lshlrev_b32 v%d, 2, v%d" % (vT + 3, vT))
            k("v_add_u32 v%d, %d, v%d" % (vT + 3, CSL, vT + 3))
            k("s_and_b32 s%d, s%d, 3" % (T[0], snt))
            k("s_mul_i32 s%d, s%d, 2304" % (T[0], T[0]))
            k("s_lshl_b32 s%d, s%d, 2" % (T[1], smt))
            k("s_add_u32 s%d, s%d, s%d" % (T[1], T[1], sw))
            k("s_mul_i32 s%d, s%d, %d" % (T[1], T[1], 4 * L.VPL))
            k("s_add_u32 s%d, s%d, s%d" % (T[0], T[0], T[1]))
            k("s_add_u32 s%d, s%d, %d" % (T[0], T[0], L.VP))
            k("v_mul_u32_u24 v%d, %d, v%d" % (vT + 4, L.VPL, vT + 1))
            k("v_lshl_add_u32 v%d, v%d, 4, v%d" % (vT + 4, vT, vT + 4))
            k("s_barrier")
            for t in range(2):
                k("ds_read_b128 %s, v%d offset:%d" % (vr(ST + 8 * t, 4), vT + 2, t * 64))
                k("ds_read_b128 %s, v%d offset:%d" % (vr(ST + 8 * t + 4, 4), vT + 2, 512 + t * 64))
            for u in range(9): k("ds_read_b32 v%d, v%d offset:%d" % (CSV + 2 * u, vT + 3, u * 64))
            for u in range(9):
                k("s_waitcnt lgkmcnt(%d)" % (8 - u))
                e = WF + 4 * u
                for t in range(2):
                    a = ACC + (t * 9 + u) * 4
                    for p in range(2):
                        k("v_pk_mul_f32 %s, %s, %s" % (vr(a + 2 * p, 2), vr(a + 2 * p, 2), vr(ST + 8 * t + 2 * p, 2)))
                    for p in range(2):
                        k("v_pk_fma_f32 %s, %s, %s, %s op_sel_hi:[0,1,1]" % (vr(a + 2 * p, 2), vr(CSV + 2 * u, 2), vr(ST + 8 * t + 4 + 2 * p, 2), vr(a + 2 * p, 2)))
                for t in range(2):
                    a = ACC + (t * 9 + u) * 4
                    for p in range(2): k("v_cvt_pk_bf16_f32 v%d, v%d, v%d" % (e + 2 * t + p, a + 2 * p, a + 2 * p + 1))
                k("s_nop 1")
                k("v_permlane32_swap_b32 v%d, v%d" % (e, e + 2))
                k("v_permlane32_swap_b32 v%d, v%d" % (e + 1, e + 3))
                k("s_nop 1")
                k("buffer_store_dwordx4 %s, v%d, %s, s%d offen offset:%d%s" % (vr(e, 4), vT + 4, R, T[0], u * 256, SC))
            k("s_branch .L_s1_done")
    k.label(".L_s1_pp")
    s1_prepack(k)
    k.label(".L_s1_done")
    lab = k.newlab()
    k("s_cmp_lt_u32 s%d, 6" % ssub)
    k("s_cselect_b32 s%d, 4, 99" % T[0])
    k("s_cmp_eq_u32 s%d, s%d" % (sw, T[0]))
    k("s_cbranch_scc1 %s" % lab)
    fin_epoch(k)
    k.label(lab)
    stamp(k, 3)
    if WARM == 3:
        lab = k.newlab()
        k("s_cmp_ge_u32 s%d, 5" % sw)
        k("s_cselect_b32 s%d, s%d, 0" % (T[0], ssub))
        k("s_cmp_ge_u32 s%d, 6" % T[0])
        k("s_cbranch_scc1 %s" % lab)
        k("s_waitcnt vmcnt(0)")
        k.label(lab)
        k("s_waitcnt lgkmcnt(0)")
    signal(k, 1, spare=True, drain=(WARM != 3))
    stamp(k, 4)
    lab = k.newlab()
    k("s_cmp_lt_u32 s%d, 6" % ssub)
    k("s_cbranch_scc1 %s" % lab)
    k("s_cmp_lg_u32 s%d, 0" % sw)
    k("s_cbranch_scc1 %s" % lab)
    poll(k, req_spare, vt=30)
    k.label(lab)
    if WARM in (1, 4): warm_spare(k)

def s1_prepack(k):
    SL = 10240; HF_ = 5120; RED = 2 * SL
    sp, sM0, sS1, sD, sid = T[8], T[9], T[11], T[12], T[13]
    vO2, vA, vT = 7, 12, 16
    F = 28; X = 64; AC = 100
    k("s_lshl_b32 s%d, s%d, 2" % (sp, sg))
    k("s_add_u32 s%d, s%d, s%d" % (sp, sp, sq))
    k("s_lshl_b32 s%d, s%d, 1" % (sp, sp))
    k("s_and_b32 s%d, s%d, 1" % (T[0], ssub))
    k("s_add_u32 s%d, s%d, s%d" % (sp, sp, T[0]))
    k("v_lshrrev_b32 v%d, 3, v0" % vT)
    k("v_and_b32 v%d, 7, v0" % (vT + 1))
    k("v_lshlrev_b32 v%d, 4, v%d" % (vT + 1, vT + 1))
    k("s_cmp_ge_u32 s%d, 4" % sw)
    k("s_cbranch_scc1 .L_pp_cs")
    make_srd(k, sA, P_X, 2048 * 1152)
    k("v_mul_u32_u24 v%d, 1152, v%d" % (vT + 2, vT))
    k("v_add_u32 v%d, v%d, v%d" % (vT + 2, vT + 2, vT + 1))
    k("s_lshl_b32 s%d, s%d, 2" % (T[1], sp))
    k("s_add_u32 s%d, s%d, s%d" % (T[1], T[1], sw))
    k("s_mul_i32 s%d, s%d, %d" % (T[2], T[1], 8 * 1152))
    for j in range(9): k("buffer_load_dwordx4 %s, v%d, %s, s%d offen offset:%d" % (vr(X + 4 * j, 4), vT + 2, RA, T[2], j * 128))
    k("s_lshl_b32 s%d, s%d, 6" % (sid, sw))
    k("s_add_u32 s%d, s%d, s%d" % (sid, sid, sp))
    k("s_cmp_ge_u32 s%d, 72" % sid)
    k("s_cbranch_scc1 .L_pp_st")
    k("s_mul_i32 s%d, s%d, %d" % (sM0, sw, SL))
    make_srd(k, sB, P_WO, 576 * 1152)
    k("s_and_b32 s%d, s%d, 3" % (T[4], sid))
    k("s_lshr_b32 s%d, s%d, 2" % (T[5], sid))
    k("s_cmp_ge_u32 s%d, 16" % T[5])
    k("s_cbranch_scc1 .L_pp_wol")
    half_offsets(k, vO2, vT + 4, 1152, "nat")
    k("s_mul_i32 s%d, s%d, %d" % (sS1, T[5], 36 * 1152))
    k("s_mov_b32 s%d, %d" % (T[6], 18 * 1152))
    k("s_branch .L_pp_wo2")
    k.label(".L_pp_wol")
    half_offsets(k, vO2, vT + 4, 1152, "leftover")
    k("s_sub_u32 s%d, s%d, 16" % (sS1, T[5]))
    k("s_mul_i32 s%d, s%d, %d" % (sS1, sS1, 16 * 18 * 1152))
    k("s_mov_b32 s%d, %d" % (T[6], 8 * 18 * 1152))
    k.label(".L_pp_wo2")
    k("s_mul_i32 s%d, s%d, 288" % (T[3], T[4]))
    k("s_add_u32 s%d, s%d, s%d" % (sS1, sS1, T[3]))
    for hlf in range(2):
        if hlf: k("s_add_u32 s%d, s%d, s%d" % (sS1, sS1, T[6]))
        k("s_add_u32 m0, s%d, %d" % (sM0, hlf * HF_))
        k("s_nop 0")
        for j in range(4):
            k("buffer_load_dwordx4 v%d, %s, s%d offen offset:%d lds" % (vO2 + j, RB, sS1, j * 1024))
        k("s_add_u32 m0, s%d, %d" % (sM0, hlf * HF_ + 4096))
        k("s_nop 0")
        k("buffer_load_dwordx4 v%d, %s, s%d offen lds" % (vO2 + 4, RB, sS1))
    k.label(".L_pp_st")
    stamp(k, 1)
    for i in range(4): k("v_mov_b32 v%d, 0" % (AC + i))
    k("s_waitcnt vmcnt(0)")
    for i in range(36):
        a0, a1 = AC + 4 + 2 * (i & 1), AC + 5 + 2 * (i & 1)
        k("v_lshlrev_b32 v%d, 16, v%d" % (a0, X + i))
        k("v_and_b32 v%d, 0xffff0000, v%d" % (a1, X + i))
        k("v_add_f32 v%d, v%d, v%d" % (AC, AC, a0))
        k("v_add_f32 v%d, v%d, v%d" % (AC + 1, AC + 1, a1))
        k("v_fmac_f32 v%d, v%d, v%d" % (AC + 2, a0, a0))
        k("v_fmac_f32 v%d, v%d, v%d" % (AC + 3, a1, a1))
    k("v_add_f32 v%d, v%d, v%d" % (AC, AC, AC + 1))
    k("v_add_f32 v%d, v%d, v%d" % (AC + 2, AC + 2, AC + 3))
    for dpp in ("quad_perm:[1,0,3,2]", "quad_perm:[2,3,0,1]", "row_half_mirror"):
        k("s_nop 1")
        k("v_add_f32_dpp v%d, v%d, v%d %s row_mask:0xf bank_mask:0xf" % (AC + 1, AC, AC, dpp))
        k("v_add_f32_dpp v%d, v%d, v%d %s row_mask:0xf bank_mask:0xf" % (AC + 3, AC + 2, AC + 2, dpp))
        k("v_mov_b32 v%d, v%d" % (AC, AC + 1))
        k("v_mov_b32 v%d, v%d" % (AC + 2, AC + 3))
    ln_stats(k, AC, AC + 2, AC + 4, AC + 5, AC + 6)
    k("v_mul_f32 v%d, -v%d, v%d" % (AC + 4, AC + 4, AC + 5))
    k("v_lshlrev_b32 v%d, 2, v%d" % (vT + 2, vT))
    k("s_lshl_b32 s%d, s%d, 5" % (T[2], T[1]))
    k("s_add_u32 s%d, s%d, %d" % (T[2], T[2], L.ST1))
    k("s_mov_b32 exec_lo, 0x01010101")
    k("s_mov_b32 exec_hi, 0x01010101")
    k("buffer_store_dword v%d, v%d, %s, s%d offen%s" % (AC + 5, vT + 2, R, T[2], SC))
    k("s_add_u32 s%d, s%d, 8192" % (T[2], T[2]))
    k("buffer_store_dword v%d, v%d, %s, s%d offen%s" % (AC + 4, vT + 2, R, T[2], SC))
    k("s_mov_b64 exec, -1")
    k("s_cmp_ge_u32 s%d, 72" % sid)
    k("s_cbranch_scc1 .L_pp_bar")
    tr_addr(k, vA, vT + 4, HF_)
    k("v_add_u32 v%d, s%d, v%d" % (vA, sM0, vA))
    k("s_mul_i32 s%d, s%d, %d" % (sD, T[4], 9 * 18))
    k("s_add_u32 s%d, s%d, s%d" % (sD, sD, T[5]))
    k("s_lshl_b32 s%d, s%d, 10" % (sD, sD))
    k("s_add_u32 s%d, s%d, %d" % (sD, sD, L.WOP))
    for u in range(9):
        for h in range(2):
            k("ds_read_b64_tr_b16 %s, v%d offset:%d" % (vr(F + 4 * u + 2 * h, 2), vA, h * 2304 + u * 32))
    k("s_waitcnt lgkmcnt(0)")
    for u in range(9):
        k("buffer_store_dwordx4 %s, v%d, %s, s%d offen%s" % (vr(F + 4 * u, 4), vS, R, sD, SC))
        k("s_add_u32 s%d, s%d, 18432" % (sD, sD))
    k("s_branch .L_pp_bar")
    k.label(".L_pp_cs")
    make_srd(k, sB, P_WQKV, 576 * 3456)
    k("v_mul_u32_u24 v%d, 3456, v%d" % (vT + 2, vT))
    k("v_add_u32 v%d, v%d, v%d" % (vT + 2, vT + 2, vT + 1))
    k("s_lshl_b32 s%d, s%d, 2" % (T[1], T[0]))
    k("s_add_u32 s%d, s%d, s%d" % (T[1], T[1], sw))
    k("s_sub_u32 s%d, s%d, 4" % (T[1], T[1]))
    k("s_mul_i32 s%d, s%d, %d" % (T[2], T[1], 72 * 3456))
    k("s_lshr_b32 s%d, s%d, 1" % (T[3], sp))
    k("s_lshl_b32 s%d, s%d, 7" % (T[4], T[3]))
    k("s_add_u32 s%d, s%d, s%d" % (T[2], T[2], T[4]))
    k("s_cmp_ge_u32 s%d, 54" % sp)
    k("s_cselect_b32 s%d, 0x7f000000, s%d" % (T[2], T[2]))
    for j in range(9):
        k("buffer_load_dwordx4 %s, v%d, %s, s%d offen" % (vr(X + 4 * j, 4), vT + 2, RB, T[2]))
        k("s_add_u32 s%d, s%d, %d" % (T[2], T[2], 8 * 3456))
    stamp(k, 1)
    NW3 = 0
    if WARM == 3:
        NW3 = 9
        warm3(k)
    for i in range(8): k("v_mov_b32 v%d, 0" % (AC + i))
    for j in range(9):
        k("s_waitcnt vmcnt(%d)" % (8 - j + NW3))
        for i in range(4):
            k("v_lshlrev_b32 v%d, 16, v%d" % (AC + 8 + 2 * i, X + 4 * j + i))
            k("v_and_b32 v%d, 0xffff0000, v%d" % (AC + 9 + 2 * i, X + 4 * j + i))
        for i in range(8): k("v_add_f32 v%d, v%d, v%d" % (AC + i, AC + i, AC + 8 + i))
    k("s_lshl_b32 s%d, s%d, 11" % (T[4], sw))
    k("s_add_u32 s%d, s%d, %d" % (T[4], T[4], RED - 4 * 2048))
    k("v_lshlrev_b32 v%d, 5, v0" % (vT + 2))
    k("v_add_u32 v%d, s%d, v%d" % (vT + 2, T[4], vT + 2))
    k("ds_write_b128 v%d, %s" % (vT + 2, vr(AC, 4)))
    k("ds_write_b128 v%d, %s offset:16" % (vT + 2, vr(AC + 4, 4)))
    k("s_waitcnt lgkmcnt(0)")
    k.label(".L_pp_bar")
    k("s_barrier")
    k("s_cmp_lg_u32 s%d, 4" % sw)
    k("s_cbranch_scc1 .L_pp_warm")
    k("v_lshlrev_b32 v%d, 2, v0" % (vT + 2))
    k("v_add_u32 v%d, %d, v%d" % (vT + 3, RED, vT + 2))
    for i in range(32): k("ds_read_b32 v%d, v%d offset:%d" % (X + i, vT + 3, i * 256))
    k("s_waitcnt lgkmcnt(0)")
    for st in (16, 8, 4, 2, 1):
        for i in range(st): k("v_add_f32 v%d, v%d, v%d" % (X + i, X + i, X + i + st))
    k("s_mul_i32 s%d, s%d, 6912" % (T[2], T[0]))
    k("s_lshl_b32 s%d, s%d, 8" % (T[4], T[3]))
    k("s_add_u32 s%d, s%d, s%d" % (T[2], T[2], T[4]))
    k("s_add_u32 s%d, s%d, %d" % (T[2], T[2], L.CS1))
    k("s_cmp_ge_u32 s%d, 54" % sp)
    k("s_cselect_b32 s%d, 0x7f000000, s%d" % (T[2], T[2]))
    k("buffer_store_dword v%d, v%d, %s, s%d offen%s" % (X, vT + 2, R, T[2], SC))
    k.label(".L_pp_warm")

def warm_spare(k):
    vT, F = 16, 244
    lab = k.newlab()
    k("s_cmp_lt_u32 s%d, 6" % ssub)
    k("s_cbranch_scc1 %s" % lab)
    make_srd(k, sA, P_G, 576 * 9216)
    make_srd(k, sB, P_U, 576 * 9216)
    k("s_lshl_b32 s%d, s%d, 1" % (T[1], sg))
    k("s_and_b32 s%d, s%d, 1" % (T[0], ssub))
    k("s_add_u32 s%d, s%d, s%d" % (T[1], T[1], T[0]))
    k("s_lshl_b32 s%d, s%d, 3" % (T[1], T[1]))
    k("s_add_u32 s%d, s%d, s%d" % (T[1], T[1], sw))
    k("s_mul_i32 s%d, s%d, 81" % (T[4], T[1]))
    k("s_mul_i32 s%d, s%d, 2304" % (T[2], sq))
    for j in range(2):
        k("v_add_u32 v%d, %d, v0" % (vT, 64 * j))
        k("v_min_u32 v%d, 80, v%d" % (vT, vT))
        k("v_add_u32 v%d, s%d, v%d" % (vT, T[4], vT))
        k("v_lshlrev_b32 v%d, 7, v%d" % (vT + 8 + j, vT))
        k("v_mul_u32_u24 v%d, 58255, v%d" % (vT + 1, vT))
        k("v_lshrrev_b32 v%d, 20, v%d" % (vT + 1, vT + 1))
        k("v_mul_u32_u24 v%d, %d, v%d" % (vT + 1, 9216 - 2304, vT + 1))
        k("v_add_u32 v%d, v%d, v%d" % (vT + 4 + j, vT + 8 + j, vT + 1))
        if j == 1: k("s_mov_b64 exec, 0x1ffff")
        k("buffer_load_dword v%d, v%d, %s, s%d offen" % (F + 2 * j, vT + 4 + j, RA, T[2]))
        k("buffer_load_dword v%d, v%d, %s, s%d offen" % (F + 2 * j + 1, vT + 4 + j, RB, T[2]))
    k("s_mov_b64 exec, -1")
    if WARM == 1:
        make_srd(k, sA, P_D, 4608 * 1152)
        k("s_mul_i32 s%d, s%d, %d" % (T[3], sq, 1152 * 1152))
        k("buffer_load_dword v%d, v%d, %s, s%d offen" % (F + 8, vT + 8, RA, T[3]))
        k("s_mov_b64 exec, 0x1ffff")
        k("buffer_load_dword v%d, v%d, %s, s%d offen" % (F + 9, vT + 9, RA, T[3]))
        k("s_mov_b64 exec, -1")
    k.label(lab)

def warm3(k):
    vT, F = 140, 160
    k("s_cmp_eq_u32 s%d, 6" % sw)
    k("s_cselect_b32 s%d, s%d, s%d" % (T[4], P_U, P_G)); k("s_cselect_b32 s%d, s%d, s%d" % (T[5], P_U + 1, P_G + 1))
    k("s_mov_b32 s%d, %d" % (T[6], 9216 - 2304))
    k("s_mul_i32 s%d, s%d, 2304" % (T[7], sq))
    k("s_mul_i32 s%d, s%d, %d" % (T[14], sq, 1152 * 1152))
    k("s_cmp_eq_u32 s%d, 7" % sw)
    k("s_cselect_b32 s%d, s%d, s%d" % (T[4], P_D, T[4])); k("s_cselect_b32 s%d, s%d, s%d" % (T[5], P_D + 1, T[5]))
    k("s_cselect_b32 s%d, 0, s%d" % (T[6], T[6]))
    k("s_cselect_b32 s%d, s%d, s%d" % (T[7], T[14], T[7]))
    k("s_cmp_eq_u32 s%d, 4" % sw)
    k("s_cselect_b32 s%d, 0x7f000000, s%d" % (T[7], T[7]))
    make_srd(k, sA, T[4], 576 * 9216)
    k("s_lshl_b32 s%d, s%d, 1" % (T[14], sg))
    k("s_add_u32 s%d, s%d, s%d" % (T[14], T[14], T[0]))
    k("s_mul_i32 s%d, s%d, 648" % (T[14], T[14]))
    for j in range(9):
        k("v_add_u32 v%d, %d, v0" % (vT, 72 * j))
        k("v_add_u32 v%d, s%d, v%d" % (vT, T[14], vT))
        k("v_mul_u32_u24 v%d, 58255, v%d" % (vT + 1, vT))
        k("v_lshrrev_b32 v%d, 20, v%d" % (vT + 1, vT + 1))
        k("v_mul_lo_u32 v%d, s%d, v%d" % (vT + 1, T[6], vT + 1))
        k("v_lshl_add_u32 v%d, v%d, 7, v%d" % (vT, vT, vT + 1))
        k("buffer_load_dword v%d, v%d, %s, s%d offen" % (F + j, vT, RA, T[7]))

def warm(k, vT, vdst):
    lab = k.newlab()
    k("s_and_b32 s%d, s%d, 3" % (T[0], sg))
    k("s_lshl_b32 s%d, s%d, 3" % (T[0], T[0]))
    k("s_add_u32 s%d, s%d, s%d" % (T[0], T[0], ssub))
    k("s_lshl_b32 s%d, s%d, 3" % (T[0], T[0]))
    k("s_add_u32 s%d, s%d, s%d" % (T[0], T[0], sw))
    k("s_min_u32 s%d, s%d, 242" % (T[0], T[0]))
    k("s_mov_b32 s%d, s%d" % (T[2], P_G)); k("s_mov_b32 s%d, s%d" % (T[3], P_G + 1))
    k("s_mov_b32 s%d, %d" % (T[1], 9216 - 2304))
    k("s_mul_i32 s%d, s%d, 2304" % (T[13], sq))
    k("s_cmp_ge_u32 s%d, 81" % T[0])
    k("s_cselect_b32 s%d, s%d, s%d" % (T[2], P_U, T[2])); k("s_cselect_b32 s%d, s%d, s%d" % (T[3], P_U + 1, T[3]))
    k("s_cselect_b32 s%d, 81, 0" % T[14])
    k("s_mul_i32 s%d, s%d, %d" % (T[15], sq, 1152 * 1152))
    k("s_cmp_ge_u32 s%d, 162" % T[0])
    k("s_cselect_b32 s%d, s%d, s%d" % (T[2], P_D, T[2])); k("s_cselect_b32 s%d, s%d, s%d" % (T[3], P_D + 1, T[3]))
    k("s_cselect_b32 s%d, 162, s%d" % (T[14], T[14]))
    k("s_cselect_b32 s%d, 0, s%d" % (T[1], T[1]))
    k("s_cselect_b32 s%d, s%d, s%d" % (T[13], T[15], T[13]))
    make_srd(k, sA, T[2], 576 * 9216)
    k("s_sub_u32 s%d, s%d, s%d" % (T[0], T[0], T[14]))
    k("s_lshr_b32 s%d, s%d, 2" % (T[14], sg))
    k("s_mul_i32 s%d, s%d, 81" % (T[14], T[14]))
    k("s_add_u32 s%d, s%d, s%d" % (T[0], T[0], T[14]))
    k("s_lshl_b32 s%d, s%d, 6" % (T[0], T[0]))
    k("v_add_u32 v%d, s%d, v0" % (vT, T[0]))
    k("v_mul_u32_u24 v%d, 58255, v%d" % (vT + 1, vT))
    k("v_lshrrev_b32 v%d, 20, v%d" % (vT + 1, vT + 1))
    k("v_mul_lo_u32 v%d, s%d, v%d" % (vT + 1, T[1], vT + 1))
    k("v_lshl_add_u32 v%d, v%d, 7, v%d" % (vT, vT, vT + 1))
    k("v_add_u32 v%d, s%d, v%d" % (vdst, T[13], vT))

def s2(k):
    LB = 73728
    KI, VI, QI = 0, 24576, 45056
    BIAS = 36864
    shd, sqb, sgp = si, T[8], T[9]
    sC = 80
    SB = 16
    M0_, M8_, CM = 64, 80, 96
    KF = 112
    VF = 184
    O = 216; Q_ = 232
    vKa, vKb, vVa, vQb, vT, vM = 2, 3, 4, 5, 6, 14
    NEG = hx(f32bits(-1e30))
    k("s_lshl_b32 s%d, s%d, 3" % (sqb, sg))
    k("s_add_u32 s%d, s%d, s%d" % (sqb, sqb, sw))
    k("s_mul_i32 s%d, s%d, 9" % (T[4], shd))
    k("s_lshr_b32 s%d, s%d, 2" % (T[4], T[4]))
    k("s_lshl_b32 s%d, s%d, 9" % (T[4], T[4]))
    k("s_mul_i32 s%d, s%d, %d" % (T[5], sg, 8 * 36864))
    k("s_add_u32 s%d, s%d, s%d" % (T[4], T[4], T[5]))
    k("s_add_u32 s%d, s%d, %d" % (T[5], T[4], L.QP))
    k("s_add_u32 s%d, s%d, %d" % (T[4], T[4], L.KP - 8 * 36864))
    k("s_mul_i32 s%d, s%d, %d" % (T[6], sg, 32 * L.VPL))
    k("s_add_u32 s%d, s%d, %d" % (T[6], T[6], L.VP - 32 * L.VPL))
    k("s_mul_i32 s%d, s%d, 288" % (T[12], shd))
    k("s_lshl_b32 s%d, s%d, 6" % (T[7], sw))
    k("v_add_u32 v%d, s%d, v0" % (vT, T[7]))
    OFF = KF
    k("v_mov_b32 v%d, 0x7ff00000" % (vT + 4))
    k("s_cmp_eq_u32 s%d, 0" % sg)
    k("s_cselect_b32 s%d, 768, 0" % T[10])
    k("s_cselect_b32 s%d, 640, 0" % T[11])
    k("s_cselect_b32 s%d, 8, 0" % T[13])
    for i in range(3):
        k("v_add_u32 v%d, %d, v%d" % (vT + 1, 512 * i, vT))
        k("v_mul_u32_u24 v%d, 43691, v%d" % (vT + 2, vT + 1))
        k("v_lshrrev_b32 v%d, 22, v%d" % (vT + 2, vT + 2))
        k("v_mul_u32_u24 v%d, %d, v%d" % (vT + 3, 36864 - 1536, vT + 2))
        k("v_lshl_add_u32 v%d, v%d, 4, v%d" % (OFF + 6 + i, vT + 1, vT + 3))
        k("v_mul_u32_u24 v%d, 3277, v%d" % (vT + 2, vT + 1))
        k("v_lshrrev_b32 v%d, 16, v%d" % (vT + 2, vT + 2))
        k("v_mul_u32_u24 v%d, 20, v%d" % (vT + 3, vT + 2))
        k("v_sub_u32 v%d, v%d, v%d" % (vT + 3, vT + 1, vT + 3))
        k("v_cmp_gt_u32 vcc, 18, v%d" % (vT + 3))
        k("v_lshlrev_b32 v%d, 4, v%d" % (vT + 3, vT + 3))
        k("v_add_u32 v%d, s%d, v%d" % (vT + 3, T[12], vT + 3))
        k("v_mov_b32 v%d, 9216" % (vT + 5))
        k("v_cndmask_b32 v%d, v%d, v%d, vcc" % (vT + 3, vT + 5, vT + 3))
        k("v_mul_u32_u24 v%d, %d, v%d" % (vT + 2, L.VPL, vT + 2))
        k("v_add_u32 v%d, v%d, v%d" % (OFF + 3 + i, vT + 2, vT + 3))
        k("v_cmp_gt_u32 vcc, s%d, v%d" % (T[10], vT + 1))
        k("v_cmp_gt_u32 s[%d:%d], s%d, v%d" % (sC, sC + 1, T[11], vT + 1))
        k("s_nop 1")
        k("v_cndmask_b32 v%d, v%d, v%d, vcc" % (OFF + i, OFF + 6 + i, vT + 4))
        k("v_cndmask_b32 v%d, v%d, v%d, s[%d:%d]" % (OFF + 3 + i, OFF + 3 + i, vT + 4, sC, sC + 1))
    k("v_cmp_gt_u32 vcc, s%d, v0" % T[13])
    k("v_mov_b32 v%d, 0xf149" % (vT + 2))
    k("v_mul_u32_u24 v%d, 1536, v0" % (vT + 1))
    k("v_cndmask_b32 v%d, 0, v%d, vcc" % (SB, vT + 2))
    for i in range(1, 4): k("v_mov_b32 v%d, 0" % (SB + i))
    k("s_mov_b64 exec, 0xffff")
    k("ds_write_b128 v%d, %s offset:%d" % (vT + 1, vr(SB, 4), BIAS))
    k("s_mov_b64 exec, -1")
    k("v_and_b32 v%d, 31, v0" % vT)
    k("v_lshrrev_b32 v%d, 5, v0" % (vT + 1))
    k("s_mul_i32 s%d, s%d, 1536" % (T[0], sw))
    k("s_add_u32 s%d, s%d, %d" % (T[1], T[0], LB))
    k("v_add_u32 v%d, s%d, v%d" % (vKa, T[1], vS))
    k("v_lshlrev_b32 v%d, 4, v%d" % (vT + 2, vT))
    k("v_add_u32 v%d, s%d, v%d" % (vQb, T[1], vT + 2))
    k("v_add_u32 v%d, 1024, v%d" % (vQb, vQb))
    k("s_add_u32 s%d, s%d, %d" % (T[1], T[0], BIAS))
    k("v_mov_b32 v%d, s%d" % (vKb, T[1]))
    k("v_cmp_gt_u32 vcc, 32, v0")
    k("s_mul_i32 s%d, s%d, 1280" % (T[0], sw))
    k("s_add_u32 s%d, s%d, %d" % (T[0], T[0], LB))
    k("v_cndmask_b32 v%d, v%d, v%d, vcc" % (vKb, vKb, vQb))
    k("v_mul_u32_u24 v%d, 320, v%d" % (vVa, vT + 1))
    k("v_add3_u32 v%d, v%d, v%d, s%d" % (vVa, vVa, vT + 2, T[0]))
    k("v_lshlrev_b32 v%d, 2, v%d" % (vT + 2, vT + 1))
    k("v_sub_u32 v%d, v%d, v%d" % (vT + 2, vT, vT + 2))
    k("v_mov_b32 v%d, %s" % (vT + 3, NEG))
    for half in range(2):
        for r8 in range(8):
            r = half * 8 + r8
            k("v_cmp_le_i32 s[%d:%d], %d, v%d" % (sC + 2 * r8, sC + 2 * r8 + 1, 8 * (r >> 2) + (r & 3), vT + 2))
        for r8 in range(8):
            r = half * 8 + r8
            k("v_cndmask_b32 v%d, v%d, 0, s[%d:%d]" % (M8_ + r, vT + 3, sC + 2 * r8, sC + 2 * r8 + 1))
            k("v_cndmask_b32 v%d, 0, v%d, s[%d:%d]" % (M0_ + r, vT + 3, sC + 2 * r8, sC + 2 * r8 + 1))
    k("s_lshl_b32 s%d, s%d, 1" % (T[0], shd))
    k("s_and_b32 s%d, s%d, 7" % (T[0], T[0]))
    k("v_lshlrev_b32 v%d, 3, v%d" % (vT + 4, vT + 1))
    k("v_subrev_u32 v%d, s%d, v%d" % (vT + 4, T[0], vT + 4))
    for p in range(8):
        k("v_add_u32 v%d, %d, v%d" % (vT + 5, (p >> 2) * 16 + (p & 3) * 2, vT + 4))
        k("v_cmp_gt_u32 s[%d:%d], 18, v%d" % (sC + 2 * p, sC + 2 * p + 1, vT + 5))
    k("v_mul_u32_u24 v%d, 0x3f80, v%d" % (vT + 6, vT + 1))
    if CODEPF >= 3:
        lab = k.newlab()
        k("s_add_u32 s%d, s%d, s%d" % (T[0], ssub, sw))
        k("s_cmp_lg_u32 s%d, 1" % T[0])
        k("s_cbranch_scc1 %s" % lab)
        code_pf(k, ".L_code_s3", 4, 210, 250, T[2])
        k.label(lab)
    s4_srd(k)
    s4_offsets(k, 200, 210)
    k("s_sub_u32 s%d, s%d, 1" % (sgp, sg))
    k("s_max_i32 s%d, s%d, 0" % (sgp, sgp))
    k("s_lshl_b32 s%d, s%d, 10" % (T[7], sw))
    wait_flags(k, req_group(1, sgp, mask_qkv), vt=240)
    stamp(k, 5)
    def dma(img, i, voff, soff, wlim):
        lab = None
        if wlim < 8:
            lab = k.newlab()
            k("s_cmp_ge_u32 s%d, %d" % (sw, wlim))
            k("s_cbranch_scc1 %s" % lab)
        k("s_add_u32 m0, s%d, %d" % (T[7], LB + img + i * 8192))
        k("s_nop 0")
        k("buffer_load_dwordx4 v%d, %s, s%d offen%s lds" % (voff, R, soff, SC))
        if lab: k.label(lab)
    dma(QI, 0, OFF + 6, T[5], 8); dma(QI, 1, OFF + 7, T[5], 4)
    for i in range(3): dma(KI, i, OFF + i, T[4], 8)
    dma(VI, 2, OFF + 5, T[6], 4)
    for i in range(2): dma(VI, i, OFF + 3 + i, T[6], 8)
    k("s_waitcnt vmcnt(2) lgkmcnt(0)")
    k("s_barrier")
    stamp(k, 6)
    order = [8, 7, 6, 5, 4, 3, 2, 1, 0]
    lq = Q(k, "lgkmcnt", 15)
    lq.op("q", "ds_read_b128 %s, v%d offset:%d" % (vr(Q_, 4), vKa, QI))
    lq.op("q", "ds_read_b128 %s, v%d offset:%d" % (vr(Q_ + 4, 4), vQb, QI))
    def kread(n):
        j = order[n]
        lq.op("k%d" % n, "ds_read_b128 %s, v%d offset:%d" % (vr(KF + 8 * n, 4), vKa, KI + j * 1536))
        lq.op("k%d" % n, "ds_read_b128 %s, v%d offset:%d" % (vr(KF + 8 * n + 4, 4), vKb, KI + j * 1536))
    def vread(n):
        j = order[n]
        for ks in range(2):
            lq.op("v%d" % n, "ds_read_b128 %s, v%d offset:%d" % (vr(VF + 8 * (n % 4) + 4 * ks, 4), vVa, VI + j * 1280 + ks * 640))
    for n in range(5): kread(n)
    lq.wait("q")
    for p in range(8): k("v_cndmask_b32 v%d, %s, v%d, s[%d:%d]" % (Q_ + p, "v%d" % (vT + 6) if p == 4 else "0", Q_ + p, sC + 2 * p, sC + 2 * p + 1))
    for i in range(16): k("v_mov_b32 v%d, 0" % (O + i))
    def qk(n, part, cfirst):
        sb = vr(SB + 16 * (n % 3), 16)
        if part == 0: k("v_mfma_f32_32x32x16_bf16 %s, %s, %s, %s" % (sb, vr(KF + 8 * n, 4), vr(Q_, 4), cfirst))
        else: k("v_mfma_f32_32x32x16_bf16 %s, %s, %s, %s" % (sb, vr(KF + 8 * n + 4, 4), vr(Q_ + 4, 4), sb))
    ch = [vT + 4, vT + 5, vM, vM + 1]
    def mx(n):
        o = []
        b = SB + 16 * (n % 3)
        for i in range(8):
            c = ch[i & 3]
            if n == 0 and i < 4: o.append("v_max_f32 v%d, v%d, v%d" % (c, b + 2 * i, b + 2 * i + 1))
            else: o.append("v_max3_f32 v%d, v%d, v%d, v%d" % (c, c, b + 2 * i, b + 2 * i + 1))
        return o
    for n in range(11):
        f = mx(n - 2) if n >= 2 else []
        if n < 9:
            if n + 5 < 9: kread(n + 5)
            lq.wait("k%d" % n)
            for x in f[:4]: k(x)
            qk(n, 0, vr(M8_, 16) if n == 0 else (vr(M0_, 16) if n == 8 else "0"))
            for x in f[4:]: k(x)
            qk(n, 1, None)
            if n < 2: k("s_nop 3")
            if EARLYW and 2 <= n < 7: s4_wdma(k, 200, 0, n - 2)
        else:
            if n == 9: k("s_nop 3")
            if n == 10: k("s_nop 1")
            for x in f: k(x)
    k("s_waitcnt vmcnt(%d)" % (5 if EARLYW else 0))
    k("s_barrier")
    for n in range(3): vread(n)
    k("v_max3_f32 v%d, v%d, v%d, v%d" % (vM, vM, ch[0], ch[1]))
    k("v_max_f32 v%d, v%d, v%d" % (vM, vM, vM + 1))
    k("v_mov_b32 v%d, v%d" % (vM + 1, vM))
    k("s_nop 1")
    k("v_permlane32_swap_b32 v%d, v%d" % (vM, vM + 1))
    k("s_nop 1")
    k("v_max_f32 v%d, v%d, v%d" % (vM, vM, vM + 1))
    for r in range(16): k("v_sub_f32 v%d, v%d, v%d" % (M8_ + r, M8_ + r, vM))
    for r in range(16): k("v_sub_f32 v%d, 0, v%d" % (CM + r, vM))
    stamp(k, 7)
    def pv(n, ks):
        b = SB + 16 * (n % 3)
        k("v_mfma_f32_32x32x16_bf16 %s, %s, %s, %s" % (vr(O, 16), vr(VF + 8 * (n % 4) + 4 * ks, 4), vr(b + 4 * ks, 4), vr(O, 16)))
    for n in range(11):
        ex = []
        if 1 <= n <= 9:
            b = SB + 16 * ((n - 1) % 3)
            ex = ["v_exp_f32 v%d, v%d" % (b + r, b + r) for r in range(16)]
            cv = ["v_cvt_pk_bf16_f32 v%d, v%d, v%d" % (b + i, b + 2 * i, b + 2 * i + 1) for i in range(8)]
        mf = []
        if n >= 2:
            lq.wait("v%d" % (n - 2))
            mf += [lambda n=n: pv(n - 2, 0), lambda n=n: pv(n - 2, 1)]
        if n < 9:
            c = vr(M8_, 16) if n == 0 else (vr(M0_, 16) if n == 8 else vr(CM, 16))
            mf += [lambda n=n, c=c: qk(n, 0, c), lambda n=n: qk(n, 1, None)]
        if n == 1:
            mf[0](); mf[1](); mf = []
            for r in range(16): k("v_sub_f32 v%d, v%d, v%d" % (M0_ + r, M0_ + r, vM))
        for i in range(4):
            if mf: mf.pop(0)()
            for x in ex[4 * i:4 * i + 4]: k(x)
        if ex:
            for x in cv: k(x)
        if 2 <= n and n + 1 < 9: vread(n + 1)
        if n == 9: k("s_nop 1")
    k("v_lshrrev_b32 v%d, 4, v%d" % (vT + 2, vT))
    k("v_mul_u32_u24 v%d, 18432, v%d" % (vT + 2, vT + 2))
    k("v_and_b32 v%d, 15, v%d" % (vT + 3, vT))
    k("v_lshl_add_u32 v%d, v%d, 4, v%d" % (vT + 2, vT + 3, vT + 2))
    k("v_lshl_add_u32 v%d, v%d, 8, v%d" % (vT + 3, vT + 1, vT + 2))
    k("s_mul_i32 s%d, s%d, 36864" % (T[0], sqb))
    k("s_add_u32 s%d, s%d, %d" % (T[0], T[0], L.OP))
    k("s_lshl_b32 s%d, s%d, 9" % (T[1], shd))
    k("s_add_u32 s%d, s%d, s%d" % (T[1], T[1], T[0]))
    k("s_lshr_b32 s%d, s%d, 4" % (T[2], shd))
    k("s_add_u32 s%d, s%d, 16" % (T[2], T[2]))
    k("s_lshl_b32 s%d, s%d, 10" % (T[2], T[2]))
    k("s_add_u32 s%d, s%d, s%d" % (T[2], T[2], T[0]))
    for bit, sh in ((3, 9), (1, 8), (2, 3), (0, 2)):
        k("s_bfe_u32 s%d, s%d, 0x1000%d" % (T[3], shd, bit))
        k("s_lshl_b32 s%d, s%d, %d" % (T[3], T[3], sh))
        k("s_add_u32 s%d, s%d, s%d" % (T[2], T[2], T[3]))
    k("v_mov_b32 v%d, v%d" % (vM, O + 10))
    k("v_mov_b32 v%d, v%d" % (vM + 1, O + 10))
    k("s_nop 1")
    k("v_permlane32_swap_b32 v%d, v%d" % (vM, vM + 1))
    k("s_nop 1")
    k("v_rcp_f32 v%d, v%d" % (vM, vM))
    k("s_nop 0")
    for r in range(10): k("v_mul_f32 v%d, v%d, v%d" % (O + r, O + r, vM))
    for i in range(5): k("v_cvt_pk_bf16_f32 v%d, v%d, v%d" % (O + i, O + 2 * i, O + 2 * i + 1))
    k("buffer_store_dwordx4 %s, v%d, %s, s%d offen%s" % (vr(O, 4), vT + 3, R, T[1], SC))
    k("s_mov_b32 exec_hi, 0")
    k("buffer_store_dword v%d, v%d, %s, s%d offen%s" % (O + 4, vT + 2, R, T[2], SC))
    k("s_mov_b32 exec_hi, -1")
    stamp(k, 8)
    if STOP <= 2:
        signal(k, 2)
        stamp(k, 9)

def s3(k):
    k.label(".L_code_s3")
    OI, XI, SI = 73728, 131072, 131072 + 9216
    stt = T[8]
    vT = 2
    OF = 12
    WF = 28
    WX = 100
    ACC = 172
    E = 184
    k("s_lshl_b32 s%d, s%d, 3" % (stt, sg))
    k("s_add_u32 s%d, s%d, s%d" % (stt, stt, ssub))
    make_srd(k, sA, P_X, 2048 * 1152)
    k("s_mul_i32 s%d, s%d, 9" % (T[4], sq))
    k("s_mul_i32 s%d, s%d, 36864" % (T[6], stt))
    k("s_mul_i32 s%d, s%d, 288" % (T[7], sq))
    k("s_add_u32 s%d, s%d, s%d" % (T[6], T[6], T[7]))
    def wloads(dst, sidx):
        k("s_add_u32 s%d, s%d, %s" % (T[5], T[4], sidx))
        k("s_mul_i32 s%d, s%d, 18432" % (T[5], T[5]))
        k("s_add_u32 s%d, s%d, %d" % (T[5], T[5], L.WOP))
        for ks in range(18):
            if ks and ks % 4 == 0: k("s_add_u32 s%d, s%d, 4096" % (T[5], T[5]))
            k("buffer_load_dwordx4 %s, v%d, %s, s%d offen offset:%d%s" % (vr(dst + 4 * ks, 4), vS, R, T[5], (ks % 4) * 1024, SC))
    def xdma(sidx):
        k("s_lshl_b32 s%d, s%d, 6" % (T[7], sidx))
        k("v_add_u32 v%d, s%d, v0" % (vT, T[7]))
        k("v_mul_u32_u24 v%d, 3641, v%d" % (vT + 1, vT))
        k("v_lshrrev_b32 v%d, 16, v%d" % (vT + 1, vT + 1))
        k("v_mul_u32_u24 v%d, %d, v%d" % (vT + 1, 1152 - 288, vT + 1))
        k("v_lshl_add_u32 v%d, v%d, 4, v%d" % (vT + 1, vT, vT + 1))
        k("s_lshl_b32 s%d, s%d, 10" % (T[7], sidx))
        k("s_add_u32 m0, s%d, %d" % (T[7], XI))
        k("s_nop 0")
        k("buffer_load_dwordx4 v%d, %s, s%d offen lds" % (vT + 1, RA, T[6]))
    lab = k.newlab(); lab2 = k.newlab(); lab3 = k.newlab(); lab4 = k.newlab()
    k("s_cmp_ge_u32 s%d, 4" % sw)
    k("s_cbranch_scc1 %s" % lab)
    wloads(WF, "s%d" % sw)
    xdma(sw)
    k("s_waitcnt vmcnt(19)")
    k("s_cmp_ge_u32 s%d, 2" % sw)
    k("s_cbranch_scc1 %s" % lab2)
    wloads(WX, "8")
    k("s_branch %s" % lab3)
    k.label(lab2)
    k("s_add_u32 s%d, s%d, 6" % (T[9], sw))
    k("s_cmp_eq_u32 s%d, 9" % T[9])
    k("s_cbranch_scc1 %s" % lab3)
    xdma(T[9])
    k("s_branch %s" % lab3)
    k.label(lab)
    k("s_waitcnt vmcnt(0)")
    k.label(lab3)
    signal(k, 2, drain=False, vt=E, wave=7)
    k("s_cmp_lt_u32 s%d, 4" % sw)
    k("s_cbranch_scc1 %s" % lab4)
    wloads(WF, "s%d" % sw)
    xdma(sw)
    k.label(lab4)
    stamp(k, 9)
    k("v_and_b32 v%d, 15, v0" % vT)
    k("v_lshrrev_b32 v%d, 4, v0" % (vT + 1))
    k("v_mul_u32_u24 v%d, 288, v%d" % (vT + 2, vT))
    k("v_lshl_add_u32 v%d, v%d, 3, v%d" % (vT + 2, vT + 1, vT + 2))
    k("v_add_u32 v%d, %d, v%d" % (vT + 2, XI, vT + 2))
    k("s_lshl_b32 s%d, s%d, 5" % (T[4], sw))
    k("v_add_u32 v%d, s%d, v%d" % (vT + 4, T[4], vT + 2))
    k("s_mul_i32 s%d, s%d, 4608" % (T[4], sw))
    k("v_add_u32 v%d, s%d, v%d" % (vT + 5, T[4], vT + 2))
    k("v_lshrrev_b32 v%d, 5, v0" % (vT + 3))
    k("v_mul_u32_u24 v%d, %d, v%d" % (vT + 3, 18432 - 512, vT + 3))
    k("v_add_u32 v%d, v%d, v%d" % (vT + 3, vT + 3, vS))
    k("v_add_u32 v%d, %d, v%d" % (vT + 6, OI, vS))
    k("s_mul_i32 s%d, s%d, 36864" % (T[10], stt))
    k("s_mul_i32 s%d, s%d, 9" % (T[4], sq))
    k("s_add_u32 s%d, s%d, s%d" % (T[5], T[4], sw))
    k("s_lshl_b32 s%d, s%d, 9" % (T[5], T[5]))
    k("s_add_u32 s%d, s%d, s%d" % (T[11], T[10], T[5]))
    k("s_add_u32 s%d, s%d, %d" % (T[11], T[11], L.HP))
    k("s_add_u32 s%d, s%d, 8" % (T[5], T[4]))
    k("s_lshl_b32 s%d, s%d, 9" % (T[5], T[5]))
    k("s_add_u32 s%d, s%d, s%d" % (T[12], T[10], T[5]))
    k("s_mul_i32 s%d, s%d, 18432" % (T[5], sw))
    k("s_add_u32 s%d, s%d, s%d" % (T[12], T[12], T[5]))
    k("s_add_u32 s%d, s%d, %d" % (T[12], T[12], L.HP))
    k("s_mul_i32 s%d, s%d, 4608" % (T[13], sw))
    k("s_add_u32 s%d, s%d, s%d" % (T[10], T[10], T[13]))
    k("s_add_u32 s%d, s%d, %d" % (T[10], T[10], L.OP))
    s4_offsets(k, 210, 220)
    wait_flags(k, req_group(2), vt=E, wave=3)
    stamp(k, 10)
    k("s_add_u32 m0, s%d, %d" % (T[13], OI))
    k("s_nop 0")
    for j in range(4): k("buffer_load_dwordx4 v%d, %s, s%d offen offset:%d%s lds" % (vS, R, T[10], j * 1024, SC))
    k("s_add_u32 m0, s%d, %d" % (T[13], OI + 4096))
    k("s_add_u32 s%d, s%d, 4096" % (T[10], T[10]))
    k("s_mov_b32 exec_hi, 0")
    k("buffer_load_dwordx4 v%d, %s, s%d offen%s lds" % (vS, R, T[10], SC))
    k("s_mov_b32 exec_hi, -1")
    for j in range(5 if EARLYW else 0): s4_wdma(k, 210, 1, j)
    k("s_waitcnt vmcnt(%d)" % (5 if EARLYW else 0))
    k("s_barrier")
    stamp(k, 11)
    def oread(ks):
        for t in range(2):
            k("ds_read_b128 %s, v%d offset:%d" % (vr(OF + ((ks & 1) * 2 + t) * 4, 4), vT + 6, (t * 18 + ks) * 1024))
    def resid(a, x, e):
        k("v_cvt_pk_bf16_f32 v%d, v%d, v%d" % (e, a, a + 1))
        k("v_cvt_pk_bf16_f32 v%d, v%d, v%d" % (e + 1, a + 2, a + 3))
        for i in range(2):
            k("v_lshlrev_b32 v%d, 16, v%d" % (a + 2 * i, e + i))
            k("v_and_b32 v%d, 0xffff0000, v%d" % (a + 2 * i + 1, e + i))
            k("v_lshlrev_b32 v%d, 16, v%d" % (E + 20, x + i))
            k("v_and_b32 v%d, 0xffff0000, v%d" % (E + 21, x + i))
            k("v_pk_add_f32 %s, %s, %s" % (vr(a + 2 * i, 2), vr(a + 2 * i, 2), vr(E + 20, 2)))
        k("v_cvt_pk_bf16_f32 v%d, v%d, v%d" % (e, a, a + 1))
        k("v_cvt_pk_bf16_f32 v%d, v%d, v%d" % (e + 1, a + 2, a + 3))
        for i in range(2):
            k("v_lshlrev_b32 v%d, 16, v%d" % (a + 2 * i, e + i))
            k("v_and_b32 v%d, 0xffff0000, v%d" % (a + 2 * i + 1, e + i))
    def stats(a, sm, first):
        if first:
            k("v_add_f32 v%d, v%d, v%d" % (sm, a, a + 1))
            k("v_mul_f32 v%d, v%d, v%d" % (sm + 1, a, a))
        else:
            k("v_add_f32 v%d, v%d, v%d" % (sm, sm, a))
            k("v_fmac_f32 v%d, v%d, v%d" % (sm + 1, a, a))
            k("v_add_f32 v%d, v%d, v%d" % (sm, sm, a + 1))
        k("v_fmac_f32 v%d, v%d, v%d" % (sm + 1, a + 1, a + 1))
        for i in (2, 3):
            k("v_add_f32 v%d, v%d, v%d" % (sm, sm, a + i))
            k("v_fmac_f32 v%d, v%d, v%d" % (sm + 1, a + i, a + i))
    k("s_cmp_lt_u32 s%d, 2" % sw)
    k("s_cbranch_scc1 .L_s3_x")
    for var in ("main", 0, 1):
        if var == 0:
            k.label(".L_s3_x")
            k("s_cmp_eq_u32 s%d, 1" % sw)
            k("s_cbranch_scc1 .L_s3_x1")
        if var == 1: k.label(".L_s3_x1")
        oread(0)
        for ks in range(18):
            if ks + 1 < 18:
                oread(ks + 1); k("s_waitcnt lgkmcnt(2)")
            else:
                for t in range(2): k("ds_read_b64 %s, v%d offset:%d" % (vr(E + 8 + 2 * t, 2), vT + 4, t * 4608))
                if var != "main": k("ds_read_b64 %s, v%d offset:256" % (vr(E + 12, 2), vT + 5))
                k("s_waitcnt lgkmcnt(%d)" % (2 if var == "main" else 3))
            for t in range(2):
                d = vr(ACC + 4 * t, 4)
                k("v_mfma_f32_16x16x32_bf16 %s, %s, %s, %s" % (d, vr(WF + 4 * ks, 4), vr(OF + ((ks & 1) * 2 + t) * 4, 4), "0" if ks == 0 else d))
            if var != "main":
                d = vr(ACC + 8, 4)
                k("v_mfma_f32_16x16x32_bf16 %s, %s, %s, %s" % (d, vr(WX + 4 * ks, 4), vr(OF + ((ks & 1) * 2 + var) * 4, 4), "0" if ks == 0 else d))
        k("s_nop 6")
        k("s_waitcnt lgkmcnt(0)")
        SM = E + 16
        for t in range(2):
            resid(ACC + 4 * t, E + 8 + 2 * t, E + 2 * t)
            stats(ACC + 4 * t, SM + 2 * t, True)
        k("v_permlane32_swap_b32 v%d, v%d" % (E, E + 2))
        k("v_permlane32_swap_b32 v%d, v%d" % (E + 1, E + 3))
        k("s_nop 1")
        k("buffer_store_dwordx4 %s, v%d, %s, s%d offen%s" % (vr(E, 4), vT + 3, R, T[11], SC))
        if var != "main":
            resid(ACC + 8, E + 12, E + 4)
            k("v_mov_b32 v%d, v%d" % (E + 6, E + 4))
            k("v_mov_b32 v%d, v%d" % (E + 7, E + 5))
            stats(ACC + 8, SM + 2 * var, False)
            k("v_permlane32_swap_b32 v%d, v%d" % (E + 4, E + 6))
            k("v_permlane32_swap_b32 v%d, v%d" % (E + 5, E + 7))
            k("s_mov_b32 exec_hi, 0")
            k("s_nop 0")
            k("buffer_store_dwordx4 %s, v%d, %s, s%d offen%s" % (vr(E + 4, 4), vS, R, T[12], SC))
            k("s_mov_b32 exec_hi, -1")
        if var != 1: k("s_branch .L_s3_j")
    k.label(".L_s3_j")
    SM = E + 16
    sum_rows(k, [SM, SM + 1, SM + 2, SM + 3], [E + 8, E + 9, E + 10, E + 11])
    k("s_lshl_b32 s%d, s%d, 8" % (T[4], sw))
    k("s_add_u32 s%d, s%d, %d" % (T[4], T[4], SI))
    k("v_lshlrev_b32 v%d, 3, v%d" % (vT + 2, vT))
    k("v_add_u32 v%d, s%d, v%d" % (vT + 2, T[4], vT + 2))
    k("s_mov_b64 exec, 0xffff")
    for t in range(2): k("ds_write_b64 v%d, %s offset:%d" % (vT + 2, vr(SM + 2 * t, 2), t * 128))
    k("s_mov_b64 exec, -1")
    k("s_waitcnt lgkmcnt(0)")
    k("s_barrier")
    lab = k.newlab()
    k("s_cmp_lg_u32 s%d, 7" % sw)
    k("s_cbranch_scc1 %s" % lab)
    k("v_lshlrev_b32 v%d, 2, v0" % (vT + 2))
    k("v_add_u32 v%d, %d, v%d" % (vT + 4, SI, vT + 2))
    for ww in range(8): k("ds_read_b32 v%d, v%d offset:%d" % (WF + ww, vT + 4, ww * 256))
    k("s_lshl_b32 s%d, s%d, 14" % (T[4], sq))
    k("s_lshl_b32 s%d, s%d, 8" % (T[5], stt))
    k("s_add_u32 s%d, s%d, s%d" % (T[4], T[4], T[5]))
    k("s_add_u32 s%d, s%d, %d" % (T[4], T[4], L.ST2))
    k("s_waitcnt lgkmcnt(0)")
    for st in (4, 2, 1):
        for i in range(st): k("v_add_f32 v%d, v%d, v%d" % (WF + i, WF + i, WF + i + st))
    k("buffer_store_dword v%d, v%d, %s, s%d offen%s" % (WF, vT + 2, R, T[4], SC))
    k.label(lab)
    stamp(k, 12)
    signal(k, 3, wave=7)
    stamp(k, 13)

def publish(k, val, wave, vt):
    lab = k.newlab()
    k("s_cmp_lg_u32 s%d, %d" % (sw, wave))
    k("s_cbranch_scc1 %s" % lab)
    k("s_mul_i32 s%d, s%d, %d" % (T[0], sg, NREP * L.FPITCH))
    k("s_lshl_b32 s%d, s%d, 2" % (T[1], si))
    k("s_add_u32 s%d, s%d, s%d" % (T[0], T[0], T[1]))
    k("s_add_u32 s%d, s%d, %d" % (T[0], T[0], L.FLG))
    k("s_add_u32 s%d, s%d, %d" % (T[1], sT, val))
    k("v_mov_b32 v%d, s%d" % (vt, T[1]))
    k("v_mul_u32_u24 v%d, %d, v0" % (vt + 1, L.FPITCH))
    k("s_mov_b32 exec_lo, %s" % ("0xff" if NREP == 8 else "-1")); k("s_mov_b32 exec_hi, 0")
    k("buffer_store_dword v%d, v%d, %s, s%d offen sc1" % (vt, vt + 1, R, T[0]))
    k("s_mov_b64 exec, -1")
    k.label(lab)

def peek_issue(k, wave, vt):
    lab = k.newlab()
    k("s_cmp_lg_u32 s%d, %d" % (sw, wave))
    k("s_cbranch_scc1 %s" % lab)
    k("s_lshl_b32 s%d, s%d, %d" % (T[2], sg, REPSH))
    k("s_add_u32 s%d, s%d, s%d" % (T[2], T[2], srep))
    k("s_mul_i32 s%d, s%d, %d" % (T[2], T[2], L.FPITCH))
    k("s_lshl_b32 s%d, s%d, 5" % (T[3], sq))
    k("s_add_u32 s%d, s%d, s%d" % (T[2], T[2], T[3]))
    k("s_add_u32 s%d, s%d, %d" % (T[2], T[2], L.FLG))
    k("v_and_b32 v%d, 7, v0" % vt)
    k("v_lshlrev_b32 v%d, 2, v%d" % (vt, vt))
    k("buffer_load_dword v%d, v%d, %s, s%d offen sc1" % (vt + 1, vt, R, T[2]))
    k.label(lab)
def peek_check(k, wave, vt, val):
    lab = k.newlab()
    k("s_cmp_lg_u32 s%d, %d" % (sw, wave))
    k("s_cbranch_scc1 %s" % lab)
    k("s_add_u32 s%d, s%d, %d" % (T[1], sT, val))
    k("s_waitcnt vmcnt(0)")
    k("v_subrev_u32 v%d, s%d, v%d" % (vt + 1, T[1], vt + 1))
    k("v_cmp_le_u32 vcc, %d, v%d" % (16 - val, vt + 1))
    k("s_nop 3")
    k("s_cmp_eq_u64 vcc, 0")
    k("s_cbranch_scc1 %s" % lab)
    poll(k, req_group(val, None, mask_q), vt)
    k.label(lab)

def s45(k):
    SLOT = S4SLOT
    sHH, sH = T[10], T[11]
    vO, vA, vSt, vT = 2, 7, 11, 12
    AB = 16; U = 20; H = 24; ACC = 168; WF = 216; NWF = 8; E = 248
    vm = Q(k, "vmcnt", 63); lq = Q(k, "lgkmcnt", 15)
    s4_offsets(k, vO, vT)
    def wdma(s, j):
        return lambda: s4_wdma(k, vO, s, j, emit=lambda t: vm.op("W%d" % s, t))
    vm.mark("W0"); vm.mark("W1")
    lab = k.newlab()
    k("s_cmp_eq_u32 s%d, 7" % sw)
    k("s_cbranch_scc1 %s" % lab)
    for s in (2, 3):
        for j in range(5): s4_wdma(k, vO, s, j)
    k.label(lab)
    k("v_bfe_u32 v%d, v0, 5, 1" % vT)
    k("v_lshlrev_b32 v%d, 4, v%d" % (vT, vT))
    k("v_bfe_u32 v%d, v0, 2, 3" % (vT + 1))
    k("v_add_u32 v%d, v%d, v%d" % (vT, vT, vT + 1))
    k("v_mul_u32_u24 v%d, 96, v%d" % (vT, vT))
    k("v_and_b32 v%d, 3, v0" % (vT + 1))
    k("v_lshl_add_u32 v%d, v%d, 3, v%d" % (vA, vT + 1, vT))
    for i in range(1, 4): k("v_add_u32 v%d, %d, v%d" % (vA + i, i * SLOT, vA))
    k("s_lshl_b32 s%d, s%d, 4" % (T[1], sg))
    k("s_lshl_b32 s%d, s%d, 1" % (T[2], sw))
    k("s_add_u32 s%d, s%d, s%d" % (T[1], T[1], T[2]))
    k("s_mul_i32 s%d, s%d, 147456" % (sHH, T[1]))
    k("s_mul_i32 s%d, s%d, %d" % (T[2], si, 9 * 512))
    k("s_add_u32 s%d, s%d, s%d" % (sHH, sHH, T[2]))
    k("s_add_u32 s%d, s%d, %d" % (sHH, sHH, L.HH))
    k("s_mul_i32 s%d, s%d, 18432" % (sH, T[1]))
    k("s_add_u32 s%d, s%d, %d" % (sH, sH, L.HP))
    k("s_lshl_b32 s%d, s%d, 7" % (T[9], T[1]))
    k("s_add_u32 s%d, s%d, %d" % (T[9], T[9], L.ST2))
    k("v_and_b32 v%d, 15, v0" % vT)
    k("v_lshrrev_b32 v%d, 4, v0" % (vT + 1))
    k("v_lshlrev_b32 v%d, 14, v%d" % (vT + 1, vT + 1))
    k("v_lshl_add_u32 v%d, v%d, 3, v%d" % (vT + 2, vT, vT + 1))
    k("v_lshrrev_b32 v%d, 5, v0" % (vT + 3))
    k("v_mul_u32_u24 v%d, %d, v%d" % (vT + 3, 147456 - 512, vT + 3))
    k("v_add_u32 v%d, v%d, v%d" % (vSt, vT + 3, vS))
    wait_flags(k, req_group(3), vt=E, wave=7)
    stamp(k, 14)
    for t in range(2):
        vm.op("ST", "buffer_load_dwordx2 %s, v%d, %s, s%d offen offset:%d%s" % (vr(ACC + 2 * t, 2), vT + 2, R, T[9], t * 128, SC))
    def hload(ks):
        for t in range(2):
            k("s_add_u32 s%d, s%d, %d" % (T[0], sH, t * 18432 + (ks // 4) * 4096))
            vm.op("H%d" % ks, "buffer_load_dwordx4 %s, v%d, %s, s%d offen offset:%d%s" % (vr(H + (ks * 2 + t) * 4, 4), vS, R, T[0], (ks % 4) * 1024, SC))
    HPF = int(os.environ.get('HPF', '4'))
    for ks in range(HPF): hload(ks)
    lab = k.newlab()
    k("s_cmp_lg_u32 s%d, 7" % sw)
    k("s_cbranch_scc1 %s" % lab)
    for s in (2, 3):
        for j in range(5): s4_wdma(k, vO, s, j)
    k.label(lab)
    vm.mark("W2"); vm.mark("W3")
    frs = [(ps, ks, b, m) for ps in range(3) for ks in range(18) for b in range(3) for m in range(2)]
    NF = len(frs)
    def wread(i):
        ps, ks, b, m = frs[i]
        s = ps * 3 + ks // 6; sl = s % 4
        for h in range(2):
            lq.op("f%d" % i, "ds_read_b64_tr_b16 %s, v%d offset:%d" % (vr(WF + 4 * (i % NWF) + 2 * h, 2), vA + sl,
                  m * 18432 + (ks % 6) * 3072 + h * 768 + b * 32))
    PF = int(os.environ.get('PF4', '6')); WG4 = int(os.environ.get('WG4', '2'))
    for i in range(PF): wread(i)
    vm.wait("ST")
    sum_rows(k, [ACC, ACC + 1, ACC + 2, ACC + 3], [ACC + 4, ACC + 5, ACC + 6, ACC + 7])
    for t in range(2):
        ln_stats(k, ACC + 2 * t, ACC + 2 * t + 1, AB + 2 * t + 1, AB + 2 * t, E)
        k("v_mul_f32 v%d, -v%d, v%d" % (AB + 2 * t + 1, AB + 2 * t + 1, AB + 2 * t))
    def norm(ks):
        o = []
        for t in range(2):
            for i in range(4):
                r = H + (ks * 2 + t) * 4 + i; u = U + 2 * (i & 1)
                o.append("v_lshlrev_b32 v%d, 16, v%d" % (u, r))
                o.append("v_and_b32 v%d, 0xffff0000, v%d" % (u + 1, r))
                if PKNORM:
                    o.append("v_pk_fma_f32 %s, %s, %s, %s op_sel:[0,0,1] op_sel_hi:[1,0,1]" % (vr(u, 2), vr(u, 2), vr(AB + 2 * t, 2), vr(AB + 2 * t, 2)))
                else:
                    o.append("v_fma_f32 v%d, v%d, v%d, v%d" % (u, u, AB + 2 * t, AB + 2 * t + 1))
                    o.append("v_fma_f32 v%d, v%d, v%d, v%d" % (u + 1, u + 1, AB + 2 * t, AB + 2 * t + 1))
                o.append("v_cvt_pk_bf16_f32 v%d, v%d, v%d" % (r, u, u + 1))
        return o
    def epilogue(ps, vmq):
        G = lambda b, t, r: ACC + b * 16 + t * 4 + r
        Uu = lambda b, t, r: ACC + b * 16 + 8 + t * 4 + r
        if ps == 1: k("s_add_u32 s%d, s%d, %d" % (T[1], sHH, 3 * 512))
        else:
            k("s_bitcmp1_b32 s%d, 0" % si)
            k("s_cselect_b32 s%d, %d, %d" % (T[1], (2 - ps) * 1536, ps * 1536))
            k("s_add_u32 s%d, s%d, s%d" % (T[1], T[1], sHH))
        k("s_nop 6")
        for b in range(3):
            tb = [(t, r) for t in range(2) for r in range(4)]
            for t, r in tb: k("v_mul_f32 v%d, %s, v%d" % (G(b, t, r), hx(f32bits(-1.4426950408889634)), G(b, t, r)))
            for t, r in tb: k("v_exp_f32 v%d, v%d" % (G(b, t, r), G(b, t, r)))
            for t, r in tb: k("v_add_f32 v%d, 1.0, v%d" % (G(b, t, r), G(b, t, r)))
            for t, r in tb: k("v_rcp_f32 v%d, v%d" % (G(b, t, r), G(b, t, r)))
            for t, r in tb: k("v_mul_f32 v%d, v%d, v%d" % (G(b, t, r), G(b, t, r), Uu(b, t, r)))
            e = E + 4 * (b & 1)
            for t in range(2):
                for i in range(2): k("v_cvt_pk_bf16_f32 v%d, v%d, v%d" % (e + 2 * t + i, G(b, t, 2 * i), G(b, t, 2 * i + 1)))
            k("s_nop 1")
            k("v_permlane32_swap_b32 v%d, v%d" % (e, e + 2))
            k("v_permlane32_swap_b32 v%d, v%d" % (e + 1, e + 3))
            k("s_nop 1")
            vmq.op("S", "buffer_store_dwordx4 %s, v%d, %s, s%d offen offset:%d%s" % (vr(e, 4), vSt, R, T[1], b * 512, SC))
    vm.wait("H0")
    for x in norm(0): k(x)
    dm = []
    for i in range(NF):
        ps, ks, b, m = frs[i]
        s = ps * 3 + ks // 6
        first = (b == 0 and m == 0)
        if first and ks % 6 == 1:
            if s == 7: vm.wait("S")
            elif s + 1 < 9: vm.wait("W%d" % (s + 1))
            k("s_barrier")
            if s >= 1 and s + 3 < 9: dm = [wdma(s + 3, j) for j in range(5)]
            if s == 7: publish(k, 4, 7, vT)
        if first and s == 8 and ks % 6 == 3: peek_issue(k, 5, vT)
        if CODEPF >= 3 and first and ps == 2 and ks == 3:
            lab = k.newlab()
            k("s_add_u32 s%d, s%d, s%d" % (T[0], ssub, sw))
            k("s_cmp_lg_u32 s%d, 0" % T[0])
            k("s_cbranch_scc1 %s" % lab)
            code_pf(k, ".L_code_s5", 3, vT, vT + 3, T[2])
            k.label(lab)
        if WARM == 4 and first and ps == WPS and ks == 3:
            make_srd(k, sA, P_D, 4608 * 1152)
            k("s_and_b32 s%d, s%d, 3" % (T[0], sg))
            k("s_lshl_b32 s%d, s%d, 3" % (T[0], T[0]))
            k("s_add_u32 s%d, s%d, s%d" % (T[0], T[0], ssub))
            k("s_lshl_b32 s%d, s%d, 3" % (T[0], T[0]))
            k("s_add_u32 s%d, s%d, s%d" % (T[0], T[0], sw))
            k("s_mul_i32 s%d, s%d, 21" % (T[0], T[0]))
            k("s_lshl_b32 s%d, s%d, 1" % (T[1], sq))
            k("s_lshr_b32 s%d, s%d, 2" % (T[2], sg))
            k("s_add_u32 s%d, s%d, s%d" % (T[1], T[1], T[2]))
            k("s_mul_i32 s%d, s%d, %d" % (T[1], T[1], 5184 * 128))
            k("v_add_u32 v%d, s%d, v0" % (vT, T[0]))
            k("v_min_u32 v%d, 5183, v%d" % (vT, vT))
            k("v_lshlrev_b32 v%d, 7, v%d" % (vT, vT))
            k("s_mov_b64 exec, 0x1fffff")
            vm.op("warm", "buffer_load_dword v%d, v%d, %s, s%d offen" % (vT + 3, vT, RA, T[1]))
            k("s_mov_b64 exec, -1")
        if first and ps == 0:
            if ks + HPF < 18: hload(ks + HPF)
            fill = []
            if ks + 1 < 18:
                fill = norm(ks + 1)
                vm.wait("H%d" % (ks + 1))
        if i + PF < NF: wread(i + PF)
        if i % WG4 == 0: lq.wait("f%d" % (i + WG4 - 1))
        for t in range(2):
            d = vr(ACC + b * 16 + m * 8 + t * 4, 4)
            k("v_mfma_f32_16x16x32_bf16 %s, %s, %s, %s" % (d, vr(WF + 4 * (i % NWF), 4), vr(H + (ks * 2 + t) * 4, 4), "0" if ks == 0 else d))
            if ps == 0:
                n = (3 if PKNORM else 4) if (b, m, t) != (2, 1, 1) else 99
                for _ in range(n):
                    if fill: k(fill.pop(0))
        if dm and m == 1: dm.pop(0)()
        if ks == 17 and b == 2 and m == 1 and ps < 2:
            epilogue(ps, vm)
            if ps == 0: stamp(k, 15)
    stamp(k, 16)
    k.label(".L_code_s5")
    peek_check(k, 5, vT, 4)
    k("s_barrier")
    STG = 34816; NS = 4; WOFF = 16384; NST = 18; OWN = 4 * STG
    smt, sng, sSrc, sM0 = T[12], T[13], T[14], T[15]
    korder = [9 * c + j for c in range(4) for j in (0, 1, 2, 6, 7, 8)] + [9 * c + j for c in range(4) for j in (3, 4, 5)]
    k("s_lshl_b32 s%d, s%d, 1" % (smt, sg))
    k("s_and_b32 s%d, s%d, 1" % (T[0], ssub))
    k("s_add_u32 s%d, s%d, s%d" % (smt, smt, T[0]))
    k("s_lshr_b32 s%d, s%d, 1" % (sng, ssub))
    k("s_cmp_ge_u32 s%d, 4" % sw)
    k("s_cbranch_scc1 .L_s5_loader")
    epilogue(2, Q(k, "vmcnt", 63))
    stamp(k, 27)
    vA, vT = 2, 6
    ACC5 = 16; HF = 96; WF5 = 128; NW5 = 14
    lq = Q(k, "lgkmcnt", 15)
    k("s_lshl_b32 s%d, s%d, 11" % (T[0], sw))
    k("v_add_u32 v%d, s%d, v%d" % (vA, T[0], vS))
    k("v_add_u32 v%d, %d, v%d" % (vA + 1, 2 * STG, vA))
    tr_addr(k, vA + 2, vT, 4608)
    k("v_add_u32 v%d, %d, v%d" % (vA + 2, WOFF, vA + 2))
    k("v_add_u32 v%d, %d, v%d" % (vA + 3, 2 * STG, vA + 2))
    NK = 2 * NST
    def hread(kk):
        st, kp = divmod(kk, 2); sl = st % NS
        for t in range(2):
            lq.op("h%d" % kk, "ds_read_b128 %s, v%d offset:%d" % (vr(HF + ((kk & 3) * 2 + t) * 4, 4), vA + (sl >> 1), (sl & 1) * STG + kp * 8192 + t * 1024))
    def wread5(i):
        kk, u = divmod(i, 9); st, kp = divmod(kk, 2); sl = st % NS
        for h in range(2):
            lq.op("w%d" % i, "ds_read_b64_tr_b16 %s, v%d offset:%d" % (vr(WF5 + 4 * (i % NW5) + 2 * h, 2), vA + 2 + (sl >> 1),
                  (sl & 1) * STG + kp * 9216 + h * 2304 + u * 32))
    PFW = int(os.environ.get('PFW', '8')); WG5 = int(os.environ.get('WG5', '3'))
    k("s_barrier")
    stamp(k, 17)
    hread(0)
    for i in range(PFW): wread5(i)
    for i in range(NK * 9):
        kk, u = divmod(i, 9)
        if u % WG5 == 0: lq.wait("w%d" % (i + WG5 - 1))
        for t in range(2):
            d = vr(ACC5 + (t * 9 + u) * 4, 4)
            k("v_mfma_f32_16x16x32_bf16 %s, %s, %s, %s" % (d, vr(WF5 + 4 * (i % NW5), 4), vr(HF + ((kk & 3) * 2 + t) * 4, 4), "0" if kk == 0 else d))
            if t == 0:
                ni = i + PFW
                if ni < NK * 9:
                    if ni % 18 == 0:
                        sn = ni // 18
                        if sn == 4: k("s_waitcnt vmcnt(0)")
                        if sn == 10: peek_check(k, 0, vT, 5)
                        k("s_barrier")
                        if sn == 4: publish(k, 5, 1, vT)
                        if sn == 8: peek_issue(k, 0, vT)
                    if ni % 9 == 0: hread(ni // 9)
                    wread5(ni)
    stamp(k, 18)
    k("s_lshl_b32 s%d, s%d, 2" % (T[2], smt))
    k("s_add_u32 s%d, s%d, s%d" % (T[2], T[2], sng))
    k("s_lshl_b32 s%d, s%d, 2" % (T[2], T[2]))
    k("s_add_u32 s%d, s%d, s%d" % (T[2], T[2], sw))
    k("s_lshl_b32 s%d, s%d, 2" % (T[2], T[2]))
    k("s_add_u32 s%d, s%d, s%d" % (T[2], T[2], sq))
    k("s_mul_i32 s%d, s%d, 9216" % (T[2], T[2]))
    k("s_add_u32 s%d, s%d, %d" % (T[2], T[2], L.PART))
    k("v_add_u32 v%d, %d, v%d" % (vT + 1, OWN, vS))
    own = k.newlab()
    k("s_cmp_eq_u32 s%d, s%d" % (sw, sq))
    k("s_cbranch_scc1 %s" % own)
    for u in range(9):
        e = HF + 4 * (u % 8)
        for t in range(2):
            a = ACC5 + (t * 9 + u) * 4
            for p in range(2): k("v_cvt_pk_bf16_f32 v%d, v%d, v%d" % (e + 2 * t + p, a + 2 * p, a + 2 * p + 1))
        if u and u % 4 == 0: k("s_add_u32 s%d, s%d, 4096" % (T[2], T[2]))
        k("buffer_store_dwordx4 %s, v%d, %s, s%d offen offset:%d%s" % (vr(e, 4), vS, R, T[2], (u % 4) * 1024, SC))
    k("s_branch .L_s5_done")
    k.label(own)
    for i in range(18): k("ds_write_b128 v%d, %s offset:%d" % (vT + 1, vr(ACC5 + 4 * i, 4), i * 1024))
    k("s_branch .L_s5_done")
    k.label(".L_s5_loader")
    k("s_and_b32 s%d, s%d, 1" % (T[0], sw))
    k("s_cmp_ge_u32 s%d, 6" % sw)
    k("s_cbranch_scc1 .L_s5_ldh")
    for which in ("w", "h"):
        if which == "h": k.label(".L_s5_ldh")
        n = 8 if which == "h" else 9
        vO5 = 30; vT5 = 24
        vq = Q(k, "vmcnt", 63)
        if which == "h":
            k("s_mul_i32 s%d, s%d, %d" % (sSrc, smt, 8 * 144))
            k("s_mul_i32 s%d, s%d, 36" % (T[1], sq))
            k("s_add_u32 s%d, s%d, s%d" % (sSrc, sSrc, T[1]))
            k("s_lshl_b32 s%d, s%d, 10" % (sSrc, sSrc))
            k("s_add_u32 s%d, s%d, %d" % (sSrc, sSrc, L.HH))
            k("s_lshl_b32 s%d, s%d, 13" % (sM0, T[0]))
            for t in range(8): k("v_add_u32 v%d, %d, v%d" % (vO5 + t, t * 147456 - (t % 4) * 1024, vS))
        else:
            make_srd(k, sA, P_D, 4608 * 1152)
            k("s_mul_i32 s%d, s%d, %d" % (sSrc, sq, 36 * 32 * 1152))
            k("s_mul_i32 s%d, s%d, 288" % (T[1], sng))
            k("s_add_u32 s%d, s%d, s%d" % (sSrc, sSrc, T[1]))
            k("s_mul_i32 s%d, s%d, 9216" % (sM0, T[0]))
            k("s_add_u32 s%d, s%d, %d" % (sM0, sM0, WOFF))
            for j in range(9):
                k("v_add_u32 v%d, %d, v0" % (vT5, 64 * j))
                k("v_mul_u32_u24 v%d, 3641, v%d" % (vT5 + 1, vT5))
                k("v_lshrrev_b32 v%d, 16, v%d" % (vT5 + 1, vT5 + 1))
                k("v_mul_u32_u24 v%d, %d, v%d" % (vT5 + 1, 1152 - 288, vT5 + 1))
                k("v_lshl_add_u32 v%d, v%d, 4, v%d" % (vO5 + j, vT5, vT5 + 1))
                if j % 4: k("v_subrev_u32 v%d, %d, v%d" % (vO5 + j, (j % 4) * 1024, vO5 + j))
        unit = 1024 if which == "h" else 32 * 1152
        def issue(st):
            k("s_bitcmp1_b32 s%d, 0" % sw)
            k("s_cselect_b32 s%d, %d, %d" % (T[2], korder[2 * st + 1], korder[2 * st]))
            k("s_mul_i32 s%d, s%d, %d" % (T[2], T[2], unit))
            k("s_add_u32 s%d, s%d, s%d" % (T[2], T[2], sSrc))
            for j in range(n):
                if j % 4 == 0:
                    k("s_add_u32 m0, s%d, %d" % (sM0, (st % NS) * STG + j * 1024))
                    k("s_nop 0")
                if which == "h": vq.op("d%d" % st, "buffer_load_dwordx4 v%d, %s, s%d offen offset:%d%s lds" % (vO5 + j, R, T[2], (j % 4) * 1024, SC))
                else: vq.op("d%d" % st, "buffer_load_dwordx4 v%d, %s, s%d offen offset:%d lds" % (vO5 + j, RA, T[2], (j % 4) * 1024))
        for st in range(2): issue(st)
        epilogue(2, vq)
        for st in range(NST):
            vq.wait("d%d" % st)
            k("s_barrier")
            if st + 2 < NST: issue(st + 2)
        if which == "w": k("s_branch .L_s5_done")
    k.label(".L_s5_done")
    stamp(k, 30)
    signal(k, 6, wave=7, vt=120)
    stamp(k, 31)
    P = 16; HB = 80; X = 96
    vT = 6
    sj = T[11]
    k("s_add_u32 s%d, s%d, 4" % (sj, sw))
    k("s_and_b32 s%d, s%d, 7" % (sj, sj))
    make_srd(k, sA, P_OUT, 2048 * 1152)
    k("s_lshl_b32 s%d, s%d, 2" % (T[4], smt))
    k("s_add_u32 s%d, s%d, s%d" % (T[4], T[4], sng))
    k("s_lshl_b32 s%d, s%d, 2" % (T[4], T[4]))
    k("s_add_u32 s%d, s%d, s%d" % (T[4], T[4], sq))
    k("s_mul_i32 s%d, s%d, %d" % (T[4], T[4], 4 * 9216))
    k("s_lshl_b32 s%d, s%d, 11" % (T[8], sj))
    k("s_add_u32 s%d, s%d, s%d" % (T[4], T[4], T[8]))
    k("s_add_u32 s%d, s%d, %d" % (T[4], T[4], L.PART))
    k("s_lshl_b32 s%d, s%d, 3" % (T[9], smt))
    k("s_lshl_b32 s%d, s%d, 1" % (T[7], sq))
    k("s_add_u32 s%d, s%d, s%d" % (T[9], T[9], T[7]))
    k("s_mul_i32 s%d, s%d, 18432" % (T[9], T[9]))
    k("s_mul_i32 s%d, s%d, 9" % (T[7], sng))
    k("s_lshl_b32 s%d, s%d, 1" % (T[10], sj))
    k("s_add_u32 s%d, s%d, s%d" % (T[7], T[7], T[10]))
    k("s_lshl_b32 s%d, s%d, 9" % (T[10], T[7]))
    k("s_add_u32 s%d, s%d, s%d" % (T[10], T[10], T[9]))
    k("s_add_u32 s%d, s%d, %d" % (T[10], T[10], L.HP))
    k("s_lshl_b32 s%d, s%d, 5" % (T[7], T[7]))
    k("s_add_u32 s%d, s%d, s%d" % (T[9], T[9], T[7]))
    k("s_add_u32 s%d, s%d, 32" % (T[14], T[9]))
    k("s_cmp_ge_u32 s%d, 4" % sj)
    k("s_cselect_b32 s%d, 0x7f000000, s%d" % (T[14], T[14]))
    k("v_and_b32 v%d, 15, v0" % vT)
    k("v_lshrrev_b32 v%d, 4, v0" % (vT + 1))
    k("v_and_b32 v%d, 1, v%d" % (vT + 2, vT + 1))
    k("v_lshlrev_b32 v%d, 8, v%d" % (vT + 2, vT + 2))
    k("v_lshl_add_u32 v%d, v%d, 4, v%d" % (vT + 2, vT, vT + 2))
    k("v_lshrrev_b32 v%d, 1, v%d" % (vT + 3, vT + 1))
    k("v_lshl_add_u32 v%d, v%d, 3, v%d" % (vT + 2, vT + 3, vT + 2))
    k("v_add_u32 v%d, 18432, v%d" % (vT + 5, vT + 2))
    k("v_and_b32 v%d, 31, v0" % (vT + 4))
    k("v_mul_u32_u24 v%d, 1152, v%d" % (vT + 4, vT + 4))
    k("v_lshl_add_u32 v%d, v%d, 4, v%d" % (vT + 3, vT + 3, vT + 4))
    k("s_add_u32 s%d, s%d, %d" % (T[8], T[8], OWN))
    k("v_add_u32 v%d, s%d, v%d" % (vT + 4, T[8], vS))
    for n in range(3):
        k("s_add_u32 s%d, s%d, %d" % (T[5 + n], sq, n + 1))
        k("s_and_b32 s%d, s%d, 3" % (T[5 + n], T[5 + n]))
        k("s_mul_i32 s%d, s%d, 9216" % (T[5 + n], T[5 + n]))
        k("s_add_u32 s%d, s%d, s%d" % (T[5 + n], T[5 + n], T[4]))
    lab = k.newlab()
    k("s_cmp_ge_u32 s%d, 5" % sj)
    k("s_cbranch_scc1 %s" % lab)
    for c in range(2):
        for t in range(2):
            k("buffer_load_dwordx2 %s, v%d, %s, s%d offen offset:%d%s" % (vr(HB + (c * 2 + t) * 2, 2), [vT + 2, vT + 5][t], R, T[10], c * 512, SC))
            k("ds_read_b128 %s, v%d offset:%d" % (vr(X + (c * 2 + t) * 4, 4), vT + 4, c * 1024 + t * 9216))
    k.label(lab)
    wait_flags(k, req_group(6, None, mask_sub), vt=120, wave=3)
    stamp(k, 32)
    k("s_cmp_ge_u32 s%d, 5" % sj)
    k("s_cbranch_scc1 .L_fin")
    for c in range(2):
        for n in range(3):
            k("buffer_load_dwordx4 %s, v%d, %s, s%d offen offset:%d%s" % (vr(P + (c * 3 + n) * 4, 4), vS, R, T[5 + n], c * 1024, SC))
    TM = 48
    for c in range(2):
        k("s_waitcnt vmcnt(%d) lgkmcnt(0)" % (3 - 2 * c))
        for t in range(2):
            a = X + (c * 2 + t) * 4
            for n in range(3):
                for p in range(2):
                    src = P + (c * 3 + n) * 4 + 2 * t + p
                    k("v_lshlrev_b32 v%d, 16, v%d" % (TM + 2 * p, src))
                    k("v_and_b32 v%d, 0xffff0000, v%d" % (TM + 2 * p + 1, src))
                    k("v_pk_add_f32 %s, %s, %s" % (vr(a + 2 * p, 2), vr(a + 2 * p, 2), vr(TM + 2 * p, 2)))
            e = 56 + c * 4 + 2 * t
            k("v_cvt_pk_bf16_f32 v%d, v%d, v%d" % (e, a, a + 1))
            k("v_cvt_pk_bf16_f32 v%d, v%d, v%d" % (e + 1, a + 2, a + 3))
            for i in range(2):
                k("v_lshlrev_b32 v%d, 16, v%d" % (a + 2 * i, e + i))
                k("v_and_b32 v%d, 0xffff0000, v%d" % (a + 2 * i + 1, e + i))
                k("v_lshlrev_b32 v%d, 16, v%d" % (TM, HB + (c * 2 + t) * 2 + i))
                k("v_and_b32 v%d, 0xffff0000, v%d" % (TM + 1, HB + (c * 2 + t) * 2 + i))
                k("v_pk_add_f32 %s, %s, %s" % (vr(a + 2 * i, 2), vr(a + 2 * i, 2), vr(TM, 2)))
            k("v_cvt_pk_bf16_f32 v%d, v%d, v%d" % (e, a, a + 1))
            k("v_cvt_pk_bf16_f32 v%d, v%d, v%d" % (e + 1, a + 2, a + 3))
        e = 56 + c * 4
        k("s_nop 1")
        k("v_permlane16_swap_b32 v%d, v%d" % (e, e + 2))
        k("v_permlane16_swap_b32 v%d, v%d" % (e + 1, e + 3))
        k("s_nop 1")
        k("buffer_store_dwordx4 %s, v%d, %s, s%d offen" % (vr(e, 4), vT + 3, RA, [T[9], T[14]][c]))
```

```python
import sys, struct, os
sys.path.insert(0, "dev")
import layout as L

NAME = "sequential_preLN__sliding_block__glu_gated_glu__prompt"
STAMPS = int(os.environ.get("STAMPS", "0"))
CODEPF = int(os.environ.get("CODEPF", "1"))
S6TAG = int(os.environ.get("S6TAG", "0"))
EARLYW = int(os.environ.get("EARLYW", "1"))
PKNORM = int(os.environ.get("PKNORM", "0"))
NREP = int(os.environ.get("NREP", "32"))
REPSH = {8: 3, 32: 5}[NREP]
srep = {8: 42, 32: 43}[NREP]
WPS = int(os.environ.get("WPS", "1"))
EPFW = int(os.environ.get("EPFW", "32"))
TLBPF = int(os.environ.get("TLBPF", "0"))
PF1 = int(os.environ.get("PF1", "0"))
WARM = int(os.environ.get("WARM", "4"))
WARM_DELAY = int(os.environ.get("WARM_DELAY", "64"))
POLL_SLEEP = int(os.environ.get("POLL_SLEEP", "3"))
STOP = int(os.environ.get("STOP", "99"))

def f32bits(x): return struct.unpack("<I", struct.pack("<f", x))[0]
def hx(x): return "0x%08x" % (x & 0xFFFFFFFF)
def vr(b, n=1): return "v%d" % b if n == 1 else "v[%d:%d]" % (b, b + n - 1)

class Kern:
    def __init__(self): self.L = []; self.nlab = 0
    def __call__(self, s): self.L.append("  " + s)
    def label(self, l): self.L.append(l + ":")
    def newlab(self):
        self.nlab += 1
        return ".Lm_%d" % self.nlab

class Q:
    def __init__(self, k, name, mx): self.k, self.n, self.pos, self.name, self.mx = k, 0, {}, name, mx
    def op(self, tag, text): self.k(text); self.n += 1; self.pos[tag] = self.n
    def mark(self, tag): self.pos[tag] = self.n
    def wait(self, tag): self.k("s_waitcnt %s(%d)" % (self.name, min(self.mx, self.n - self.pos[tag])))

sw = 3
sWS, sA, sB, sDBG = 4, 8, 12, 36
P_X, P_WQKV, P_WO, P_G, P_U, P_D, P_OUT, P_DBG, P_WS = 16, 18, 20, 24, 26, 28, 30, 32, 34
sg, sq, ssub, si = 40, 41, 42, 43
T = list(range(44, 60))
R = "s[4:7]"; RA = "s[8:11]"; RB = "s[12:15]"; RD = "s[36:39]"
vS = 1
SC = os.environ.get("SC", " sc1")
SC5 = os.environ.get("SC5", " sc1")

def make_srd(k, d, base, nbytes):
    k("s_mov_b32 s%d, s%d" % (d, base))
    k("s_and_b32 s%d, s%d, 0xffff" % (d + 1, base + 1))
    k("s_mov_b32 s%d, %s" % (d + 2, hx(nbytes)))
    k("s_mov_b32 s%d, 0x00020000" % (d + 3))

STSEL = [int(x) for x in os.environ.get("STSEL", ",".join(str(i) for i in range(20))).split(",")]
def stamp(k, i):
    if STAMPS and i in STSEL:
        j = STSEL.index(i)
        k("%s s[%d:%d]" % ("s_memtime" if STAMPS == 2 else "s_memrealtime", 60 + 2 * j, 61 + 2 * j))
def stamp_out(k):
    if not STAMPS: return
    k("s_waitcnt lgkmcnt(0)")
    if os.environ.get("DBGOUT"):
        lab = k.newlab()
        k("s_cmp_lg_u32 s2, %s" % os.environ.get("DBGOUT"))
        k("s_cbranch_scc1 %s" % lab)
        k("s_cmp_lg_u32 s%d, 0" % sw)
        k("s_cbranch_scc1 %s" % lab)
        make_srd(k, sDBG, P_DBG, 256)
        k("v_mov_b32 v2, 0")
        for i in range(16):
            k("s_sub_u32 s58, s%d, s60" % (60 + 2 * i))
            k("v_mov_b32 v3, s58")
            k("buffer_store_dword v3, v2, %s, 0 offen offset:%d" % (RD, 4 * i))
        k.label(lab)
        return
    k("s_lshl_b32 s58, s2, 3")
    k("s_add_u32 s58, s58, s%d" % sw)
    k("s_lshl_b32 s58, s58, 7")
    k("s_add_u32 s58, s58, %d" % L.DBG)
    k("v_mov_b32 v2, 0")
    for i in range(20):
        k("v_mov_b32 v3, s%d" % (60 + 2 * i))
        k("buffer_store_dword v3, v2, %s, s58 offen offset:%d" % (R, 4 * i))

def rnd_bf16(k, d, s):
    k("v_cvt_pk_bf16_f32 v%d, v%d, v%d" % (d, s, s))
    k("v_lshlrev_b32 v%d, 16, v%d" % (d, d))

def ln_stats(k, vsum, vsq, vmean, vrstd, t0):
    k("v_mul_f32 v%d, %s, v%d" % (vmean, hx(f32bits(1.0 / 576)), vsum))
    k("v_mul_f32 v%d, %s, v%d" % (t0, hx(f32bits(1.0 / 576)), vsq))
    k("v_fma_f32 v%d, -v%d, v%d, v%d" % (t0, vmean, vmean, t0))
    k("v_max_f32 v%d, 0, v%d" % (t0, t0))
    rnd_bf16(k, vmean, vmean)
    rnd_bf16(k, t0, t0)
    k("v_add_f32 v%d, %s, v%d" % (t0, hx(f32bits(1e-5)), t0))
    rnd_bf16(k, t0, t0)
    k("v_sqrt_f32 v%d, v%d" % (t0, t0))
    k("s_nop 0")
    rnd_bf16(k, t0, t0)
    k("v_rcp_f32 v%d, v%d" % (vrstd, t0))
    k("s_nop 0")

def sum_rows(k, regs, tmp):
    for op in ("v_permlane32_swap_b32", "v_permlane16_swap_b32"):
        for a, t in zip(regs, tmp): k("v_mov_b32 v%d, v%d" % (t, a))
        k("s_nop 1")
        for a, t in zip(regs, tmp): k("%s v%d, v%d" % (op, a, t))
        k("s_nop 1")
        for a, t in zip(regs, tmp): k("v_add_f32 v%d, v%d, v%d" % (a, a, t))

sT = 101
def signal(k, val, spare=False, drain=True, vt=2, wave=0):
    if drain: k("s_waitcnt vmcnt(0) lgkmcnt(0)")
    k("s_barrier")
    lab = k.newlab()
    k("s_cmp_lg_u32 s%d, %d" % (sw, wave))
    k("s_cbranch_scc1 %s" % lab)
    k("s_mul_i32 s%d, s%d, %d" % (T[0], sg, NREP * L.FPITCH))
    k("s_lshl_b32 s%d, s%d, 2" % (T[1], si))
    k("s_add_u32 s%d, s%d, s%d" % (T[0], T[0], T[1]))
    k("s_add_u32 s%d, s%d, %d" % (T[0], T[0], L.FLG))
    k("s_add_u32 s%d, s%d, %d" % (T[1], sT, val))
    k("v_mov_b32 v%d, s%d" % (vt, T[1]))
    k("v_mul_u32_u24 v%d, %d, v0" % (vt + 1, L.FPITCH))
    if spare:
        lab2 = k.newlab()
        k("s_cmp_lt_u32 s%d, 6" % ssub)
        k("s_cbranch_scc1 %s" % lab2)
        k("s_lshl_b32 s%d, s%d, 2" % (T[2], sg))
        k("s_add_u32 s%d, s%d, s%d" % (T[2], T[2], sq))
        k("s_lshl_b32 s%d, s%d, 1" % (T[2], T[2]))
        k("s_and_b32 s%d, s%d, 1" % (T[3], ssub))
        k("s_add_u32 s%d, s%d, s%d" % (T[2], T[2], T[3]))
        k("s_lshl_b32 s%d, s%d, 2" % (T[2], T[2]))
        k("s_add_u32 s%d, s%d, %d" % (T[2], T[2], L.FSP))
        k("s_mov_b32 exec_hi, 0")
        k("buffer_store_dword v%d, v%d, %s, s%d offen sc1" % (vt, vt + 1, R, T[2]))
        k.label(lab2)
    if spare != "only":
        k("s_mov_b32 exec_lo, %s" % ("0xff" if NREP == 8 else "-1")); k("s_mov_b32 exec_hi, 0")
        k("buffer_store_dword v%d, v%d, %s, s%d offen sc1" % (vt, vt + 1, R, T[0]))
    k("s_mov_b64 exec, -1")
    k.label(lab)

def poll(k, req, vt):
    loop = k.newlab(); done = k.newlab()
    val = req(k, vt, vt + 1)
    k("s_add_u32 s%d, s%d, %d" % (T[1], sT, val))
    k("s_mov_b32 s%d, 0" % T[0])
    k("s_nop 2")
    k("s_mov_b64 exec, vcc")
    k.label(loop)
    k("buffer_load_dword v%d, v%d, %s, 0 offen sc1" % (vt + 2, vt, R))
    k("s_add_u32 s%d, s%d, 1" % (T[0], T[0]))
    k("s_waitcnt vmcnt(0)")
    k("v_subrev_u32 v%d, s%d, v%d" % (vt + 2, T[1], vt + 2))
    k("v_cmp_le_u32 vcc, %d, v%d" % (16 - val, vt + 2))
    k("s_nop 3")
    k("s_cmp_eq_u64 vcc, 0")
    k("s_cbranch_scc1 %s" % done)
    k("s_sleep %d" % POLL_SLEEP)
    k("s_cmp_lt_u32 s%d, 0x20000" % T[0])
    k("s_cbranch_scc1 %s" % loop)
    k.label(done)
    k("s_mov_b64 exec, -1")

def wait_flags(k, req, vt=2, wave=0):
    lab = k.newlab()
    k("s_cmp_lg_u32 s%d, %d" % (sw, wave))
    k("s_cbranch_scc1 %s" % lab)
    poll(k, req, vt)
    k.label(lab)
    k("s_barrier")

def req_group(val, sg2=None, mask=None):
    def f(k, va, vt):
        k("s_lshl_b32 s%d, s%d, %d" % (T[2], sg, REPSH))
        k("s_add_u32 s%d, s%d, s%d" % (T[2], T[2], srep))
        k("s_mul_i32 s%d, s%d, %d" % (T[2], T[2], L.FPITCH))
        k("s_add_u32 s%d, s%d, %d" % (T[2], T[2], L.FLG))
        k("v_and_b32 v%d, 31, v0" % vt)
        k("v_lshlrev_b32 v%d, 2, v%d" % (va, vt))
        if sg2 is not None:
            k("s_lshl_b32 s%d, s%d, %d" % (T[3], sg2, REPSH))
            k("s_add_u32 s%d, s%d, s%d" % (T[3], T[3], srep))
            k("s_mul_i32 s%d, s%d, %d" % (T[3], T[3], L.FPITCH))
            k("s_add_u32 s%d, s%d, %d" % (T[3], T[3], L.FLG))
            k("s_mov_b32 exec_lo, 0")
            k("v_add_u32 v%d, s%d, v%d" % (va, T[3], va))
            k("s_mov_b32 exec_lo, -1")
            k("s_mov_b32 exec_hi, 0")
            k("v_add_u32 v%d, s%d, v%d" % (va, T[2], va))
            k("s_mov_b32 exec_hi, -1")
        else:
            k("v_add_u32 v%d, s%d, v%d" % (va, T[2], va))
        if mask is None: k("s_mov_b64 vcc, -1")
        else: mask(k, vt)
        if sg2 is None:
            k("s_nop 3")
            k("s_mov_b32 vcc_hi, 0")
        return val
    return f
def mask_qkv(k, vt):
    k("v_and_b32 v%d, 7, v%d" % (vt, vt))
    k("v_cmp_gt_u32 vcc, 6, v%d" % vt)
def mask_q(k, vt):
    k("v_lshrrev_b32 v%d, 3, v%d" % (vt, vt))
    k("v_cmp_eq_u32 vcc, s%d, v%d" % (sq, vt))
def mask_sub(k, vt):
    k("v_and_b32 v%d, 7, v%d" % (vt, vt))
    k("v_cmp_eq_u32 vcc, s%d, v%d" % (ssub, vt))
def req_spare(k, va, vt):
    k("s_lshr_b32 s%d, s2, 3" % T[2])
    k("s_mul_i32 s%d, s%d, %d" % (T[2], T[2], L.FPITCH))
    k("s_add_u32 s%d, s%d, %d" % (T[2], T[2], L.FSP))
    k("v_lshlrev_b32 v%d, 2, v0" % va)
    k("v_add_u32 v%d, s%d, v%d" % (va, T[2], va))
    k("s_mov_b64 vcc, -1")
    return 1

def req_spare2(k, va, vt):
    req_spare(k, va, vt)
    return 2

def epoch_update(k):
    lab = k.newlab()
    k("s_cmp_lg_u32 s2, 0")
    k("s_cbranch_scc1 %s" % lab)
    k("s_cmp_lg_u32 s%d, 0" % sw)
    k("s_cbranch_scc1 %s" % lab)
    for gp in range(4):
        def rq(k, va, vt, gp=gp):
            k("v_lshrrev_b32 v%d, 5, v0" % vt)
            k("v_mul_u32_u24 v%d, %d, v%d" % (vt, NREP * L.FPITCH, vt))
            k("v_and_b32 v%d, 31, v0" % va)
            k("v_lshl_add_u32 v%d, v%d, 2, v%d" % (va, va, vt))
            k("v_add_u32 v%d, %d, v%d" % (va, L.FLG + gp * 2 * NREP * L.FPITCH, va))
            k("s_mov_b64 vcc, -1")
            return 1
        poll(k, rq, 2)
    k("v_mov_b32 v2, s%d" % sT)
    k("s_mov_b32 s%d, %d" % (T[0], L.EPOCH))
    k("s_mov_b64 exec, 1")
    k("buffer_store_dword v2, off, %s, s%d sc1" % (R, T[0]))
    k("s_mov_b64 exec, -1")
    k.label(lab)

def code_pf(k, lab_from, ngather, vt, vdst, s0, stride_waves=1):
    ref = k.newlab()
    k("s_getpc_b64 s[%d:%d]" % (s0, s0 + 1))
    k.label(ref)
    k("s_sub_u32 s%d, s%d, %s-%s_kernel" % (s0, s0, ref, NAME))
    k("s_subb_u32 s%d, s%d, 0" % (s0 + 1, s0 + 1))
    k("v_lshlrev_b32 v%d, 7, v0" % vt)
    k("v_add_u32 v%d, %s-%s_kernel, v%d" % (vt, lab_from, NAME, vt))
    for j in range(ngather):
        k("v_min_u32 v%d, .L_end-%s_kernel, v%d" % (vt + 1, NAME, vt))
        k("global_load_dword v%d, v%d, s[%d:%d]" % (vdst, vt + 1, s0, s0 + 1))
        if j + 1 < ngather: k("v_add_u32 v%d, %d, v%d" % (vt, 8192 * stride_waves, vt))

def prologue(k):
    k("s_cmp_ge_u32 s2, 256")
    k("s_cbranch_scc1 .L_end")
    stamp(k, 0)
    k("s_load_dwordx16 s[16:31], s[0:1], 0")
    k("s_load_dwordx4 s[32:35], s[0:1], 64")
    if CODEPF >= 2:
        lab = k.newlab()
        k("s_cmp_ge_u32 s2, %d" % EPFW)
        k("s_cbranch_scc1 %s" % lab)
        code_pf(k, NAME + "_kernel", 1, 250, 252, 36)
        k.label(lab)
    k("v_lshrrev_b32 v1, 6, v0")
    k("v_and_b32 v0, 63, v0")
    k("v_readfirstlane_b32 s%d, v1" % sw)
    k("v_lshlrev_b32 v%d, 4, v0" % vS)
    k("s_and_b32 s%d, s2, 7" % T[0])
    k("s_lshr_b32 s%d, s2, 3" % T[1])
    k("s_and_b32 s%d, s%d, 1" % (sg, T[0]))
    k("s_lshl_b32 s%d, s%d, 2" % (sg, sg))
    k("s_and_b32 s%d, s%d, 3" % (T[2], T[1]))
    k("s_add_u32 s%d, s%d, s%d" % (sg, sg, T[2]))
    k("s_lshr_b32 s%d, s%d, 1" % (sq, T[0]))
    k("s_lshr_b32 s%d, s%d, 2" % (ssub, T[1]))
    k("s_lshl_b32 s%d, s%d, 3" % (si, sq))
    k("s_add_u32 s%d, s%d, s%d" % (si, si, ssub))
    k("s_waitcnt lgkmcnt(0)")
    make_srd(k, sWS, P_WS, 1 << 28)
    k("s_add_u32 s%d, s%d, %d" % (T[0], P_WS, L.EPOCH))
    k("s_addc_u32 s%d, s%d, 0" % (T[1], P_WS + 1))
    k("s_load_dword s%d, s[%d:%d], 0" % (sT, T[0], T[1]))

def div18(k, vq, vrho, vcc_, vt):
    k("v_mul_u32_u24 v%d, 3641, v%d" % (vrho, vq))
    k("v_lshrrev_b32 v%d, 16, v%d" % (vrho, vrho))
    k("v_mul_u32_u24 v%d, 18, v%d" % (vt, vrho))
    k("v_sub_u32 v%d, v%d, v%d" % (vcc_, vq, vt))

def half_offsets(k, vdst, vT, pitch, mode, sbase=None):
    for j in range(5):
        q, rho, t2, t3 = vT, vT + 1, vT + 2, vT + 3
        k("v_add_u32 v%d, %d, v0" % (q, 64 * j))
        div18(k, q, rho, q, t2)
        if mode == "leftover":
            k("v_lshrrev_b32 v%d, 1, v%d" % (t2, rho))
            k("v_mul_u32_u24 v%d, 18, v%d" % (t2, t2))
            k("v_and_b32 v%d, 1, v%d" % (rho, rho))
            k("v_add3_u32 v%d, v%d, v%d, 16" % (rho, rho, t2))
        elif mode == "swap23":
            k("v_and_b32 v%d, 3, v%d" % (t2, rho))
            k("v_and_b32 v%d, 4, v%d" % (t3, rho))
            k("v_lshl_or_b32 v%d, v%d, 1, v%d" % (t2, t3, t2))
            k("v_bfe_u32 v%d, v%d, 3, 1" % (t3, rho))
            k("v_lshl_or_b32 v%d, v%d, 2, v%d" % (rho, t3, t2))
        k("v_mul_u32_u24 v%d, %d, v%d" % (t2, pitch, rho))
        k("v_lshl_add_u32 v%d, v%d, 4, v%d" % (vdst + j, q, t2))
        if sbase is not None: k("v_add_u32 v%d, s%d, v%d" % (vdst + j, sbase, vdst + j))
        if 0 < j < 4: k("v_subrev_u32 v%d, %d, v%d" % (vdst + j, j * 1024, vdst + j))
        if j == 4:
            k("v_mov_b32 v%d, 0x7ff00000" % t2)
            k("v_cmp_gt_u32 vcc, 32, v0")
            k("s_nop 1")
            k("v_cndmask_b32 v%d, v%d, v%d, vcc" % (vdst + j, t2, vdst + j))

def tr_addr(k, vdst, vT, halfpitch):
    k("v_bfe_u32 v%d, v0, 5, 1" % vT)
    k("v_mul_u32_u24 v%d, %d, v%d" % (vT, halfpitch, vT))
    k("v_bfe_u32 v%d, v0, 2, 3" % (vT + 1))
    k("v_mul_u32_u24 v%d, 288, v%d" % (vT + 1, vT + 1))
    k("v_and_b32 v%d, 3, v0" % (vT + 2))
    k("v_lshlrev_b32 v%d, 3, v%d" % (vT + 2, vT + 2))
    k("v_add3_u32 v%d, v%d, v%d, v%d" % (vdst, vT, vT + 1, vT + 2))

import stages
def build():
    k = Kern()
    prologue(k)
    stages.emit_all(k, sys.modules[__name__])
    k.label(".L_fin")
    epoch_update(k)
    if STAMPS:
        k("s_waitcnt vmcnt(0)")
        stamp(k, 19)
        stamp_out(k)
    k.label(".L_end")
    k("s_endpgm")
    hdr = open("cdna_kernels/%s.s.ref" % NAME).read().split("; Override launch")[0]
    kn = NAME + "_kernel"
    o = hdr + "; @launch grid=(256,1,1) block=(512,1,1) lds=163840\n"
    o += '.amdgcn_target "amdgcn-amd-amdhsa--gfx950"\n.text\n.globl %s\n.p2align 8\n.type %s,@function\n%s:\n' % (kn, kn, kn)
    o += "\n".join(k.L) + "\n"
    o += ('.section .rodata,"a"\n.p2align 6\n.amdhsa_kernel %s\n  .amdhsa_next_free_vgpr 256\n  .amdhsa_next_free_sgpr 102\n'
          "  .amdhsa_accum_offset 256\n  .amdhsa_group_segment_fixed_size 0\n  .amdhsa_kernarg_size 80\n"
          "  .amdhsa_user_sgpr_count 2\n  .amdhsa_user_sgpr_kernarg_segment_ptr 1\n"
          "  .amdhsa_system_sgpr_workgroup_id_x 1\n.end_amdhsa_kernel\n") % kn
    return o

if __name__ == "__main__":
    out = sys.argv[1] if len(sys.argv) > 1 else "out.s"
    open(out, "w").write(build())
    print("wrote", out)
```

```python
import layout as L
import os

def emit_all(k, M):
    g = globals()
    for n in dir(M):
        if not n.startswith("__"): g[n] = getattr(M, n)
    s1(k)
    if STOP <= 1: return
    s2(k)
    if STOP <= 2: return
    s3(k)
    if STOP <= 3: return
    s45(k)

S4SLOT = 36864
def s4_srd(k):
    k("s_cmp_lt_u32 s%d, 4" % sw)
    k("s_cselect_b32 s%d, s%d, s%d" % (T[2], P_G, P_U))
    k("s_cselect_b32 s%d, s%d, s%d" % (T[3], P_G + 1, P_U + 1))
    make_srd(k, sB, T[2], 576 * 9216)
def s4_offsets(k, vO, vT):
    k("s_and_b32 s%d, s%d, 3" % (T[0], sw))
    k("s_mul_i32 s%d, s%d, %d" % (T[0], T[0], 48 * 9216))
    k("s_mul_i32 s%d, s%d, 288" % (T[1], si))
    k("s_add_u32 s%d, s%d, s%d" % (T[0], T[0], T[1]))
    for j in range(5):
        k("v_add_u32 v%d, %d, v0" % (vT, 64 * j))
        k("v_mul_u32_u24 v%d, 10923, v%d" % (vT + 1, vT))
        k("v_lshrrev_b32 v%d, 16, v%d" % (vT + 1, vT + 1))
        k("v_mul_u32_u24 v%d, %d, v%d" % (vT + 1, 9216 - 96, vT + 1))
        k("v_lshl_add_u32 v%d, v%d, 4, v%d" % (vO + j, vT, vT + 1))
        k("v_add_u32 v%d, s%d, v%d" % (vO + j, T[0], vO + j))
        if 0 < j < 4: k("v_subrev_u32 v%d, %d, v%d" % (vO + j, j * 1024, vO + j))
def s4_wdma(k, vO, s, j, emit=None):
    ps, st = divmod(s, 3)
    if j == 0 or j == 4:
        k("s_mul_i32 s%d, s%d, 4608" % (T[0], sw))
        k("s_add_u32 m0, s%d, %d" % (T[0], (s % 4) * S4SLOT + j * 1024))
    if ps == 1: k("s_mov_b32 s%d, %d" % (T[0], st * 192 * 9216 + 96))
    else:
        k("s_bitcmp1_b32 s%d, 0" % si)
        k("s_cselect_b32 s%d, %d, %d" % (T[0], (2 - ps) * 96, ps * 96))
        if st: k("s_add_u32 s%d, s%d, %d" % (T[0], T[0], st * 192 * 9216))
    if j == 4: k("s_mov_b32 exec_hi, 0")
    (emit or k)("buffer_load_dwordx4 v%d, %s, s%d offen offset:%d lds" % (vO + j, RB, T[0], (j % 4) * 1024))
    if j == 4: k("s_mov_b32 exec_hi, -1")

def fin_epoch(k):
    k("s_waitcnt lgkmcnt(0)")
    k("s_add_u32 s%d, s%d, 16" % (sT, sT))
    k("s_and_b32 s%d, s%d, 0xfffffff0" % (sT, sT))

def s1(k):
    SLOT = 36864; WOFF = 16384; STA = 4 * SLOT; STB = STA + 512; CSL = STA + 1024
    smt, snt, sM0x, sM0w, sh = T[8], T[9], T[10], T[11], T[12]
    k("s_cmp_ge_u32 s%d, 6" % ssub)
    k("s_cbranch_scc1 .L_s1_pp")
    k("s_mul_i32 s%d, s%d, 3" % (snt, sq))
    k("s_lshr_b32 s%d, s%d, 1" % (T[0], ssub))
    k("s_add_u32 s%d, s%d, s%d" % (snt, snt, T[0]))
    k("s_lshl_b32 s%d, s%d, 1" % (smt, sg))
    k("s_and_b32 s%d, s%d, 1" % (T[0], ssub))
    k("s_add_u32 s%d, s%d, s%d" % (smt, smt, T[0]))
    k("s_and_b32 s%d, s%d, 3" % (sh, sw))
    k("s_lshl_b32 s%d, s%d, 12" % (sM0x, sh))
    def xaddr(vXa, vT):
        k("v_and_b32 v%d, 15, v0" % vT)
        k("v_lshrrev_b32 v%d, 4, v0" % (vT + 1))
        k("v_lshrrev_b32 v%d, 1, v%d" % (vT + 2, vT))
        k("v_xor_b32 v%d, v%d, v%d" % (vT + 2, vT + 2, vT + 1))
        k("v_lshlrev_b32 v%d, 7, v%d" % (vT + 3, vT))
        k("v_add_u32 v%d, s%d, v%d" % (vT + 3, sM0x, vT + 3))
        k("v_lshl_add_u32 v%d, v%d, 4, v%d" % (vXa + 0, vT + 2, vT + 3))
        k("v_xor_b32 v%d, 4, v%d" % (vT + 2, vT + 2))
        k("v_lshl_add_u32 v%d, v%d, 4, v%d" % (vXa + 2, vT + 2, vT + 3))
        k("v_add_u32 v%d, %d, v%d" % (vXa + 1, 2 * SLOT, vXa + 0))
        k("v_add_u32 v%d, %d, v%d" % (vXa + 3, 2 * SLOT, vXa + 2))
    k("s_cmp_lt_u32 s%d, 4" % sw)
    k("s_cbranch_scc1 .L_s1_comp")
    vXo, vWo, vT = 2, 6, 19
    make_srd(k, sA, P_X, 2048 * 1152)
    make_srd(k, sB, P_WQKV, 576 * 3456)
    k("s_lshl_b32 s%d, s%d, 7" % (T[0], smt))
    k("s_lshl_b32 s%d, s%d, 5" % (T[1], sh))
    k("s_add_u32 s%d, s%d, s%d" % (T[0], T[0], T[1]))
    k("v_lshrrev_b32 v%d, 3, v0" % vT)
    k("v_add_u32 v%d, s%d, v%d" % (vT, T[0], vT))
    k("v_mul_u32_u24 v%d, 1152, v%d" % (vT, vT))
    k("v_lshrrev_b32 v%d, 4, v0" % (vT + 1))
    k("v_and_b32 v%d, 7, v0" % (vT + 2))
    k("v_xor_b32 v%d, v%d, v%d" % (vT + 2, vT + 2, vT + 1))
    k("v_xor_b32 v%d, 4, v%d" % (vT + 3, vT + 2))
    for j in range(4):
        k("v_lshl_add_u32 v%d, v%d, 4, v%d" % (vXo + j, vT + 2 + (j & 1), vT))
        if j: k("v_add_u32 v%d, %d, v%d" % (vXo + j, j * 8 * 1152 - j * 1024, vXo + j))
    def dma_x(c):
        k("s_add_u32 m0, s%d, %d" % (sM0x, (c % 4) * SLOT))
        k("s_mov_b32 s%d, %d" % (T[0], c * 128))
        for j in range(4):
            k("buffer_load_dwordx4 v%d, %s, s%d offen offset:%d lds" % (vXo + j, RA, T[0], j * 1024))
    def dma_w(c):
        k("s_add_u32 m0, s%d, %d" % (sM0w, (c % 4) * SLOT))
        k("s_mov_b32 s%d, %d" % (T[1], c * 64 * 3456))
        for j in range(4):
            k("buffer_load_dwordx4 v%d, %s, s%d offen offset:%d lds" % (vWo + j, RB, T[1], j * 1024))
        k("s_add_u32 m0, s%d, %d" % (sM0w, (c % 4) * SLOT + 4096))
        k("s_nop 0")
        k("buffer_load_dwordx4 v%d, %s, s%d offen lds" % (vWo + 4, RB, T[1]))
    dma_x(0)
    k("s_mul_i32 s%d, s%d, %d" % (T[2], sh, 16 * 3456))
    k("s_mul_i32 s%d, s%d, 288" % (T[3], snt))
    k("s_add_u32 s%d, s%d, s%d" % (T[2], T[2], T[3]))
    k("s_mul_i32 s%d, s%d, 5120" % (sM0w, sh))
    k("s_add_u32 s%d, s%d, %d" % (sM0w, sM0w, WOFF))
    half_offsets(k, vWo, vT, 3456, "swap23", sbase=T[2])
    dma_w(0)
    dma_x(1); dma_w(1)
    stamp(k, 1)
    issued = 2
    for c in range(9):
        k("s_waitcnt vmcnt(%d)" % (9 * (issued - 1 - c)))
        k("s_barrier")
        while issued < 9 and issued <= c + 3:
            dma_x(issued); dma_w(issued); issued += 1
        if c == 6:
            lab = k.newlab()
            k("s_cmp_lg_u32 s%d, 4" % sw)
            k("s_cbranch_scc1 %s" % lab)
            fin_epoch(k)
            if not os.environ.get("NOSW"): poll(k, req_spare, vt=30)
            k("v_lshlrev_b32 v%d, 3, v0" % vT)
            k("s_lshl_b32 s%d, s%d, 9" % (T[0], smt))
            k("s_add_u32 s%d, s%d, %d" % (T[0], T[0], L.ST1))
            k("buffer_load_dwordx2 v[40:41], v%d, %s, s%d offen%s" % (vT, R, T[0], SC))
            k("s_add_u32 s%d, s%d, 8192" % (T[0], T[0]))
            k("buffer_load_dwordx2 v[42:43], v%d, %s, s%d offen%s" % (vT, R, T[0], SC))
            k("s_mul_i32 s%d, s%d, 576" % (T[0], snt))
            k("s_add_u32 s%d, s%d, %d" % (T[0], T[0], L.CS1))
            k("v_min_u32 v%d, 560, v%d" % (vT + 1, vS))
            k("buffer_load_dwordx4 v[44:47], v%d, %s, s%d offen%s" % (vT + 1, R, T[0], SC))
            k("s_add_u32 s%d, s%d, 6912" % (T[0], T[0]))
            k("buffer_load_dwordx4 v[48:51], v%d, %s, s%d offen%s" % (vT + 1, R, T[0], SC))
            k("s_mov_b32 s%d, 1.0" % T[2])
            k("s_cmp_lt_u32 s%d, 4" % snt)
            k("s_cselect_b32 s%d, %s, s%d" % (T[2], hx(f32bits(L.QSCALE)), T[2]))
            k("v_add_u32 v%d, %d, v%d" % (vT, STA, vT))
            k("v_add_u32 v%d, %d, v%d" % (vT + 1, CSL, vT + 1))
            k("s_waitcnt vmcnt(0)")
            for i in range(4): k("v_mul_f32 v%d, s%d, v%d" % (40 + i, T[2], 40 + i))
            for i in range(4): k("v_add_f32 v%d, v%d, v%d" % (44 + i, 44 + i, 48 + i))
            k("ds_write_b64 v%d, v[40:41]" % vT)
            k("ds_write_b64 v%d, v[42:43] offset:512" % vT)
            k("ds_write_b128 v%d, v[44:47]" % (vT + 1))
            k("s_waitcnt lgkmcnt(0)")
            k.label(lab)
    k("s_barrier")
    k("s_cmp_lg_u32 s%d, 11" % snt)
    k("s_cbranch_scc1 .L_s1_done")
    k("s_cmp_lg_u32 s%d, 1" % sh)
    k("s_cbranch_scc1 .L_s1_done")
    for i in range(4): k("v_mov_b32 v%d, 0x3f803f80" % (40 + i))
    k("v_lshrrev_b32 v%d, 2, v0" % vT)
    k("v_mul_u32_u24 v%d, %d, v%d" % (vT, L.VPL, vT))
    k("v_and_b32 v%d, 3, v0" % (vT + 1))
    k("v_lshl_add_u32 v%d, v%d, 4, v%d" % (vT, vT + 1, vT))
    k("s_mul_i32 s%d, s%d, %d" % (T[0], smt, 16 * L.VPL))
    k("s_add_u32 s%d, s%d, %d" % (T[0], T[0], L.VP + 9216))
    k("buffer_store_dwordx4 v[40:43], v%d, %s, s%d offen%s" % (vT, R, T[0], SC))
    k("s_branch .L_s1_done")
    k.label(".L_s1_comp")
    vXa, vWa, vT = 2, 6, 8
    XF, WF, ACC, CSV, ST = 16, 32, 104, 176, 212
    if TLBPF:
        lab = k.newlab()
        k("s_cmp_lg_u32 s%d, 1" % ssub)
        k("s_cbranch_scc1 %s" % lab)
        TLBS = TLBPF * 1024
        k("s_lshl_b32 s%d, s%d, 6" % (T[2], sw))
        k("v_add_u32 v%d, s%d, v0" % (vT, T[2]))
        k("v_mul_u32_u24 v%d, %d, v%d" % (vT, TLBS, vT))
        k("v_min_u32 v%d, %d, v%d" % (vT + 1, L.WSEND - 128, vT))
        k("buffer_load_dword v%d, v%d, %s, 0 offen sc1" % (CSV + 8, vT + 1, R))
        k("v_mul_u32_u24 v%d, %d, v0" % (vT, TLBS))
        for ww, ptr, nb in ((0, P_G, 576 * 9216), (1, P_U, 576 * 9216), (2, P_D, 576 * 9216), (3, P_OUT, 2048 * 1152)):
            l2 = k.newlab()
            k("s_cmp_lg_u32 s%d, %d" % (sw, ww))
            k("s_cbranch_scc1 %s" % l2)
            make_srd(k, sA, ptr, nb)
            k("buffer_load_dword v%d, v%d, %s, 0 offen" % (CSV + 9, vT, RA))
            k.label(l2)
        k.label(lab)
    if CODEPF:
        lab = k.newlab()
        k("s_cmp_lg_u32 s%d, 0" % ssub)
        k("s_cbranch_scc1 %s" % lab)
        k("s_getpc_b64 s[%d:%d]" % (T[0], T[1]))
        k.label(".L_pcref")
        k("s_sub_u32 s%d, s%d, .L_pcref-%s_kernel" % (T[0], T[0], NAME))
        k("s_subb_u32 s%d, s%d, 0" % (T[1], T[1]))
        k("s_lshl_b32 s%d, s%d, 13" % (T[2], sw))
        k("v_lshlrev_b32 v%d, 7, v0" % vT)
        k("v_add_u32 v%d, s%d, v%d" % (vT, T[2], vT))
        for j in range(3):
            k("v_min_u32 v%d, .L_end-%s_kernel, v%d" % (vT + 1 + j, NAME, vT))
            k("global_load_dword v%d, v%d, s[%d:%d]" % (CSV + 4 + j, vT + 1 + j, T[0], T[1]))
            k("v_add_u32 v%d, 32768, v%d" % (vT, vT))
        k.label(lab)
    if PF1:
        make_srd(k, sA, P_X, 2048 * 1152)
        make_srd(k, sB, P_WQKV, 576 * 3456)
        k("s_and_b32 s%d, s%d, 3" % (T[0], sg))
        k("s_mul_i32 s%d, s%d, 6" % (T[0], T[0]))
        k("s_add_u32 s%d, s%d, s%d" % (T[0], T[0], ssub))
        k("s_lshl_b32 s%d, s%d, 2" % (T[0], T[0]))
        k("s_add_u32 s%d, s%d, s%d" % (T[0], T[0], sw))
        k("s_mul_i32 s%d, s%d, %d" % (T[3], T[0], 6 * 3456))
        k("s_mul_i32 s%d, s%d, 864" % (T[2], sq))
        k("s_add_u32 s%d, s%d, s%d" % (T[3], T[3], T[2]))
        k("v_lshrrev_b32 v%d, 3, v0" % vT)
        k("v_min_u32 v%d, 5, v%d" % (vT, vT))
        k("v_mul_u32_u24 v%d, 3456, v%d" % (vT, vT))
        k("v_and_b32 v%d, 7, v0" % (vT + 1))
        k("v_lshlrev_b32 v%d, 7, v%d" % (vT + 1, vT + 1))
        k("v_min_u32 v%d, 860, v%d" % (vT + 1, vT + 1))
        k("v_add_u32 v%d, v%d, v%d" % (vT, vT, vT + 1))
        k("buffer_load_dword v%d, v%d, %s, s%d offen" % (CSV, vT, RB, T[3]))
        k("s_mul_i32 s%d, s%d, %d" % (T[1], T[0], 96 * 128))
        k("s_lshr_b32 s%d, s%d, 2" % (T[2], sg))
        k("s_mul_i32 s%d, s%d, %d" % (T[2], T[2], 1024 * 1152))
        k("s_add_u32 s%d, s%d, s%d" % (T[1], T[1], T[2]))
        k("v_lshlrev_b32 v%d, 7, v0" % (vT + 2))
        k("buffer_load_dword v%d, v%d, %s, s%d offen" % (CSV + 1, vT + 2, RA, T[1]))
        k("v_and_b32 v%d, 31, v0" % (vT + 3))
        k("v_lshlrev_b32 v%d, 7, v%d" % (vT + 3, vT + 3))
        k("s_add_u32 s%d, s%d, 8192" % (T[1], T[1]))
        k("buffer_load_dword v%d, v%d, %s, s%d offen" % (CSV + 2, vT + 3, RA, T[1]))
    xaddr(vXa, vT)
    tr_addr(k, vWa, vT, 5120)
    k("v_add_u32 v%d, %d, v%d" % (vWa, WOFF, vWa))
    k("v_add_u32 v%d, %d, v%d" % (vWa + 1, 2 * SLOT, vWa))
    def reads(s):
        c, ksl, buf = s // 2, s & 1, s & 1
        sl = c % 4; hi = sl >> 1; so = (sl & 1) * SLOT
        out = []
        for t in range(2):
            out.append("ds_read_b128 %s, v%d offset:%d" % (vr(XF + (buf * 2 + t) * 4, 4), vXa + ksl * 2 + hi, so + t * 2048))
        for u in range(9):
            for h in range(2):
                out.append("ds_read_b64_tr_b16 %s, v%d offset:%d" % (vr(WF + (buf * 9 + u) * 4 + 2 * h, 2), vWa + hi,
                           so + ksl * 10240 + h * 2304 + u * 32))
        return out
    k("s_cmp_ge_u32 s%d, 8" % snt)
    k("s_cbranch_scc1 .L_s1_v")
    for ori in ("qk", "v"):
        if ori == "v": k.label(".L_s1_v")
        k("s_barrier")
        stamp(k, 1)
        for r in reads(0): k(r)
        for s in range(18):
            buf = s & 1
            k("s_waitcnt lgkmcnt(0)")
            rd = []
            if s + 1 < 18:
                if (s + 1) % 2 == 0: k("s_barrier")
                rd = reads(s + 1)
            i = 0
            for u in range(9):
                for t in range(2):
                    a, b = vr(WF + (buf * 9 + u) * 4, 4), vr(XF + (buf * 2 + t) * 4, 4)
                    if ori == "v": a, b = b, a
                    d = vr(ACC + (t * 9 + u) * 4, 4)
                    k("v_mfma_f32_16x16x32_bf16 %s, %s, %s, %s" % (d, a, b, "0" if s == 0 else d))
                    for _ in range(2 if i < 2 else 1):
                        if rd: k(rd.pop(0))
                    i += 1
        stamp(k, 2)
        k("s_waitcnt vmcnt(0)")
        k("v_and_b32 v%d, 15, v0" % vT)
        k("v_lshrrev_b32 v%d, 4, v0" % (vT + 1))
        k("s_lshl_b32 s%d, s%d, 7" % (T[0], sw))
        k("s_add_u32 s%d, s%d, %d" % (T[0], T[0], STA))
        if ori == "qk":
            k("v_lshlrev_b32 v%d, 2, v%d" % (vT + 2, vT))
            k("v_add_u32 v%d, s%d, v%d" % (vT + 2, T[0], vT + 2))
            k("v_lshlrev_b32 v%d, 4, v%d" % (vT + 3, vT + 1))
            k("v_add_u32 v%d, %d, v%d" % (vT + 3, CSL, vT + 3))
            k("s_and_b32 s%d, s%d, 3" % (T[0], snt))
            k("s_mul_i32 s%d, s%d, 18" % (T[0], T[0]))
            k("s_lshl_b32 s%d, s%d, 2" % (T[1], smt))
            k("s_add_u32 s%d, s%d, s%d" % (T[1], T[1], sw))
            k("s_mul_i32 s%d, s%d, 72" % (T[1], T[1]))
            k("s_add_u32 s%d, s%d, s%d" % (T[0], T[0], T[1]))
            k("s_lshl_b32 s%d, s%d, 9" % (T[0], T[0]))
            k("s_mov_b32 s%d, %d" % (T[1], L.QP))
            k("s_cmp_lt_u32 s%d, 4" % snt)
            k("s_cselect_b32 s%d, s%d, %d" % (T[1], T[1], L.KP))
            k("s_add_u32 s%d, s%d, s%d" % (T[0], T[0], T[1]))
            k("s_barrier")
            for t in range(2):
                k("ds_read_b32 v%d, v%d offset:%d" % (ST + 2 * t, vT + 2, t * 64))
                k("ds_read_b32 v%d, v%d offset:%d" % (ST + 2 * t + 1, vT + 2, 512 + t * 64))
            for u in range(9): k("ds_read_b128 %s, v%d offset:%d" % (vr(CSV + 4 * u, 4), vT + 3, u * 64))
            for u in range(9):
                k("s_waitcnt lgkmcnt(%d)" % (8 - u))
                e = WF + 4 * u
                for t in range(2):
                    a = ACC + (t * 9 + u) * 4; ab = vr(ST + 2 * t, 2)
                    for p in range(2):
                        k("v_pk_mul_f32 %s, %s, %s op_sel_hi:[1,0]" % (vr(a + 2 * p, 2), vr(a + 2 * p, 2), ab))
                    for p in range(2):
                        k("v_pk_fma_f32 %s, %s, %s, %s op_sel:[0,1,0]" % (vr(a + 2 * p, 2), vr(CSV + 4 * u + 2 * p, 2), ab, vr(a + 2 * p, 2)))
                for t in range(2):
                    a = ACC + (t * 9 + u) * 4
                    for p in range(2): k("v_cvt_pk_bf16_f32 v%d, v%d, v%d" % (e + 2 * t + p, a + 2 * p, a + 2 * p + 1))
                k("s_nop 1")
                k("v_permlane16_swap_b32 v%d, v%d" % (e, e + 2))
                k("v_permlane16_swap_b32 v%d, v%d" % (e + 1, e + 3))
                if u and u % 4 == 0: k("s_add_u32 s%d, s%d, 4096" % (T[0], T[0]))
                k("s_nop 0")
                k("buffer_store_dwordx4 %s, v%d, %s, s%d offen offset:%d%s" % (vr(e, 4), vS, R, T[0], (u % 4) * 1024, SC))
            k("s_branch .L_s1_done")
        else:
            k("v_lshlrev_b32 v%d, 4, v%d" % (vT + 2, vT + 1))
            k("v_add_u32 v%d, s%d, v%d" % (vT + 2, T[0], vT + 2))
            k("v_lshlrev_b32 v%d, 2, v%d" % (vT + 3, vT))
            k("v_add_u32 v%d, %d, v%d" % (vT + 3, CSL, vT + 3))
            k("s_and_b32 s%d, s%d, 3" % (T[0], snt))
            k("s_mul_i32 s%d, s%d, 2304" % (T[0], T[0]))
            k("s_lshl_b32 s%d, s%d, 2" % (T[1], smt))
            k("s_add_u32 s%d, s%d, s%d" % (T[1], T[1], sw))
            k("s_mul_i32 s%d, s%d, %d" % (T[1], T[1], 4 * L.VPL))
            k("s_add_u32 s%d, s%d, s%d" % (T[0], T[0], T[1]))
            k("s_add_u32 s%d, s%d, %d" % (T[0], T[0], L.VP))
            k("v_mul_u32_u24 v%d, %d, v%d" % (vT + 4, L.VPL, vT + 1))
            k("v_lshl_add_u32 v%d, v%d, 4, v%d" % (vT + 4, vT, vT + 4))
            k("s_barrier")
            for t in range(2):
                k("ds_read_b128 %s, v%d offset:%d" % (vr(ST + 8 * t, 4), vT + 2, t * 64))
                k("ds_read_b128 %s, v%d offset:%d" % (vr(ST + 8 * t + 4, 4), vT + 2, 512 + t * 64))
            for u in range(9): k("ds_read_b32 v%d, v%d offset:%d" % (CSV + 2 * u, vT + 3, u * 64))
            for u in range(9):
                k("s_waitcnt lgkmcnt(%d)" % (8 - u))
                e = WF + 4 * u
                for t in range(2):
                    a = ACC + (t * 9 + u) * 4
                    for p in range(2):
                        k("v_pk_mul_f32 %s, %s, %s" % (vr(a + 2 * p, 2), vr(a + 2 * p, 2), vr(ST + 8 * t + 2 * p, 2)))
                    for p in range(2):
                        k("v_pk_fma_f32 %s, %s, %s, %s op_sel_hi:[0,1,1]" % (vr(a + 2 * p, 2), vr(CSV + 2 * u, 2), vr(ST + 8 * t + 4 + 2 * p, 2), vr(a + 2 * p, 2)))
                for t in range(2):
                    a = ACC + (t * 9 + u) * 4
                    for p in range(2): k("v_cvt_pk_bf16_f32 v%d, v%d, v%d" % (e + 2 * t + p, a + 2 * p, a + 2 * p + 1))
                k("s_nop 1")
                k("v_permlane32_swap_b32 v%d, v%d" % (e, e + 2))
                k("v_permlane32_swap_b32 v%d, v%d" % (e + 1, e + 3))
                k("s_nop 1")
                k("buffer_store_dwordx4 %s, v%d, %s, s%d offen offset:%d%s" % (vr(e, 4), vT + 4, R, T[0], u * 256, SC))
            k("s_branch .L_s1_done")
    k.label(".L_s1_pp")
    s1_prepack(k)
    k.label(".L_s1_done")
    lab = k.newlab()
    k("s_cmp_lt_u32 s%d, 6" % ssub)
    k("s_cselect_b32 s%d, 4, 99" % T[0])
    k("s_cmp_eq_u32 s%d, s%d" % (sw, T[0]))
    k("s_cbranch_scc1 %s" % lab)
    fin_epoch(k)
    k.label(lab)
    stamp(k, 3)
    if WARM == 3:
        lab = k.newlab()
        k("s_cmp_ge_u32 s%d, 5" % sw)
        k("s_cselect_b32 s%d, s%d, 0" % (T[0], ssub))
        k("s_cmp_ge_u32 s%d, 6" % T[0])
        k("s_cbranch_scc1 %s" % lab)
        k("s_waitcnt vmcnt(0)")
        k.label(lab)
        k("s_waitcnt lgkmcnt(0)")
    signal(k, 1, spare=True, drain=(WARM != 3))
    stamp(k, 4)
    lab = k.newlab()
    k("s_cmp_lt_u32 s%d, 6" % ssub)
    k("s_cbranch_scc1 %s" % lab)
    k("s_cmp_lg_u32 s%d, 0" % sw)
    k("s_cbranch_scc1 %s" % lab)
    poll(k, req_spare, vt=30)
    k.label(lab)
    if WARM in (1, 4): warm_spare(k)

def s1_prepack(k):
    SL = 10240; HF_ = 5120; RED = 2 * SL
    sp, sM0, sS1, sD, sid = T[8], T[9], T[11], T[12], T[13]
    vO2, vA, vT = 7, 12, 16
    F = 28; X = 64; AC = 100
    k("s_lshl_b32 s%d, s%d, 2" % (sp, sg))
    k("s_add_u32 s%d, s%d, s%d" % (sp, sp, sq))
    k("s_lshl_b32 s%d, s%d, 1" % (sp, sp))
    k("s_and_b32 s%d, s%d, 1" % (T[0], ssub))
    k("s_add_u32 s%d, s%d, s%d" % (sp, sp, T[0]))
    k("v_lshrrev_b32 v%d, 3, v0" % vT)
    k("v_and_b32 v%d, 7, v0" % (vT + 1))
    k("v_lshlrev_b32 v%d, 4, v%d" % (vT + 1, vT + 1))
    k("s_cmp_ge_u32 s%d, 4" % sw)
    k("s_cbranch_scc1 .L_pp_cs")
    make_srd(k, sA, P_X, 2048 * 1152)
    k("v_mul_u32_u24 v%d, 1152, v%d" % (vT + 2, vT))
    k("v_add_u32 v%d, v%d, v%d" % (vT + 2, vT + 2, vT + 1))
    k("s_lshl_b32 s%d, s%d, 2" % (T[1], sp))
    k("s_add_u32 s%d, s%d, s%d" % (T[1], T[1], sw))
    k("s_mul_i32 s%d, s%d, %d" % (T[2], T[1], 8 * 1152))
    for j in range(9): k("buffer_load_dwordx4 %s, v%d, %s, s%d offen offset:%d" % (vr(X + 4 * j, 4), vT + 2, RA, T[2], j * 128))
    k("s_lshl_b32 s%d, s%d, 6" % (sid, sw))
    k("s_add_u32 s%d, s%d, s%d" % (sid, sid, sp))
    k("s_cmp_ge_u32 s%d, 72" % sid)
    k("s_cbranch_scc1 .L_pp_st")
    k("s_mul_i32 s%d, s%d, %d" % (sM0, sw, SL))
    make_srd(k, sB, P_WO, 576 * 1152)
    k("s_and_b32 s%d, s%d, 3" % (T[4], sid))
    k("s_lshr_b32 s%d, s%d, 2" % (T[5], sid))
    k("s_cmp_ge_u32 s%d, 16" % T[5])
    k("s_cbranch_scc1 .L_pp_wol")
    half_offsets(k, vO2, vT + 4, 1152, "nat")
    k("s_mul_i32 s%d, s%d, %d" % (sS1, T[5], 36 * 1152))
    k("s_mov_b32 s%d, %d" % (T[6], 18 * 1152))
    k("s_branch .L_pp_wo2")
    k.label(".L_pp_wol")
    half_offsets(k, vO2, vT + 4, 1152, "leftover")
    k("s_sub_u32 s%d, s%d, 16" % (sS1, T[5]))
    k("s_mul_i32 s%d, s%d, %d" % (sS1, sS1, 16 * 18 * 1152))
    k("s_mov_b32 s%d, %d" % (T[6], 8 * 18 * 1152))
    k.label(".L_pp_wo2")
    k("s_mul_i32 s%d, s%d, 288" % (T[3], T[4]))
    k("s_add_u32 s%d, s%d, s%d" % (sS1, sS1, T[3]))
    for hlf in range(2):
        if hlf: k("s_add_u32 s%d, s%d, s%d" % (sS1, sS1, T[6]))
        k("s_add_u32 m0, s%d, %d" % (sM0, hlf * HF_))
        k("s_nop 0")
        for j in range(4):
            k("buffer_load_dwordx4 v%d, %s, s%d offen offset:%d lds" % (vO2 + j, RB, sS1, j * 1024))
        k("s_add_u32 m0, s%d, %d" % (sM0, hlf * HF_ + 4096))
        k("s_nop 0")
        k("buffer_load_dwordx4 v%d, %s, s%d offen lds" % (vO2 + 4, RB, sS1))
    k.label(".L_pp_st")
    stamp(k, 1)
    for i in range(4): k("v_mov_b32 v%d, 0" % (AC + i))
    k("s_waitcnt vmcnt(0)")
    for i in range(36):
        a0, a1 = AC + 4 + 2 * (i & 1), AC + 5 + 2 * (i & 1)
        k("v_lshlrev_b32 v%d, 16, v%d" % (a0, X + i))
        k("v_and_b32 v%d, 0xffff0000, v%d" % (a1, X + i))
        k("v_add_f32 v%d, v%d, v%d" % (AC, AC, a0))
        k("v_add_f32 v%d, v%d, v%d" % (AC + 1, AC + 1, a1))
        k("v_fmac_f32 v%d, v%d, v%d" % (AC + 2, a0, a0))
        k("v_fmac_f32 v%d, v%d, v%d" % (AC + 3, a1, a1))
    k("v_add_f32 v%d, v%d, v%d" % (AC, AC, AC + 1))
    k("v_add_f32 v%d, v%d, v%d" % (AC + 2, AC + 2, AC + 3))
    for dpp in ("quad_perm:[1,0,3,2]", "quad_perm:[2,3,0,1]", "row_half_mirror"):
        k("s_nop 1")
        k("v_add_f32_dpp v%d, v%d, v%d %s row_mask:0xf bank_mask:0xf" % (AC + 1, AC, AC, dpp))
        k("v_add_f32_dpp v%d, v%d, v%d %s row_mask:0xf bank_mask:0xf" % (AC + 3, AC + 2, AC + 2, dpp))
        k("v_mov_b32 v%d, v%d" % (AC, AC + 1))
        k("v_mov_b32 v%d, v%d" % (AC + 2, AC + 3))
    ln_stats(k, AC, AC + 2, AC + 4, AC + 5, AC + 6)
    k("v_mul_f32 v%d, -v%d, v%d" % (AC + 4, AC + 4, AC + 5))
    k("v_lshlrev_b32 v%d, 2, v%d" % (vT + 2, vT))
    k("s_lshl_b32 s%d, s%d, 5" % (T[2], T[1]))
    k("s_add_u32 s%d, s%d, %d" % (T[2], T[2], L.ST1))
    k("s_mov_b32 exec_lo, 0x01010101")
    k("s_mov_b32 exec_hi, 0x01010101")
    k("buffer_store_dword v%d, v%d, %s, s%d offen%s" % (AC + 5, vT + 2, R, T[2], SC))
    k("s_add_u32 s%d, s%d, 8192" % (T[2], T[2]))
    k("buffer_store_dword v%d, v%d, %s, s%d offen%s" % (AC + 4, vT + 2, R, T[2], SC))
    k("s_mov_b64 exec, -1")
    k("s_cmp_ge_u32 s%d, 72" % sid)
    k("s_cbranch_scc1 .L_pp_bar")
    tr_addr(k, vA, vT + 4, HF_)
    k("v_add_u32 v%d, s%d, v%d" % (vA, sM0, vA))
    k("s_mul_i32 s%d, s%d, %d" % (sD, T[4], 9 * 18))
    k("s_add_u32 s%d, s%d, s%d" % (sD, sD, T[5]))
    k("s_lshl_b32 s%d, s%d, 10" % (sD, sD))
    k("s_add_u32 s%d, s%d, %d" % (sD, sD, L.WOP))
    for u in range(9):
        for h in range(2):
            k("ds_read_b64_tr_b16 %s, v%d offset:%d" % (vr(F + 4 * u + 2 * h, 2), vA, h * 2304 + u * 32))
    k("s_waitcnt lgkmcnt(0)")
    for u in range(9):
        k("buffer_store_dwordx4 %s, v%d, %s, s%d offen%s" % (vr(F + 4 * u, 4), vS, R, sD, SC))
        k("s_add_u32 s%d, s%d, 18432" % (sD, sD))
    k("s_branch .L_pp_bar")
    k.label(".L_pp_cs")
    make_srd(k, sB, P_WQKV, 576 * 3456)
    k("v_mul_u32_u24 v%d, 3456, v%d" % (vT + 2, vT))
    k("v_add_u32 v%d, v%d, v%d" % (vT + 2, vT + 2, vT + 1))
    k("s_lshl_b32 s%d, s%d, 2" % (T[1], T[0]))
    k("s_add_u32 s%d, s%d, s%d" % (T[1], T[1], sw))
    k("s_sub_u32 s%d, s%d, 4" % (T[1], T[1]))
    k("s_mul_i32 s%d, s%d, %d" % (T[2], T[1], 72 * 3456))
    k("s_lshr_b32 s%d, s%d, 1" % (T[3], sp))
    k("s_lshl_b32 s%d, s%d, 7" % (T[4], T[3]))
    k("s_add_u32 s%d, s%d, s%d" % (T[2], T[2], T[4]))
    k("s_cmp_ge_u32 s%d, 54" % sp)
    k("s_cselect_b32 s%d, 0x7f000000, s%d" % (T[2], T[2]))
    for j in range(9):
        k("buffer_load_dwordx4 %s, v%d, %s, s%d offen" % (vr(X + 4 * j, 4), vT + 2, RB, T[2]))
        k("s_add_u32 s%d, s%d, %d" % (T[2], T[2], 8 * 3456))
    stamp(k, 1)
    NW3 = 0
    if WARM == 3:
        NW3 = 9
        warm3(k)
    for i in range(8): k("v_mov_b32 v%d, 0" % (AC + i))
    for j in range(9):
        k("s_waitcnt vmcnt(%d)" % (8 - j + NW3))
        for i in range(4):
            k("v_lshlrev_b32 v%d, 16, v%d" % (AC + 8 + 2 * i, X + 4 * j + i))
            k("v_and_b32 v%d, 0xffff0000, v%d" % (AC + 9 + 2 * i, X + 4 * j + i))
        for i in range(8): k("v_add_f32 v%d, v%d, v%d" % (AC + i, AC + i, AC + 8 + i))
    k("s_lshl_b32 s%d, s%d, 11" % (T[4], sw))
    k("s_add_u32 s%d, s%d, %d" % (T[4], T[4], RED - 4 * 2048))
    k("v_lshlrev_b32 v%d, 5, v0" % (vT + 2))
    k("v_add_u32 v%d, s%d, v%d" % (vT + 2, T[4], vT + 2))
    k("ds_write_b128 v%d, %s" % (vT + 2, vr(AC, 4)))
    k("ds_write_b128 v%d, %s offset:16" % (vT + 2, vr(AC + 4, 4)))
    k("s_waitcnt lgkmcnt(0)")
    k.label(".L_pp_bar")
    k("s_barrier")
    k("s_cmp_lg_u32 s%d, 4" % sw)
    k("s_cbranch_scc1 .L_pp_warm")
    k("v_lshlrev_b32 v%d, 2, v0" % (vT + 2))
    k("v_add_u32 v%d, %d, v%d" % (vT + 3, RED, vT + 2))
    for i in range(32): k("ds_read_b32 v%d, v%d offset:%d" % (X + i, vT + 3, i * 256))
    k("s_waitcnt lgkmcnt(0)")
    for st in (16, 8, 4, 2, 1):
        for i in range(st): k("v_add_f32 v%d, v%d, v%d" % (X + i, X + i, X + i + st))
    k("s_mul_i32 s%d, s%d, 6912" % (T[2], T[0]))
    k("s_lshl_b32 s%d, s%d, 8" % (T[4], T[3]))
    k("s_add_u32 s%d, s%d, s%d" % (T[2], T[2], T[4]))
    k("s_add_u32 s%d, s%d, %d" % (T[2], T[2], L.CS1))
    k("s_cmp_ge_u32 s%d, 54" % sp)
    k("s_cselect_b32 s%d, 0x7f000000, s%d" % (T[2], T[2]))
    k("buffer_store_dword v%d, v%d, %s, s%d offen%s" % (X, vT + 2, R, T[2], SC))
    k.label(".L_pp_warm")

def warm_spare(k):
    vT, F = 16, 244
    lab = k.newlab()
    k("s_cmp_lt_u32 s%d, 6" % ssub)
    k("s_cbranch_scc1 %s" % lab)
    make_srd(k, sA, P_G, 576 * 9216)
    make_srd(k, sB, P_U, 576 * 9216)
    k("s_lshl_b32 s%d, s%d, 1" % (T[1], sg))
    k("s_and_b32 s%d, s%d, 1" % (T[0], ssub))
    k("s_add_u32 s%d, s%d, s%d" % (T[1], T[1], T[0]))
    k("s_lshl_b32 s%d, s%d, 3" % (T[1], T[1]))
    k("s_add_u32 s%d, s%d, s%d" % (T[1], T[1], sw))
    k("s_mul_i32 s%d, s%d, 81" % (T[4], T[1]))
    k("s_mul_i32 s%d, s%d, 2304" % (T[2], sq))
    for j in range(2):
        k("v_add_u32 v%d, %d, v0" % (vT, 64 * j))
        k("v_min_u32 v%d, 80, v%d" % (vT, vT))
        k("v_add_u32 v%d, s%d, v%d" % (vT, T[4], vT))
        k("v_lshlrev_b32 v%d, 7, v%d" % (vT + 8 + j, vT))
        k("v_mul_u32_u24 v%d, 58255, v%d" % (vT + 1, vT))
        k("v_lshrrev_b32 v%d, 20, v%d" % (vT + 1, vT + 1))
        k("v_mul_u32_u24 v%d, %d, v%d" % (vT + 1, 9216 - 2304, vT + 1))
        k("v_add_u32 v%d, v%d, v%d" % (vT + 4 + j, vT + 8 + j, vT + 1))
        if j == 1: k("s_mov_b64 exec, 0x1ffff")
        k("buffer_load_dword v%d, v%d, %s, s%d offen" % (F + 2 * j, vT + 4 + j, RA, T[2]))
        k("buffer_load_dword v%d, v%d, %s, s%d offen" % (F + 2 * j + 1, vT + 4 + j, RB, T[2]))
    k("s_mov_b64 exec, -1")
    if WARM == 1:
        make_srd(k, sA, P_D, 4608 * 1152)
        k("s_mul_i32 s%d, s%d, %d" % (T[3], sq, 1152 * 1152))
        k("buffer_load_dword v%d, v%d, %s, s%d offen" % (F + 8, vT + 8, RA, T[3]))
        k("s_mov_b64 exec, 0x1ffff")
        k("buffer_load_dword v%d, v%d, %s, s%d offen" % (F + 9, vT + 9, RA, T[3]))
        k("s_mov_b64 exec, -1")
    k.label(lab)

def warm3(k):
    vT, F = 140, 160
    k("s_cmp_eq_u32 s%d, 6" % sw)
    k("s_cselect_b32 s%d, s%d, s%d" % (T[4], P_U, P_G)); k("s_cselect_b32 s%d, s%d, s%d" % (T[5], P_U + 1, P_G + 1))
    k("s_mov_b32 s%d, %d" % (T[6], 9216 - 2304))
    k("s_mul_i32 s%d, s%d, 2304" % (T[7], sq))
    k("s_mul_i32 s%d, s%d, %d" % (T[14], sq, 1152 * 1152))
    k("s_cmp_eq_u32 s%d, 7" % sw)
    k("s_cselect_b32 s%d, s%d, s%d" % (T[4], P_D, T[4])); k("s_cselect_b32 s%d, s%d, s%d" % (T[5], P_D + 1, T[5]))
    k("s_cselect_b32 s%d, 0, s%d" % (T[6], T[6]))
    k("s_cselect_b32 s%d, s%d, s%d" % (T[7], T[14], T[7]))
    k("s_cmp_eq_u32 s%d, 4" % sw)
    k("s_cselect_b32 s%d, 0x7f000000, s%d" % (T[7], T[7]))
    make_srd(k, sA, T[4], 576 * 9216)
    k("s_lshl_b32 s%d, s%d, 1" % (T[14], sg))
    k("s_add_u32 s%d, s%d, s%d" % (T[14], T[14], T[0]))
    k("s_mul_i32 s%d, s%d, 648" % (T[14], T[14]))
    for j in range(9):
        k("v_add_u32 v%d, %d, v0" % (vT, 72 * j))
        k("v_add_u32 v%d, s%d, v%d" % (vT, T[14], vT))
        k("v_mul_u32_u24 v%d, 58255, v%d" % (vT + 1, vT))
        k("v_lshrrev_b32 v%d, 20, v%d" % (vT + 1, vT + 1))
        k("v_mul_lo_u32 v%d, s%d, v%d" % (vT + 1, T[6], vT + 1))
        k("v_lshl_add_u32 v%d, v%d, 7, v%d" % (vT, vT, vT + 1))
        k("buffer_load_dword v%d, v%d, %s, s%d offen" % (F + j, vT, RA, T[7]))

def warm(k, vT, vdst):
    lab = k.newlab()
    k("s_and_b32 s%d, s%d, 3" % (T[0], sg))
    k("s_lshl_b32 s%d, s%d, 3" % (T[0], T[0]))
    k("s_add_u32 s%d, s%d, s%d" % (T[0], T[0], ssub))
    k("s_lshl_b32 s%d, s%d, 3" % (T[0], T[0]))
    k("s_add_u32 s%d, s%d, s%d" % (T[0], T[0], sw))
    k("s_min_u32 s%d, s%d, 242" % (T[0], T[0]))
    k("s_mov_b32 s%d, s%d" % (T[2], P_G)); k("s_mov_b32 s%d, s%d" % (T[3], P_G + 1))
    k("s_mov_b32 s%d, %d" % (T[1], 9216 - 2304))
    k("s_mul_i32 s%d, s%d, 2304" % (T[13], sq))
    k("s_cmp_ge_u32 s%d, 81" % T[0])
    k("s_cselect_b32 s%d, s%d, s%d" % (T[2], P_U, T[2])); k("s_cselect_b32 s%d, s%d, s%d" % (T[3], P_U + 1, T[3]))
    k("s_cselect_b32 s%d, 81, 0" % T[14])
    k("s_mul_i32 s%d, s%d, %d" % (T[15], sq, 1152 * 1152))
    k("s_cmp_ge_u32 s%d, 162" % T[0])
    k("s_cselect_b32 s%d, s%d, s%d" % (T[2], P_D, T[2])); k("s_cselect_b32 s%d, s%d, s%d" % (T[3], P_D + 1, T[3]))
    k("s_cselect_b32 s%d, 162, s%d" % (T[14], T[14]))
    k("s_cselect_b32 s%d, 0, s%d" % (T[1], T[1]))
    k("s_cselect_b32 s%d, s%d, s%d" % (T[13], T[15], T[13]))
    make_srd(k, sA, T[2], 576 * 9216)
    k("s_sub_u32 s%d, s%d, s%d" % (T[0], T[0], T[14]))
    k("s_lshr_b32 s%d, s%d, 2" % (T[14], sg))
    k("s_mul_i32 s%d, s%d, 81" % (T[14], T[14]))
    k("s_add_u32 s%d, s%d, s%d" % (T[0], T[0], T[14]))
    k("s_lshl_b32 s%d, s%d, 6" % (T[0], T[0]))
    k("v_add_u32 v%d, s%d, v0" % (vT, T[0]))
    k("v_mul_u32_u24 v%d, 58255, v%d" % (vT + 1, vT))
    k("v_lshrrev_b32 v%d, 20, v%d" % (vT + 1, vT + 1))
    k("v_mul_lo_u32 v%d, s%d, v%d" % (vT + 1, T[1], vT + 1))
    k("v_lshl_add_u32 v%d, v%d, 7, v%d" % (vT, vT, vT + 1))
    k("v_add_u32 v%d, s%d, v%d" % (vdst, T[13], vT))

def s2(k):
    LB = 73728
    KI, VI, QI = 0, 24576, 45056
    BIAS = 36864
    shd, sqb, sgp = si, T[8], T[9]
    sC = 80
    SB = 16
    M0_, M8_, CM = 64, 80, 96
    KF = 112
    VF = 184
    O = 216; Q_ = 232
    vKa, vKb, vVa, vQb, vT, vM = 2, 3, 4, 5, 6, 14
    NEG = hx(f32bits(-1e30))
    k("s_lshl_b32 s%d, s%d, 3" % (sqb, sg))
    k("s_add_u32 s%d, s%d, s%d" % (sqb, sqb, sw))
    k("s_mul_i32 s%d, s%d, 9" % (T[4], shd))
    k("s_lshr_b32 s%d, s%d, 2" % (T[4], T[4]))
    k("s_lshl_b32 s%d, s%d, 9" % (T[4], T[4]))
    k("s_mul_i32 s%d, s%d, %d" % (T[5], sg, 8 * 36864))
    k("s_add_u32 s%d, s%d, s%d" % (T[4], T[4], T[5]))
    k("s_add_u32 s%d, s%d, %d" % (T[5], T[4], L.QP))
    k("s_add_u32 s%d, s%d, %d" % (T[4], T[4], L.KP - 8 * 36864))
    k("s_mul_i32 s%d, s%d, %d" % (T[6], sg, 32 * L.VPL))
    k("s_add_u32 s%d, s%d, %d" % (T[6], T[6], L.VP - 32 * L.VPL))
    k("s_mul_i32 s%d, s%d, 288" % (T[12], shd))
    k("s_lshl_b32 s%d, s%d, 6" % (T[7], sw))
    k("v_add_u32 v%d, s%d, v0" % (vT, T[7]))
    OFF = KF
    k("v_mov_b32 v%d, 0x7ff00000" % (vT + 4))
    k("s_cmp_eq_u32 s%d, 0" % sg)
    k("s_cselect_b32 s%d, 768, 0" % T[10])
    k("s_cselect_b32 s%d, 640, 0" % T[11])
    k("s_cselect_b32 s%d, 8, 0" % T[13])
    for i in range(3):
        k("v_add_u32 v%d, %d, v%d" % (vT + 1, 512 * i, vT))
        k("v_mul_u32_u24 v%d, 43691, v%d" % (vT + 2, vT + 1))
        k("v_lshrrev_b32 v%d, 22, v%d" % (vT + 2, vT + 2))
        k("v_mul_u32_u24 v%d, %d, v%d" % (vT + 3, 36864 - 1536, vT + 2))
        k("v_lshl_add_u32 v%d, v%d, 4, v%d" % (OFF + 6 + i, vT + 1, vT + 3))
        k("v_mul_u32_u24 v%d, 3277, v%d" % (vT + 2, vT + 1))
        k("v_lshrrev_b32 v%d, 16, v%d" % (vT + 2, vT + 2))
        k("v_mul_u32_u24 v%d, 20, v%d" % (vT + 3, vT + 2))
        k("v_sub_u32 v%d, v%d, v%d" % (vT + 3, vT + 1, vT + 3))
        k("v_cmp_gt_u32 vcc, 18, v%d" % (vT + 3))
        k("v_lshlrev_b32 v%d, 4, v%d" % (vT + 3, vT + 3))
        k("v_add_u32 v%d, s%d, v%d" % (vT + 3, T[12], vT + 3))
        k("v_mov_b32 v%d, 9216" % (vT + 5))
        k("v_cndmask_b32 v%d, v%d, v%d, vcc" % (vT + 3, vT + 5, vT + 3))
        k("v_mul_u32_u24 v%d, %d, v%d" % (vT + 2, L.VPL, vT + 2))
        k("v_add_u32 v%d, v%d, v%d" % (OFF + 3 + i, vT + 2, vT + 3))
        k("v_cmp_gt_u32 vcc, s%d, v%d" % (T[10], vT + 1))
        k("v_cmp_gt_u32 s[%d:%d], s%d, v%d" % (sC, sC + 1, T[11], vT + 1))
        k("s_nop 1")
        k("v_cndmask_b32 v%d, v%d, v%d, vcc" % (OFF + i, OFF + 6 + i, vT + 4))
        k("v_cndmask_b32 v%d, v%d, v%d, s[%d:%d]" % (OFF + 3 + i, OFF + 3 + i, vT + 4, sC, sC + 1))
    k("v_cmp_gt_u32 vcc, s%d, v0" % T[13])
    k("v_mov_b32 v%d, 0xf149" % (vT + 2))
    k("v_mul_u32_u24 v%d, 1536, v0" % (vT + 1))
    k("v_cndmask_b32 v%d, 0, v%d, vcc" % (SB, vT + 2))
    for i in range(1, 4): k("v_mov_b32 v%d, 0" % (SB + i))
    k("s_mov_b64 exec, 0xffff")
    k("ds_write_b128 v%d, %s offset:%d" % (vT + 1, vr(SB, 4), BIAS))
    k("s_mov_b64 exec, -1")
    k("v_and_b32 v%d, 31, v0" % vT)
    k("v_lshrrev_b32 v%d, 5, v0" % (vT + 1))
    k("s_mul_i32 s%d, s%d, 1536" % (T[0], sw))
    k("s_add_u32 s%d, s%d, %d" % (T[1], T[0], LB))
    k("v_add_u32 v%d, s%d, v%d" % (vKa, T[1], vS))
    k("v_lshlrev_b32 v%d, 4, v%d" % (vT + 2, vT))
    k("v_add_u32 v%d, s%d, v%d" % (vQb, T[1], vT + 2))
    k("v_add_u32 v%d, 1024, v%d" % (vQb, vQb))
    k("s_add_u32 s%d, s%d, %d" % (T[1], T[0], BIAS))
    k("v_mov_b32 v%d, s%d" % (vKb, T[1]))
    k("v_cmp_gt_u32 vcc, 32, v0")
    k("s_mul_i32 s%d, s%d, 1280" % (T[0], sw))
    k("s_add_u32 s%d, s%d, %d" % (T[0], T[0], LB))
    k("v_cndmask_b32 v%d, v%d, v%d, vcc" % (vKb, vKb, vQb))
    k("v_mul_u32_u24 v%d, 320, v%d" % (vVa, vT + 1))
    k("v_add3_u32 v%d, v%d, v%d, s%d" % (vVa, vVa, vT + 2, T[0]))
    k("v_lshlrev_b32 v%d, 2, v%d" % (vT + 2, vT + 1))
    k("v_sub_u32 v%d, v%d, v%d" % (vT + 2, vT, vT + 2))
    k("v_mov_b32 v%d, %s" % (vT + 3, NEG))
    for half in range(2):
        for r8 in range(8):
            r = half * 8 + r8
            k("v_cmp_le_i32 s[%d:%d], %d, v%d" % (sC + 2 * r8, sC + 2 * r8 + 1, 8 * (r >> 2) + (r & 3), vT + 2))
        for r8 in range(8):
            r = half * 8 + r8
            k("v_cndmask_b32 v%d, v%d, 0, s[%d:%d]" % (M8_ + r, vT + 3, sC + 2 * r8, sC + 2 * r8 + 1))
            k("v_cndmask_b32 v%d, 0, v%d, s[%d:%d]" % (M0_ + r, vT + 3, sC + 2 * r8, sC + 2 * r8 + 1))
    k("s_lshl_b32 s%d, s%d, 1" % (T[0], shd))
    k("s_and_b32 s%d, s%d, 7" % (T[0], T[0]))
    k("v_lshlrev_b32 v%d, 3, v%d" % (vT + 4, vT + 1))
    k("v_subrev_u32 v%d, s%d, v%d" % (vT + 4, T[0], vT + 4))
    for p in range(8):
        k("v_add_u32 v%d, %d, v%d" % (vT + 5, (p >> 2) * 16 + (p & 3) * 2, vT + 4))
        k("v_cmp_gt_u32 s[%d:%d], 18, v%d" % (sC + 2 * p, sC + 2 * p + 1, vT + 5))
    k("v_mul_u32_u24 v%d, 0x3f80, v%d" % (vT + 6, vT + 1))
    if CODEPF >= 3:
        lab = k.newlab()
        k("s_add_u32 s%d, s%d, s%d" % (T[0], ssub, sw))
        k("s_cmp_lg_u32 s%d, 1" % T[0])
        k("s_cbranch_scc1 %s" % lab)
        code_pf(k, ".L_code_s3", 4, 210, 250, T[2])
        k.label(lab)
    s4_srd(k)
    s4_offsets(k, 200, 210)
    k("s_sub_u32 s%d, s%d, 1" % (sgp, sg))
    k("s_max_i32 s%d, s%d, 0" % (sgp, sgp))
    k("s_lshl_b32 s%d, s%d, 10" % (T[7], sw))
    wait_flags(k, req_group(1, sgp, mask_qkv), vt=240)
    stamp(k, 5)
    def dma(img, i, voff, soff, wlim):
        lab = None
        if wlim < 8:
            lab = k.newlab()
            k("s_cmp_ge_u32 s%d, %d" % (sw, wlim))
            k("s_cbranch_scc1 %s" % lab)
        k("s_add_u32 m0, s%d, %d" % (T[7], LB + img + i * 8192))
        k("s_nop 0")
        k("buffer_load_dwordx4 v%d, %s, s%d offen%s lds" % (voff, R, soff, SC))
        if lab: k.label(lab)
    dma(QI, 0, OFF + 6, T[5], 8); dma(QI, 1, OFF + 7, T[5], 4)
    for i in range(3): dma(KI, i, OFF + i, T[4], 8)
    dma(VI, 2, OFF + 5, T[6], 4)
    for i in range(2): dma(VI, i, OFF + 3 + i, T[6], 8)
    k("s_waitcnt vmcnt(2) lgkmcnt(0)")
    k("s_barrier")
    stamp(k, 6)
    order = [8, 7, 6, 5, 4, 3, 2, 1, 0]
    lq = Q(k, "lgkmcnt", 15)
    lq.op("q", "ds_read_b128 %s, v%d offset:%d" % (vr(Q_, 4), vKa, QI))
    lq.op("q", "ds_read_b128 %s, v%d offset:%d" % (vr(Q_ + 4, 4), vQb, QI))
    def kread(n):
        j = order[n]
        lq.op("k%d" % n, "ds_read_b128 %s, v%d offset:%d" % (vr(KF + 8 * n, 4), vKa, KI + j * 1536))
        lq.op("k%d" % n, "ds_read_b128 %s, v%d offset:%d" % (vr(KF + 8 * n + 4, 4), vKb, KI + j * 1536))
    def vread(n):
        j = order[n]
        for ks in range(2):
            lq.op("v%d" % n, "ds_read_b128 %s, v%d offset:%d" % (vr(VF + 8 * (n % 4) + 4 * ks, 4), vVa, VI + j * 1280 + ks * 640))
    for n in range(5): kread(n)
    lq.wait("q")
    for p in range(8): k("v_cndmask_b32 v%d, %s, v%d, s[%d:%d]" % (Q_ + p, "v%d" % (vT + 6) if p == 4 else "0", Q_ + p, sC + 2 * p, sC + 2 * p + 1))
    for i in range(16): k("v_mov_b32 v%d, 0" % (O + i))
    def qk(n, part, cfirst):
        sb = vr(SB + 16 * (n % 3), 16)
        if part == 0: k("v_mfma_f32_32x32x16_bf16 %s, %s, %s, %s" % (sb, vr(KF + 8 * n, 4), vr(Q_, 4), cfirst))
        else: k("v_mfma_f32_32x32x16_bf16 %s, %s, %s, %s" % (sb, vr(KF + 8 * n + 4, 4), vr(Q_ + 4, 4), sb))
    ch = [vT + 4, vT + 5, vM, vM + 1]
    def mx(n):
        o = []
        b = SB + 16 * (n % 3)
        for i in range(8):
            c = ch[i & 3]
            if n == 0 and i < 4: o.append("v_max_f32 v%d, v%d, v%d" % (c, b + 2 * i, b + 2 * i + 1))
            else: o.append("v_max3_f32 v%d, v%d, v%d, v%d" % (c, c, b + 2 * i, b + 2 * i + 1))
        return o
    for n in range(11):
        f = mx(n - 2) if n >= 2 else []
        if n < 9:
            if n + 5 < 9: kread(n + 5)
            lq.wait("k%d" % n)
            for x in f[:4]: k(x)
            qk(n, 0, vr(M8_, 16) if n == 0 else (vr(M0_, 16) if n == 8 else "0"))
            for x in f[4:]: k(x)
            qk(n, 1, None)
            if n < 2: k("s_nop 3")
            if EARLYW and 2 <= n < 7: s4_wdma(k, 200, 0, n - 2)
        else:
            if n == 9: k("s_nop 3")
            if n == 10: k("s_nop 1")
            for x in f: k(x)
    k("s_waitcnt vmcnt(%d)" % (5 if EARLYW else 0))
    k("s_barrier")
    for n in range(3): vread(n)
    k("v_max3_f32 v%d, v%d, v%d, v%d" % (vM, vM, ch[0], ch[1]))
    k("v_max_f32 v%d, v%d, v%d" % (vM, vM, vM + 1))
    k("v_mov_b32 v%d, v%d" % (vM + 1, vM))
    k("s_nop 1")
    k("v_permlane32_swap_b32 v%d, v%d" % (vM, vM + 1))
    k("s_nop 1")
    k("v_max_f32 v%d, v%d, v%d" % (vM, vM, vM + 1))
    for r in range(16): k("v_sub_f32 v%d, v%d, v%d" % (M8_ + r, M8_ + r, vM))
    for r in range(16): k("v_sub_f32 v%d, 0, v%d" % (CM + r, vM))
    stamp(k, 7)
    def pv(n, ks):
        b = SB + 16 * (n % 3)
        k("v_mfma_f32_32x32x16_bf16 %s, %s, %s, %s" % (vr(O, 16), vr(VF + 8 * (n % 4) + 4 * ks, 4), vr(b + 4 * ks, 4), vr(O, 16)))
    for n in range(11):
        ex = []
        if 1 <= n <= 9:
            b = SB + 16 * ((n - 1) % 3)
            ex = ["v_exp_f32 v%d, v%d" % (b + r, b + r) for r in range(16)]
            cv = ["v_cvt_pk_bf16_f32 v%d, v%d, v%d" % (b + i, b + 2 * i, b + 2 * i + 1) for i in range(8)]
        mf = []
        if n >= 2:
            lq.wait("v%d" % (n - 2))
            mf += [lambda n=n: pv(n - 2, 0), lambda n=n: pv(n - 2, 1)]
        if n < 9:
            c = vr(M8_, 16) if n == 0 else (vr(M0_, 16) if n == 8 else vr(CM, 16))
            mf += [lambda n=n, c=c: qk(n, 0, c), lambda n=n: qk(n, 1, None)]
        if n == 1:
            mf[0](); mf[1](); mf = []
            for r in range(16): k("v_sub_f32 v%d, v%d, v%d" % (M0_ + r, M0_ + r, vM))
        for i in range(4):
            if mf: mf.pop(0)()
            for x in ex[4 * i:4 * i + 4]: k(x)
        if ex:
            for x in cv: k(x)
        if 2 <= n and n + 1 < 9: vread(n + 1)
        if n == 9: k("s_nop 1")
    k("v_lshrrev_b32 v%d, 4, v%d" % (vT + 2, vT))
    k("v_mul_u32_u24 v%d, 18432, v%d" % (vT + 2, vT + 2))
    k("v_and_b32 v%d, 15, v%d" % (vT + 3, vT))
    k("v_lshl_add_u32 v%d, v%d, 4, v%d" % (vT + 2, vT + 3, vT + 2))
    k("v_lshl_add_u32 v%d, v%d, 8, v%d" % (vT + 3, vT + 1, vT + 2))
    k("s_mul_i32 s%d, s%d, 36864" % (T[0], sqb))
    k("s_add_u32 s%d, s%d, %d" % (T[0], T[0], L.OP))
    k("s_lshl_b32 s%d, s%d, 9" % (T[1], shd))
    k("s_add_u32 s%d, s%d, s%d" % (T[1], T[1], T[0]))
    k("s_lshr_b32 s%d, s%d, 4" % (T[2], shd))
    k("s_add_u32 s%d, s%d, 16" % (T[2], T[2]))
    k("s_lshl_b32 s%d, s%d, 10" % (T[2], T[2]))
    k("s_add_u32 s%d, s%d, s%d" % (T[2], T[2], T[0]))
    for bit, sh in ((3, 9), (1, 8), (2, 3), (0, 2)):
        k("s_bfe_u32 s%d, s%d, 0x1000%d" % (T[3], shd, bit))
        k("s_lshl_b32 s%d, s%d, %d" % (T[3], T[3], sh))
        k("s_add_u32 s%d, s%d, s%d" % (T[2], T[2], T[3]))
    k("v_mov_b32 v%d, v%d" % (vM, O + 10))
    k("v_mov_b32 v%d, v%d" % (vM + 1, O + 10))
    k("s_nop 1")
    k("v_permlane32_swap_b32 v%d, v%d" % (vM, vM + 1))
    k("s_nop 1")
    k("v_rcp_f32 v%d, v%d" % (vM, vM))
    k("s_nop 0")
    for r in range(10): k("v_mul_f32 v%d, v%d, v%d" % (O + r, O + r, vM))
    for i in range(5): k("v_cvt_pk_bf16_f32 v%d, v%d, v%d" % (O + i, O + 2 * i, O + 2 * i + 1))
    k("buffer_store_dwordx4 %s, v%d, %s, s%d offen%s" % (vr(O, 4), vT + 3, R, T[1], SC))
    k("s_mov_b32 exec_hi, 0")
    k("buffer_store_dword v%d, v%d, %s, s%d offen%s" % (O + 4, vT + 2, R, T[2], SC))
    k("s_mov_b32 exec_hi, -1")
    stamp(k, 8)
    if STOP <= 2:
        signal(k, 2)
        stamp(k, 9)

def s3(k):
    k.label(".L_code_s3")
    OI, XI, SI = 73728, 131072, 131072 + 9216
    stt = T[8]
    vT = 2
    OF = 12
    WF = 28
    WX = 100
    ACC = 172
    E = 184
    k("s_lshl_b32 s%d, s%d, 3" % (stt, sg))
    k("s_add_u32 s%d, s%d, s%d" % (stt, stt, ssub))
    make_srd(k, sA, P_X, 2048 * 1152)
    k("s_mul_i32 s%d, s%d, 9" % (T[4], sq))
    k("s_mul_i32 s%d, s%d, 36864" % (T[6], stt))
    k("s_mul_i32 s%d, s%d, 288" % (T[7], sq))
    k("s_add_u32 s%d, s%d, s%d" % (T[6], T[6], T[7]))
    def wloads(dst, sidx):
        k("s_add_u32 s%d, s%d, %s" % (T[5], T[4], sidx))
        k("s_mul_i32 s%d, s%d, 18432" % (T[5], T[5]))
        k("s_add_u32 s%d, s%d, %d" % (T[5], T[5], L.WOP))
        for ks in range(18):
            if ks and ks % 4 == 0: k("s_add_u32 s%d, s%d, 4096" % (T[5], T[5]))
            k("buffer_load_dwordx4 %s, v%d, %s, s%d offen offset:%d%s" % (vr(dst + 4 * ks, 4), vS, R, T[5], (ks % 4) * 1024, SC))
    def xdma(sidx):
        k("s_lshl_b32 s%d, s%d, 6" % (T[7], sidx))
        k("v_add_u32 v%d, s%d, v0" % (vT, T[7]))
        k("v_mul_u32_u24 v%d, 3641, v%d" % (vT + 1, vT))
        k("v_lshrrev_b32 v%d, 16, v%d" % (vT + 1, vT + 1))
        k("v_mul_u32_u24 v%d, %d, v%d" % (vT + 1, 1152 - 288, vT + 1))
        k("v_lshl_add_u32 v%d, v%d, 4, v%d" % (vT + 1, vT, vT + 1))
        k("s_lshl_b32 s%d, s%d, 10" % (T[7], sidx))
        k("s_add_u32 m0, s%d, %d" % (T[7], XI))
        k("s_nop 0")
        k("buffer_load_dwordx4 v%d, %s, s%d offen lds" % (vT + 1, RA, T[6]))
    lab = k.newlab(); lab2 = k.newlab(); lab3 = k.newlab(); lab4 = k.newlab()
    k("s_cmp_ge_u32 s%d, 4" % sw)
    k("s_cbranch_scc1 %s" % lab)
    wloads(WF, "s%d" % sw)
    xdma(sw)
    k("s_waitcnt vmcnt(19)")
    k("s_cmp_ge_u32 s%d, 2" % sw)
    k("s_cbranch_scc1 %s" % lab2)
    wloads(WX, "8")
    k("s_branch %s" % lab3)
    k.label(lab2)
    k("s_add_u32 s%d, s%d, 6" % (T[9], sw))
    k("s_cmp_eq_u32 s%d, 9" % T[9])
    k("s_cbranch_scc1 %s" % lab3)
    xdma(T[9])
    k("s_branch %s" % lab3)
    k.label(lab)
    k("s_waitcnt vmcnt(0)")
    k.label(lab3)
    signal(k, 2, drain=False, vt=E, wave=7)
    k("s_cmp_lt_u32 s%d, 4" % sw)
    k("s_cbranch_scc1 %s" % lab4)
    wloads(WF, "s%d" % sw)
    xdma(sw)
    k.label(lab4)
    stamp(k, 9)
    k("v_and_b32 v%d, 15, v0" % vT)
    k("v_lshrrev_b32 v%d, 4, v0" % (vT + 1))
    k("v_mul_u32_u24 v%d, 288, v%d" % (vT + 2, vT))
    k("v_lshl_add_u32 v%d, v%d, 3, v%d" % (vT + 2, vT + 1, vT + 2))
    k("v_add_u32 v%d, %d, v%d" % (vT + 2, XI, vT + 2))
    k("s_lshl_b32 s%d, s%d, 5" % (T[4], sw))
    k("v_add_u32 v%d, s%d, v%d" % (vT + 4, T[4], vT + 2))
    k("s_mul_i32 s%d, s%d, 4608" % (T[4], sw))
    k("v_add_u32 v%d, s%d, v%d" % (vT + 5, T[4], vT + 2))
    k("v_lshrrev_b32 v%d, 5, v0" % (vT + 3))
    k("v_mul_u32_u24 v%d, %d, v%d" % (vT + 3, 18432 - 512, vT + 3))
    k("v_add_u32 v%d, v%d, v%d" % (vT + 3, vT + 3, vS))
    k("v_add_u32 v%d, %d, v%d" % (vT + 6, OI, vS))
    k("s_mul_i32 s%d, s%d, 36864" % (T[10], stt))
    k("s_mul_i32 s%d, s%d, 9" % (T[4], sq))
    k("s_add_u32 s%d, s%d, s%d" % (T[5], T[4], sw))
    k("s_lshl_b32 s%d, s%d, 9" % (T[5], T[5]))
    k("s_add_u32 s%d, s%d, s%d" % (T[11], T[10], T[5]))
    k("s_add_u32 s%d, s%d, %d" % (T[11], T[11], L.HP))
    k("s_add_u32 s%d, s%d, 8" % (T[5], T[4]))
    k("s_lshl_b32 s%d, s%d, 9" % (T[5], T[5]))
    k("s_add_u32 s%d, s%d, s%d" % (T[12], T[10], T[5]))
    k("s_mul_i32 s%d, s%d, 18432" % (T[5], sw))
    k("s_add_u32 s%d, s%d, s%d" % (T[12], T[12], T[5]))
    k("s_add_u32 s%d, s%d, %d" % (T[12], T[12], L.HP))
    k("s_mul_i32 s%d, s%d, 4608" % (T[13], sw))
    k("s_add_u32 s%d, s%d, s%d" % (T[10], T[10], T[13]))
    k("s_add_u32 s%d, s%d, %d" % (T[10], T[10], L.OP))
    s4_offsets(k, 210, 220)
    wait_flags(k, req_group(2), vt=E, wave=3)
    stamp(k, 10)
    k("s_add_u32 m0, s%d, %d" % (T[13], OI))
    k("s_nop 0")
    for j in range(4): k("buffer_load_dwordx4 v%d, %s, s%d offen offset:%d%s lds" % (vS, R, T[10], j * 1024, SC))
    k("s_add_u32 m0, s%d, %d" % (T[13], OI + 4096))
    k("s_add_u32 s%d, s%d, 4096" % (T[10], T[10]))
    k("s_mov_b32 exec_hi, 0")
    k("buffer_load_dwordx4 v%d, %s, s%d offen%s lds" % (vS, R, T[10], SC))
    k("s_mov_b32 exec_hi, -1")
    for j in range(5 if EARLYW else 0): s4_wdma(k, 210, 1, j)
    k("s_waitcnt vmcnt(%d)" % (5 if EARLYW else 0))
    k("s_barrier")
    stamp(k, 11)
    def oread(ks):
        for t in range(2):
            k("ds_read_b128 %s, v%d offset:%d" % (vr(OF + ((ks & 1) * 2 + t) * 4, 4), vT + 6, (t * 18 + ks) * 1024))
    def resid(a, x, e):
        k("v_cvt_pk_bf16_f32 v%d, v%d, v%d" % (e, a, a + 1))
        k("v_cvt_pk_bf16_f32 v%d, v%d, v%d" % (e + 1, a + 2, a + 3))
        for i in range(2):
            k("v_lshlrev_b32 v%d, 16, v%d" % (a + 2 * i, e + i))
            k("v_and_b32 v%d, 0xffff0000, v%d" % (a + 2 * i + 1, e + i))
            k("v_lshlrev_b32 v%d, 16, v%d" % (E + 20, x + i))
            k("v_and_b32 v%d, 0xffff0000, v%d" % (E + 21, x + i))
            k("v_pk_add_f32 %s, %s, %s" % (vr(a + 2 * i, 2), vr(a + 2 * i, 2), vr(E + 20, 2)))
        k("v_cvt_pk_bf16_f32 v%d, v%d, v%d" % (e, a, a + 1))
        k("v_cvt_pk_bf16_f32 v%d, v%d, v%d" % (e + 1, a + 2, a + 3))
        for i in range(2):
            k("v_lshlrev_b32 v%d, 16, v%d" % (a + 2 * i, e + i))
            k("v_and_b32 v%d, 0xffff0000, v%d" % (a + 2 * i + 1, e + i))
    def stats(a, sm, first):
        if first:
            k("v_add_f32 v%d, v%d, v%d" % (sm, a, a + 1))
            k("v_mul_f32 v%d, v%d, v%d" % (sm + 1, a, a))
        else:
            k("v_add_f32 v%d, v%d, v%d" % (sm, sm, a))
            k("v_fmac_f32 v%d, v%d, v%d" % (sm + 1, a, a))
            k("v_add_f32 v%d, v%d, v%d" % (sm, sm, a + 1))
        k("v_fmac_f32 v%d, v%d, v%d" % (sm + 1, a + 1, a + 1))
        for i in (2, 3):
            k("v_add_f32 v%d, v%d, v%d" % (sm, sm, a + i))
            k("v_fmac_f32 v%d, v%d, v%d" % (sm + 1, a + i, a + i))
    k("s_cmp_lt_u32 s%d, 2" % sw)
    k("s_cbranch_scc1 .L_s3_x")
    for var in ("main", 0, 1):
        if var == 0:
            k.label(".L_s3_x")
            k("s_cmp_eq_u32 s%d, 1" % sw)
            k("s_cbranch_scc1 .L_s3_x1")
        if var == 1: k.label(".L_s3_x1")
        oread(0)
        for ks in range(18):
            if ks + 1 < 18:
                oread(ks + 1); k("s_waitcnt lgkmcnt(2)")
            else:
                for t in range(2): k("ds_read_b64 %s, v%d offset:%d" % (vr(E + 8 + 2 * t, 2), vT + 4, t * 4608))
                if var != "main": k("ds_read_b64 %s, v%d offset:256" % (vr(E + 12, 2), vT + 5))
                k("s_waitcnt lgkmcnt(%d)" % (2 if var == "main" else 3))
            for t in range(2):
                d = vr(ACC + 4 * t, 4)
                k("v_mfma_f32_16x16x32_bf16 %s, %s, %s, %s" % (d, vr(WF + 4 * ks, 4), vr(OF + ((ks & 1) * 2 + t) * 4, 4), "0" if ks == 0 else d))
            if var != "main":
                d = vr(ACC + 8, 4)
                k("v_mfma_f32_16x16x32_bf16 %s, %s, %s, %s" % (d, vr(WX + 4 * ks, 4), vr(OF + ((ks & 1) * 2 + var) * 4, 4), "0" if ks == 0 else d))
        k("s_nop 6")
        k("s_waitcnt lgkmcnt(0)")
        SM = E + 16
        for t in range(2):
            resid(ACC + 4 * t, E + 8 + 2 * t, E + 2 * t)
            stats(ACC + 4 * t, SM + 2 * t, True)
        k("v_permlane32_swap_b32 v%d, v%d" % (E, E + 2))
        k("v_permlane32_swap_b32 v%d, v%d" % (E + 1, E + 3))
        k("s_nop 1")
        k("buffer_store_dwordx4 %s, v%d, %s, s%d offen%s" % (vr(E, 4), vT + 3, R, T[11], SC))
        if var != "main":
            resid(ACC + 8, E + 12, E + 4)
            k("v_mov_b32 v%d, v%d" % (E + 6, E + 4))
            k("v_mov_b32 v%d, v%d" % (E + 7, E + 5))
            stats(ACC + 8, SM + 2 * var, False)
            k("v_permlane32_swap_b32 v%d, v%d" % (E + 4, E + 6))
            k("v_permlane32_swap_b32 v%d, v%d" % (E + 5, E + 7))
            k("s_mov_b32 exec_hi, 0")
            k("s_nop 0")
            k("buffer_store_dwordx4 %s, v%d, %s, s%d offen%s" % (vr(E + 4, 4), vS, R, T[12], SC))
            k("s_mov_b32 exec_hi, -1")
        if var != 1: k("s_branch .L_s3_j")
    k.label(".L_s3_j")
    SM = E + 16
    sum_rows(k, [SM, SM + 1, SM + 2, SM + 3], [E + 8, E + 9, E + 10, E + 11])
    k("s_lshl_b32 s%d, s%d, 8" % (T[4], sw))
    k("s_add_u32 s%d, s%d, %d" % (T[4], T[4], SI))
    k("v_lshlrev_b32 v%d, 3, v%d" % (vT + 2, vT))
    k("v_add_u32 v%d, s%d, v%d" % (vT + 2, T[4], vT + 2))
    k("s_mov_b64 exec, 0xffff")
    for t in range(2): k("ds_write_b64 v%d, %s offset:%d" % (vT + 2, vr(SM + 2 * t, 2), t * 128))
    k("s_mov_b64 exec, -1")
    k("s_waitcnt lgkmcnt(0)")
    k("s_barrier")
    lab = k.newlab()
    k("s_cmp_lg_u32 s%d, 7" % sw)
    k("s_cbranch_scc1 %s" % lab)
    k("v_lshlrev_b32 v%d, 2, v0" % (vT + 2))
    k("v_add_u32 v%d, %d, v%d" % (vT + 4, SI, vT + 2))
    for ww in range(8): k("ds_read_b32 v%d, v%d offset:%d" % (WF + ww, vT + 4, ww * 256))
    k("s_lshl_b32 s%d, s%d, 14" % (T[4], sq))
    k("s_lshl_b32 s%d, s%d, 8" % (T[5], stt))
    k("s_add_u32 s%d, s%d, s%d" % (T[4], T[4], T[5]))
    k("s_add_u32 s%d, s%d, %d" % (T[4], T[4], L.ST2))
    k("s_waitcnt lgkmcnt(0)")
    for st in (4, 2, 1):
        for i in range(st): k("v_add_f32 v%d, v%d, v%d" % (WF + i, WF + i, WF + i + st))
    k("buffer_store_dword v%d, v%d, %s, s%d offen%s" % (WF, vT + 2, R, T[4], SC))
    k.label(lab)
    stamp(k, 12)
    signal(k, 3, wave=7)
    stamp(k, 13)

def publish(k, val, wave, vt):
    lab = k.newlab()
    k("s_cmp_lg_u32 s%d, %d" % (sw, wave))
    k("s_cbranch_scc1 %s" % lab)
    k("s_mul_i32 s%d, s%d, %d" % (T[0], sg, NREP * L.FPITCH))
    k("s_lshl_b32 s%d, s%d, 2" % (T[1], si))
    k("s_add_u32 s%d, s%d, s%d" % (T[0], T[0], T[1]))
    k("s_add_u32 s%d, s%d, %d" % (T[0], T[0], L.FLG))
    k("s_add_u32 s%d, s%d, %d" % (T[1], sT, val))
    k("v_mov_b32 v%d, s%d" % (vt, T[1]))
    k("v_mul_u32_u24 v%d, %d, v0" % (vt + 1, L.FPITCH))
    k("s_mov_b32 exec_lo, %s" % ("0xff" if NREP == 8 else "-1")); k("s_mov_b32 exec_hi, 0")
    k("buffer_store_dword v%d, v%d, %s, s%d offen sc1" % (vt, vt + 1, R, T[0]))
    k("s_mov_b64 exec, -1")
    k.label(lab)

def peek_issue(k, wave, vt):
    lab = k.newlab()
    k("s_cmp_lg_u32 s%d, %d" % (sw, wave))
    k("s_cbranch_scc1 %s" % lab)
    k("s_lshl_b32 s%d, s%d, %d" % (T[2], sg, REPSH))
    k("s_add_u32 s%d, s%d, s%d" % (T[2], T[2], srep))
    k("s_mul_i32 s%d, s%d, %d" % (T[2], T[2], L.FPITCH))
    k("s_lshl_b32 s%d, s%d, 5" % (T[3], sq))
    k("s_add_u32 s%d, s%d, s%d" % (T[2], T[2], T[3]))
    k("s_add_u32 s%d, s%d, %d" % (T[2], T[2], L.FLG))
    k("v_and_b32 v%d, 7, v0" % vt)
    k("v_lshlrev_b32 v%d, 2, v%d" % (vt, vt))
    k("buffer_load_dword v%d, v%d, %s, s%d offen sc1" % (vt + 1, vt, R, T[2]))
    k.label(lab)
def peek_check(k, wave, vt, val):
    lab = k.newlab()
    k("s_cmp_lg_u32 s%d, %d" % (sw, wave))
    k("s_cbranch_scc1 %s" % lab)
    k("s_add_u32 s%d, s%d, %d" % (T[1], sT, val))
    k("s_waitcnt vmcnt(0)")
    k("v_subrev_u32 v%d, s%d, v%d" % (vt + 1, T[1], vt + 1))
    k("v_cmp_le_u32 vcc, %d, v%d" % (16 - val, vt + 1))
    k("s_nop 3")
    k("s_cmp_eq_u64 vcc, 0")
    k("s_cbranch_scc1 %s" % lab)
    poll(k, req_group(val, None, mask_q), vt)
    k.label(lab)

def s45(k):
    SLOT = S4SLOT
    sHH, sH = T[10], T[11]
    vO, vA, vSt, vT = 2, 7, 11, 12
    AB = 16; U = 20; H = 24; ACC = 168; WF = 216; NWF = 8; E = 248
    vm = Q(k, "vmcnt", 63); lq = Q(k, "lgkmcnt", 15)
    s4_offsets(k, vO, vT)
    def wdma(s, j):
        return lambda: s4_wdma(k, vO, s, j, emit=lambda t: vm.op("W%d" % s, t))
    vm.mark("W0"); vm.mark("W1")
    lab = k.newlab()
    k("s_cmp_eq_u32 s%d, 7" % sw)
    k("s_cbranch_scc1 %s" % lab)
    for s in (2, 3):
        for j in range(5): s4_wdma(k, vO, s, j)
    k.label(lab)
    k("v_bfe_u32 v%d, v0, 5, 1" % vT)
    k("v_lshlrev_b32 v%d, 4, v%d" % (vT, vT))
    k("v_bfe_u32 v%d, v0, 2, 3" % (vT + 1))
    k("v_add_u32 v%d, v%d, v%d" % (vT, vT, vT + 1))
    k("v_mul_u32_u24 v%d, 96, v%d" % (vT, vT))
    k("v_and_b32 v%d, 3, v0" % (vT + 1))
    k("v_lshl_add_u32 v%d, v%d, 3, v%d" % (vA, vT + 1, vT))
    for i in range(1, 4): k("v_add_u32 v%d, %d, v%d" % (vA + i, i * SLOT, vA))
    k("s_lshl_b32 s%d, s%d, 4" % (T[1], sg))
    k("s_lshl_b32 s%d, s%d, 1" % (T[2], sw))
    k("s_add_u32 s%d, s%d, s%d" % (T[1], T[1], T[2]))
    k("s_mul_i32 s%d, s%d, 147456" % (sHH, T[1]))
    k("s_mul_i32 s%d, s%d, %d" % (T[2], si, 9 * 512))
    k("s_add_u32 s%d, s%d, s%d" % (sHH, sHH, T[2]))
    k("s_add_u32 s%d, s%d, %d" % (sHH, sHH, L.HH))
    k("s_mul_i32 s%d, s%d, 18432" % (sH, T[1]))
    k("s_add_u32 s%d, s%d, %d" % (sH, sH, L.HP))
    k("s_lshl_b32 s%d, s%d, 7" % (T[9], T[1]))
    k("s_add_u32 s%d, s%d, %d" % (T[9], T[9], L.ST2))
    k("v_and_b32 v%d, 15, v0" % vT)
    k("v_lshrrev_b32 v%d, 4, v0" % (vT + 1))
    k("v_lshlrev_b32 v%d, 14, v%d" % (vT + 1, vT + 1))
    k("v_lshl_add_u32 v%d, v%d, 3, v%d" % (vT + 2, vT, vT + 1))
    k("v_lshrrev_b32 v%d, 5, v0" % (vT + 3))
    k("v_mul_u32_u24 v%d, %d, v%d" % (vT + 3, 147456 - 512, vT + 3))
    k("v_add_u32 v%d, v%d, v%d" % (vSt, vT + 3, vS))
    wait_flags(k, req_group(3), vt=E, wave=7)
    stamp(k, 14)
    for t in range(2):
        vm.op("ST", "buffer_load_dwordx2 %s, v%d, %s, s%d offen offset:%d%s" % (vr(ACC + 2 * t, 2), vT + 2, R, T[9], t * 128, SC))
    def hload(ks):
        for t in range(2):
            k("s_add_u32 s%d, s%d, %d" % (T[0], sH, t * 18432 + (ks // 4) * 4096))
            vm.op("H%d" % ks, "buffer_load_dwordx4 %s, v%d, %s, s%d offen offset:%d%s" % (vr(H + (ks * 2 + t) * 4, 4), vS, R, T[0], (ks % 4) * 1024, SC))
    HPF = int(os.environ.get('HPF', '4'))
    for ks in range(HPF): hload(ks)
    lab = k.newlab()
    k("s_cmp_lg_u32 s%d, 7" % sw)
    k("s_cbranch_scc1 %s" % lab)
    for s in (2, 3):
        for j in range(5): s4_wdma(k, vO, s, j)
    k.label(lab)
    vm.mark("W2"); vm.mark("W3")
    frs = [(ps, ks, b, m) for ps in range(3) for ks in range(18) for b in range(3) for m in range(2)]
    NF = len(frs)
    def wread(i):
        ps, ks, b, m = frs[i]
        s = ps * 3 + ks // 6; sl = s % 4
        for h in range(2):
            lq.op("f%d" % i, "ds_read_b64_tr_b16 %s, v%d offset:%d" % (vr(WF + 4 * (i % NWF) + 2 * h, 2), vA + sl,
                  m * 18432 + (ks % 6) * 3072 + h * 768 + b * 32))
    PF = int(os.environ.get('PF4', '6')); WG4 = int(os.environ.get('WG4', '2'))
    for i in range(PF): wread(i)
    vm.wait("ST")
    sum_rows(k, [ACC, ACC + 1, ACC + 2, ACC + 3], [ACC + 4, ACC + 5, ACC + 6, ACC + 7])
    for t in range(2):
        ln_stats(k, ACC + 2 * t, ACC + 2 * t + 1, AB + 2 * t + 1, AB + 2 * t, E)
        k("v_mul_f32 v%d, -v%d, v%d" % (AB + 2 * t + 1, AB + 2 * t + 1, AB + 2 * t))
    def norm(ks):
        o = []
        for t in range(2):
            for i in range(4):
                r = H + (ks * 2 + t) * 4 + i; u = U + 2 * (i & 1)
                o.append("v_lshlrev_b32 v%d, 16, v%d" % (u, r))
                o.append("v_and_b32 v%d, 0xffff0000, v%d" % (u + 1, r))
                if PKNORM:
                    o.append("v_pk_fma_f32 %s, %s, %s, %s op_sel:[0,0,1] op_sel_hi:[1,0,1]" % (vr(u, 2), vr(u, 2), vr(AB + 2 * t, 2), vr(AB + 2 * t, 2)))
                else:
                    o.append("v_fma_f32 v%d, v%d, v%d, v%d" % (u, u, AB + 2 * t, AB + 2 * t + 1))
                    o.append("v_fma_f32 v%d, v%d, v%d, v%d" % (u + 1, u + 1, AB + 2 * t, AB + 2 * t + 1))
                o.append("v_cvt_pk_bf16_f32 v%d, v%d, v%d" % (r, u, u + 1))
        return o
    def epilogue(ps, vmq):
        G = lambda b, t, r: ACC + b * 16 + t * 4 + r
        Uu = lambda b, t, r: ACC + b * 16 + 8 + t * 4 + r
        if ps == 1: k("s_add_u32 s%d, s%d, %d" % (T[1], sHH, 3 * 512))
        else:
            k("s_bitcmp1_b32 s%d, 0" % si)
            k("s_cselect_b32 s%d, %d, %d" % (T[1], (2 - ps) * 1536, ps * 1536))
            k("s_add_u32 s%d, s%d, s%d" % (T[1], T[1], sHH))
        k("s_nop 6")
        for b in range(3):
            tb = [(t, r) for t in range(2) for r in range(4)]
            for t, r in tb: k("v_mul_f32 v%d, %s, v%d" % (G(b, t, r), hx(f32bits(-1.4426950408889634)), G(b, t, r)))
            for t, r in tb: k("v_exp_f32 v%d, v%d" % (G(b, t, r), G(b, t, r)))
            for t, r in tb: k("v_add_f32 v%d, 1.0, v%d" % (G(b, t, r), G(b, t, r)))
            for t, r in tb: k("v_rcp_f32 v%d, v%d" % (G(b, t, r), G(b, t, r)))
            for t, r in tb: k("v_mul_f32 v%d, v%d, v%d" % (G(b, t, r), G(b, t, r), Uu(b, t, r)))
            e = E + 4 * (b & 1)
            for t in range(2):
                for i in range(2): k("v_cvt_pk_bf16_f32 v%d, v%d, v%d" % (e + 2 * t + i, G(b, t, 2 * i), G(b, t, 2 * i + 1)))
            k("s_nop 1")
            k("v_permlane32_swap_b32 v%d, v%d" % (e, e + 2))
            k("v_permlane32_swap_b32 v%d, v%d" % (e + 1, e + 3))
            k("s_nop 1")
            vmq.op("S", "buffer_store_dwordx4 %s, v%d, %s, s%d offen offset:%d%s" % (vr(e, 4), vSt, R, T[1], b * 512, SC))
    vm.wait("H0")
    for x in norm(0): k(x)
    dm = []
    for i in range(NF):
        ps, ks, b, m = frs[i]
        s = ps * 3 + ks // 6
        first = (b == 0 and m == 0)
        if first and ks % 6 == 1:
            if s == 7: vm.wait("S")
            elif s + 1 < 9: vm.wait("W%d" % (s + 1))
            k("s_barrier")
            if s >= 1 and s + 3 < 9: dm = [wdma(s + 3, j) for j in range(5)]
            if s == 7: publish(k, 4, 7, vT)
        if first and s == 8 and ks % 6 == 3: peek_issue(k, 5, vT)
        if CODEPF >= 3 and first and ps == 2 and ks == 3:
            lab = k.newlab()
            k("s_add_u32 s%d, s%d, s%d" % (T[0], ssub, sw))
            k("s_cmp_lg_u32 s%d, 0" % T[0])
            k("s_cbranch_scc1 %s" % lab)
            code_pf(k, ".L_code_s5", 3, vT, vT + 3, T[2])
            k.label(lab)
        if WARM == 4 and first and ps == WPS and ks == 3:
            make_srd(k, sA, P_D, 4608 * 1152)
            k("s_and_b32 s%d, s%d, 3" % (T[0], sg))
            k("s_lshl_b32 s%d, s%d, 3" % (T[0], T[0]))
            k("s_add_u32 s%d, s%d, s%d" % (T[0], T[0], ssub))
            k("s_lshl_b32 s%d, s%d, 3" % (T[0], T[0]))
            k("s_add_u32 s%d, s%d, s%d" % (T[0], T[0], sw))
            k("s_mul_i32 s%d, s%d, 21" % (T[0], T[0]))
            k("s_lshl_b32 s%d, s%d, 1" % (T[1], sq))
            k("s_lshr_b32 s%d, s%d, 2" % (T[2], sg))
            k("s_add_u32 s%d, s%d, s%d" % (T[1], T[1], T[2]))
            k("s_mul_i32 s%d, s%d, %d" % (T[1], T[1], 5184 * 128))
            k("v_add_u32 v%d, s%d, v0" % (vT, T[0]))
            k("v_min_u32 v%d, 5183, v%d" % (vT, vT))
            k("v_lshlrev_b32 v%d, 7, v%d" % (vT, vT))
            k("s_mov_b64 exec, 0x1fffff")
            vm.op("warm", "buffer_load_dword v%d, v%d, %s, s%d offen" % (vT + 3, vT, RA, T[1]))
            k("s_mov_b64 exec, -1")
        if first and ps == 0:
            if ks + HPF < 18: hload(ks + HPF)
            fill = []
            if ks + 1 < 18:
                fill = norm(ks + 1)
                vm.wait("H%d" % (ks + 1))
        if i + PF < NF: wread(i + PF)
        if i % WG4 == 0: lq.wait("f%d" % (i + WG4 - 1))
        for t in range(2):
            d = vr(ACC + b * 16 + m * 8 + t * 4, 4)
            k("v_mfma_f32_16x16x32_bf16 %s, %s, %s, %s" % (d, vr(WF + 4 * (i % NWF), 4), vr(H + (ks * 2 + t) * 4, 4), "0" if ks == 0 else d))
            if ps == 0:
                n = (3 if PKNORM else 4) if (b, m, t) != (2, 1, 1) else 99
                for _ in range(n):
                    if fill: k(fill.pop(0))
        if dm and m == 1: dm.pop(0)()
        if ks == 17 and b == 2 and m == 1 and ps < 2:
            epilogue(ps, vm)
            if ps == 0: stamp(k, 15)
    stamp(k, 16)
    k.label(".L_code_s5")
    peek_check(k, 5, vT, 4)
    k("s_barrier")
    STG = 34816; NS = 4; WOFF = 16384; NST = 18; OWN = 4 * STG
    smt, sng, sSrc, sM0 = T[12], T[13], T[14], T[15]
    korder = [9 * c + j for c in range(4) for j in (0, 1, 2, 6, 7, 8)] + [9 * c + j for c in range(4) for j in (3, 4, 5)]
    k("s_lshl_b32 s%d, s%d, 1" % (smt, sg))
    k("s_and_b32 s%d, s%d, 1" % (T[0], ssub))
    k("s_add_u32 s%d, s%d, s%d" % (smt, smt, T[0]))
    k("s_lshr_b32 s%d, s%d, 1" % (sng, ssub))
    k("s_cmp_ge_u32 s%d, 4" % sw)
    k("s_cbranch_scc1 .L_s5_loader")
    epilogue(2, Q(k, "vmcnt", 63))
    stamp(k, 27)
    vA, vT = 2, 6
    ACC5 = 16; HF = 96; WF5 = 128; NW5 = 14
    lq = Q(k, "lgkmcnt", 15)
    k("s_lshl_b32 s%d, s%d, 11" % (T[0], sw))
    k("v_add_u32 v%d, s%d, v%d" % (vA, T[0], vS))
    k("v_add_u32 v%d, %d, v%d" % (vA + 1, 2 * STG, vA))
    tr_addr(k, vA + 2, vT, 4608)
    k("v_add_u32 v%d, %d, v%d" % (vA + 2, WOFF, vA + 2))
    k("v_add_u32 v%d, %d, v%d" % (vA + 3, 2 * STG, vA + 2))
    NK = 2 * NST
    def hread(kk):
        st, kp = divmod(kk, 2); sl = st % NS
        for t in range(2):
            lq.op("h%d" % kk, "ds_read_b128 %s, v%d offset:%d" % (vr(HF + ((kk & 3) * 2 + t) * 4, 4), vA + (sl >> 1), (sl & 1) * STG + kp * 8192 + t * 1024))
    def wread5(i):
        kk, u = divmod(i, 9); st, kp = divmod(kk, 2); sl = st % NS
        for h in range(2):
            lq.op("w%d" % i, "ds_read_b64_tr_b16 %s, v%d offset:%d" % (vr(WF5 + 4 * (i % NW5) + 2 * h, 2), vA + 2 + (sl >> 1),
                  (sl & 1) * STG + kp * 9216 + h * 2304 + u * 32))
    PFW = int(os.environ.get('PFW', '8')); WG5 = int(os.environ.get('WG5', '3'))
    k("s_barrier")
    stamp(k, 17)
    hread(0)
    for i in range(PFW): wread5(i)
    for i in range(NK * 9):
        kk, u = divmod(i, 9)
        if u % WG5 == 0: lq.wait("w%d" % (i + WG5 - 1))
        for t in range(2):
            d = vr(ACC5 + (t * 9 + u) * 4, 4)
            k("v_mfma_f32_16x16x32_bf16 %s, %s, %s, %s" % (d, vr(WF5 + 4 * (i % NW5), 4), vr(HF + ((kk & 3) * 2 + t) * 4, 4), "0" if kk == 0 else d))
            if t == 0:
                ni = i + PFW
                if ni < NK * 9:
                    if ni % 18 == 0:
                        sn = ni // 18
                        if sn == 4: k("s_waitcnt vmcnt(0)")
                        if sn == 10: peek_check(k, 0, vT, 5)
                        k("s_barrier")
                        if sn == 4: publish(k, 5, 1, vT)
                        if sn == 8: peek_issue(k, 0, vT)
                    if ni % 9 == 0: hread(ni // 9)
                    wread5(ni)
    stamp(k, 18)
    k("s_lshl_b32 s%d, s%d, 2" % (T[2], smt))
    k("s_add_u32 s%d, s%d, s%d" % (T[2], T[2], sng))
    k("s_lshl_b32 s%d, s%d, 2" % (T[2], T[2]))
    k("s_add_u32 s%d, s%d, s%d" % (T[2], T[2], sw))
    k("s_lshl_b32 s%d, s%d, 2" % (T[2], T[2]))
    k("s_add_u32 s%d, s%d, s%d" % (T[2], T[2], sq))
    k("s_mul_i32 s%d, s%d, 9216" % (T[2], T[2]))
    k("s_add_u32 s%d, s%d, %d" % (T[2], T[2], L.PART))
    k("v_add_u32 v%d, %d, v%d" % (vT + 1, OWN, vS))
    own = k.newlab()
    k("s_cmp_eq_u32 s%d, s%d" % (sw, sq))
    k("s_cbranch_scc1 %s" % own)
    for u in range(9):
        e = HF + 4 * (u % 8)
        for t in range(2):
            a = ACC5 + (t * 9 + u) * 4
            for p in range(2): k("v_cvt_pk_bf16_f32 v%d, v%d, v%d" % (e + 2 * t + p, a + 2 * p, a + 2 * p + 1))
        if u and u % 4 == 0: k("s_add_u32 s%d, s%d, 4096" % (T[2], T[2]))
        k("buffer_store_dwordx4 %s, v%d, %s, s%d offen offset:%d%s" % (vr(e, 4), vS, R, T[2], (u % 4) * 1024, SC))
    k("s_branch .L_s5_done")
    k.label(own)
    for i in range(18): k("ds_write_b128 v%d, %s offset:%d" % (vT + 1, vr(ACC5 + 4 * i, 4), i * 1024))
    k("s_branch .L_s5_done")
    k.label(".L_s5_loader")
    k("s_and_b32 s%d, s%d, 1" % (T[0], sw))
    k("s_cmp_ge_u32 s%d, 6" % sw)
    k("s_cbranch_scc1 .L_s5_ldh")
    for which in ("w", "h"):
        if which == "h": k.label(".L_s5_ldh")
        n = 8 if which == "h" else 9
        vO5 = 30; vT5 = 24
        vq = Q(k, "vmcnt", 63)
        if which == "h":
            k("s_mul_i32 s%d, s%d, %d" % (sSrc, smt, 8 * 144))
            k("s_mul_i32 s%d, s%d, 36" % (T[1], sq))
            k("s_add_u32 s%d, s%d, s%d" % (sSrc, sSrc, T[1]))
            k("s_lshl_b32 s%d, s%d, 10" % (sSrc, sSrc))
            k("s_add_u32 s%d, s%d, %d" % (sSrc, sSrc, L.HH))
            k("s_lshl_b32 s%d, s%d, 13" % (sM0, T[0]))
            for t in range(8): k("v_add_u32 v%d, %d, v%d" % (vO5 + t, t * 147456 - (t % 4) * 1024, vS))
        else:
            make_srd(k, sA, P_D, 4608 * 1152)
            k("s_mul_i32 s%d, s%d, %d" % (sSrc, sq, 36 * 32 * 1152))
            k("s_mul_i32 s%d, s%d, 288" % (T[1], sng))
            k("s_add_u32 s%d, s%d, s%d" % (sSrc, sSrc, T[1]))
            k("s_mul_i32 s%d, s%d, 9216" % (sM0, T[0]))
            k("s_add_u32 s%d, s%d, %d" % (sM0, sM0, WOFF))
            for j in range(9):
                k("v_add_u32 v%d, %d, v0" % (vT5, 64 * j))
                k("v_mul_u32_u24 v%d, 3641, v%d" % (vT5 + 1, vT5))
                k("v_lshrrev_b32 v%d, 16, v%d" % (vT5 + 1, vT5 + 1))
                k("v_mul_u32_u24 v%d, %d, v%d" % (vT5 + 1, 1152 - 288, vT5 + 1))
                k("v_lshl_add_u32 v%d, v%d, 4, v%d" % (vO5 + j, vT5, vT5 + 1))
                if j % 4: k("v_subrev_u32 v%d, %d, v%d" % (vO5 + j, (j % 4) * 1024, vO5 + j))
        unit = 1024 if which == "h" else 32 * 1152
        def issue(st):
            k("s_bitcmp1_b32 s%d, 0" % sw)
            k("s_cselect_b32 s%d, %d, %d" % (T[2], korder[2 * st + 1], korder[2 * st]))
            k("s_mul_i32 s%d, s%d, %d" % (T[2], T[2], unit))
            k("s_add_u32 s%d, s%d, s%d" % (T[2], T[2], sSrc))
            for j in range(n):
                if j % 4 == 0:
                    k("s_add_u32 m0, s%d, %d" % (sM0, (st % NS) * STG + j * 1024))
                    k("s_nop 0")
                if which == "h": vq.op("d%d" % st, "buffer_load_dwordx4 v%d, %s, s%d offen offset:%d%s lds" % (vO5 + j, R, T[2], (j % 4) * 1024, SC))
                else: vq.op("d%d" % st, "buffer_load_dwordx4 v%d, %s, s%d offen offset:%d lds" % (vO5 + j, RA, T[2], (j % 4) * 1024))
        for st in range(2): issue(st)
        epilogue(2, vq)
        for st in range(NST):
            vq.wait("d%d" % st)
            k("s_barrier")
            if st + 2 < NST: issue(st + 2)
        if which == "w": k("s_branch .L_s5_done")
    k.label(".L_s5_done")
    stamp(k, 30)
    signal(k, 6, wave=7, vt=120)
    stamp(k, 31)
    P = 16; HB = 80; X = 96
    vT = 6
    sj = T[11]
    k("s_add_u32 s%d, s%d, 4" % (sj, sw))
    k("s_and_b32 s%d, s%d, 7" % (sj, sj))
    make_srd(k, sA, P_OUT, 2048 * 1152)
    k("s_lshl_b32 s%d, s%d, 2" % (T[4], smt))
    k("s_add_u32 s%d, s%d, s%d" % (T[4], T[4], sng))
    k("s_lshl_b32 s%d, s%d, 2" % (T[4], T[4]))
    k("s_add_u32 s%d, s%d, s%d" % (T[4], T[4], sq))
    k("s_mul_i32 s%d, s%d, %d" % (T[4], T[4], 4 * 9216))
    k("s_lshl_b32 s%d, s%d, 11" % (T[8], sj))
    k("s_add_u32 s%d, s%d, s%d" % (T[4], T[4], T[8]))
    k("s_add_u32 s%d, s%d, %d" % (T[4], T[4], L.PART))
    k("s_lshl_b32 s%d, s%d, 3" % (T[9], smt))
    k("s_lshl_b32 s%d, s%d, 1" % (T[7], sq))
    k("s_add_u32 s%d, s%d, s%d" % (T[9], T[9], T[7]))
    k("s_mul_i32 s%d, s%d, 18432" % (T[9], T[9]))
    k("s_mul_i32 s%d, s%d, 9" % (T[7], sng))
    k("s_lshl_b32 s%d, s%d, 1" % (T[10], sj))
    k("s_add_u32 s%d, s%d, s%d" % (T[7], T[7], T[10]))
    k("s_lshl_b32 s%d, s%d, 9" % (T[10], T[7]))
    k("s_add_u32 s%d, s%d, s%d" % (T[10], T[10], T[9]))
    k("s_add_u32 s%d, s%d, %d" % (T[10], T[10], L.HP))
    k("s_lshl_b32 s%d, s%d, 5" % (T[7], T[7]))
    k("s_add_u32 s%d, s%d, s%d" % (T[9], T[9], T[7]))
    k("s_add_u32 s%d, s%d, 32" % (T[14], T[9]))
    k("s_cmp_ge_u32 s%d, 4" % sj)
    k("s_cselect_b32 s%d, 0x7f000000, s%d" % (T[14], T[14]))
    k("v_and_b32 v%d, 15, v0" % vT)
    k("v_lshrrev_b32 v%d, 4, v0" % (vT + 1))
    k("v_and_b32 v%d, 1, v%d" % (vT + 2, vT + 1))
    k("v_lshlrev_b32 v%d, 8, v%d" % (vT + 2, vT + 2))
    k("v_lshl_add_u32 v%d, v%d, 4, v%d" % (vT + 2, vT, vT + 2))
    k("v_lshrrev_b32 v%d, 1, v%d" % (vT + 3, vT + 1))
    k("v_lshl_add_u32 v%d, v%d, 3, v%d" % (vT + 2, vT + 3, vT + 2))
    k("v_add_u32 v%d, 18432, v%d" % (vT + 5, vT + 2))
    k("v_and_b32 v%d, 31, v0" % (vT + 4))
    k("v_mul_u32_u24 v%d, 1152, v%d" % (vT + 4, vT + 4))
    k("v_lshl_add_u32 v%d, v%d, 4, v%d" % (vT + 3, vT + 3, vT + 4))
    k("s_add_u32 s%d, s%d, %d" % (T[8], T[8], OWN))
    k("v_add_u32 v%d, s%d, v%d" % (vT + 4, T[8], vS))
    for n in range(3):
        k("s_add_u32 s%d, s%d, %d" % (T[5 + n], sq, n + 1))
        k("s_and_b32 s%d, s%d, 3" % (T[5 + n], T[5 + n]))
        k("s_mul_i32 s%d, s%d, 9216" % (T[5 + n], T[5 + n]))
        k("s_add_u32 s%d, s%d, s%d" % (T[5 + n], T[5 + n], T[4]))
    lab = k.newlab()
    k("s_cmp_ge_u32 s%d, 5" % sj)
    k("s_cbranch_scc1 %s" % lab)
    for c in range(2):
        for t in range(2):
            k("buffer_load_dwordx2 %s, v%d, %s, s%d offen offset:%d%s" % (vr(HB + (c * 2 + t) * 2, 2), [vT + 2, vT + 5][t], R, T[10], c * 512, SC))
            k("ds_read_b128 %s, v%d offset:%d" % (vr(X + (c * 2 + t) * 4, 4), vT + 4, c * 1024 + t * 9216))
    k.label(lab)
    wait_flags(k, req_group(6, None, mask_sub), vt=120, wave=3)
    stamp(k, 32)
    k("s_cmp_ge_u32 s%d, 5" % sj)
    k("s_cbranch_scc1 .L_fin")
    for c in range(2):
        for n in range(3):
            k("buffer_load_dwordx4 %s, v%d, %s, s%d offen offset:%d%s" % (vr(P + (c * 3 + n) * 4, 4), vS, R, T[5 + n], c * 1024, SC))
    TM = 48
    for c in range(2):
        k("s_waitcnt vmcnt(%d) lgkmcnt(0)" % (3 - 2 * c))
        for t in range(2):
            a = X + (c * 2 + t) * 4
            for n in range(3):
                for p in range(2):
                    src = P + (c * 3 + n) * 4 + 2 * t + p
                    k("v_lshlrev_b32 v%d, 16, v%d" % (TM + 2 * p, src))
                    k("v_and_b32 v%d, 0xffff0000, v%d" % (TM + 2 * p + 1, src))
                    k("v_pk_add_f32 %s, %s, %s" % (vr(a + 2 * p, 2), vr(a + 2 * p, 2), vr(TM + 2 * p, 2)))
            e = 56 + c * 4 + 2 * t
            k("v_cvt_pk_bf16_f32 v%d, v%d, v%d" % (e, a, a + 1))
            k("v_cvt_pk_bf16_f32 v%d, v%d, v%d" % (e + 1, a + 2, a + 3))
            for i in range(2):
                k("v_lshlrev_b32 v%d, 16, v%d" % (a + 2 * i, e + i))
                k("v_and_b32 v%d, 0xffff0000, v%d" % (a + 2 * i + 1, e + i))
                k("v_lshlrev_b32 v%d, 16, v%d" % (TM, HB + (c * 2 + t) * 2 + i))
                k("v_and_b32 v%d, 0xffff0000, v%d" % (TM + 1, HB + (c * 2 + t) * 2 + i))
                k("v_pk_add_f32 %s, %s, %s" % (vr(a + 2 * i, 2), vr(a + 2 * i, 2), vr(TM, 2)))
            k("v_cvt_pk_bf16_f32 v%d, v%d, v%d" % (e, a, a + 1))
            k("v_cvt_pk_bf16_f32 v%d, v%d, v%d" % (e + 1, a + 2, a + 3))
        e = 56 + c * 4
        k("s_nop 1")
        k("v_permlane16_swap_b32 v%d, v%d" % (e, e + 2))
        k("v_permlane16_swap_b32 v%d, v%d" % (e + 1, e + 3))
        k("s_nop 1")
        k("buffer_store_dwordx4 %s, v%d, %s, s%d offen" % (vr(e, 4), vT + 3, RA, [T[9], T[14]][c]))
```
